```python
import torch

def _softmax(x, axis=-1):
    return torch.softmax(x, dim=axis)
def _gelu(x):
    return torch.nn.functional.gelu(x, approximate="tanh")
def _silu(x):
    return torch.nn.functional.silu(x)
def _sigmoid(x):
    return torch.sigmoid(x)
def _layernorm(x, axis=-1, eps=1e-5):
    m = x.mean(dim=axis, keepdim=True)
    v = x.var(dim=axis, keepdim=True, unbiased=False)
    return (x - m) / torch.sqrt(v + eps)
def _scatter_add(tgt, idx, src, axis=0):
    return tgt.clone().index_add_(axis, idx, src)
def _segment_sum(src, seg, n):
    out = torch.zeros((n,) + src.shape[1:], dtype=src.dtype)
    return out.index_add_(0, seg, src)
def _pad(x, pw):
    flat = tuple(v for pair in reversed(pw) for v in pair)
    return torch.nn.functional.pad(x, flat)

kernel_name = 'recurrent_scan__spectral_gfnet__swiglu_ffn__prompt'

def setup_inputs():

    _w = (lambda a: (lambda t: t.to(torch.bfloat16) if t.is_floating_point() else t)(torch.as_tensor(a)))
    def _A_setup():
        B, S, D = 1, 2048, 448
        Df = D // 2 + 1
        return {
            "x": _w((lambda *s: torch.randn(*s, dtype=torch.bfloat16) * 0.05)(B, S, D)),
            "w_r": _w((lambda *s: torch.randn(*s, dtype=torch.bfloat16) * 0.2)(S, Df) * 0.02),
            "w_i": _w((lambda *s: torch.randn(*s, dtype=torch.bfloat16) * 0.2)(S, Df) * 0.02),
        }
    _A_in = _A_setup()

    def _B_setup():
        B, S, D, F = 1, 2048, 448, 1792
        return {
            "x": _w((lambda *s: torch.randn(*s, dtype=torch.bfloat16) * 0.05)(B, S, D)),
            "w_gate": _w((lambda *s: torch.randn(*s, dtype=torch.bfloat16) * 0.2)(D, F)),
            "w_up": _w((lambda *s: torch.randn(*s, dtype=torch.bfloat16) * 0.2)(D, F)),
            "w_down": _w((lambda *s: torch.randn(*s, dtype=torch.bfloat16) * 0.2)(F, D)),
        }
    _B_in = _B_setup()

    return {
        "A_x": _A_in["x"],
        "A_w_r": _A_in["w_r"],
        "A_w_i": _A_in["w_i"],
        "B_x": _B_in["x"],
        "B_w_gate": _B_in["w_gate"],
        "B_w_up": _B_in["w_up"],
        "B_w_down": _B_in["w_down"],
    }

def reference(A_x, A_w_r, A_w_i, B_x, B_w_gate, B_w_up, B_w_down):
    def _A_ref(x, w_r, w_i):
        B, S, D = x.shape
        X = (lambda x, axes=(-2,-1): torch.fft.rfft2(x.float(), dim=axes))(x, axes=(-2, -1))
        W = w_r + 1j * w_i
        X = X * W
        y = (lambda x, s, axes=(-2,-1): torch.fft.irfft2(x, s=s, dim=axes).to(torch.bfloat16))(X, (S, D), axes=(-2, -1))
        return y

    def _B_ref(x, w_gate, w_up, w_down):
        g = _silu(x @ w_gate)
        u = x @ w_up
        return (g * u) @ w_down

    x = A_x
    xn = _layernorm(x, axis=-1)
    s = _A_ref(xn, A_w_r, A_w_i)
    g = _silu(_B_ref(xn, B_w_gate, B_w_up, B_w_down))
    return x + s * g
```

```python
import re

TRANS = ('v_exp_f32','v_log_f32','v_rcp_f32','v_rsq_f32','v_sqrt_f32','v_sin_f32','v_cos_f32')
RMW = ('v_fmac_f32','v_dot2c_f32_bf16')

def regs_of(tok):
    tok = tok.strip()
    tok = tok.lstrip('-')
    if tok.startswith('abs('): tok = tok[4:-1]
    if tok.startswith('|'): tok = tok.strip('|')
    m = re.fullmatch(r'([vsa])(\d+)', tok)
    if m: return {(m.group(1), int(m.group(2)))}
    m = re.fullmatch(r'([vsa])\[(\d+):(\d+)\]', tok)
    if m: return {(m.group(1), i) for i in range(int(m.group(2)), int(m.group(3))+1)}
    if tok == 'vcc': return {('s', 'vcc')}
    if tok == 'exec': return {('s', 'exec')}
    if tok == 'm0': return {('s', 'm0')}
    return set()

class Ins:
    def __init__(self, text):
        self.text = text
        t = text.split(';')[0].strip()
        parts = t.split(None, 1)
        self.op = parts[0]
        rest = parts[1] if len(parts) > 1 else ''
        bm = re.findall(r'\s\w+:\[[^\]]*\]', rest)
        rest = re.sub(r'\s\w+:\[[^\]]*\]', '', rest)
        ops = [o.strip() for o in rest.split(',')] if rest else []
        self.mods = ''
        if ops:
            sp = ops[-1].split(None, 1)
            ops[-1] = sp[0]
            self.mods = sp[1] if len(sp) > 1 else ''
        self.mods += ' ' + ' '.join(bm)
        self.ops = ops
        op = self.op
        self.w = set(); self.r = set(); self.srcc = set(); self.ab = set()
        R = [regs_of(o) for o in ops]
        self.kind = 'other'
        if op.startswith('v_mfma'):
            self.kind = 'mfma'
            self.passes = 8 if '32x32x16' in op else 4
            self.w = R[0]; self.ab = R[1] | R[2]; self.srcc = R[3]; self.r = self.ab | self.srcc
        elif op.startswith('v_'):
            self.kind = 'valu'
            if op.startswith('v_permlane') and 'swap' in op:
                self.w = R[0] | R[1]; self.r = R[0] | R[1]
            elif op.startswith('v_cmpx'):
                self.w = R[0] | {('s','exec')}; self.r = set().union(*R[1:])
            elif '_co_' in op:
                self.w = R[0] | R[1]; self.r = set().union(*R[2:])
            else:
                self.w = R[0]; self.r = set().union(*R[1:]) if len(R) > 1 else set()
                if op in RMW or 'dpp' in op or 'quad_perm' in self.mods or 'row_' in self.mods: self.r |= R[0]
        elif op.startswith('ds_'):
            self.kind = 'ds'
            if op.startswith('ds_read') or op.startswith('ds_bperm') or op.startswith('ds_swizzle'):
                self.w = R[0]; self.r = set().union(*R[1:])
            else:
                self.r = set().union(*R)
        elif op.startswith('buffer_') or op.startswith('global_'):
            self.kind = 'vmem'
            self.lds = bool(re.search(r'\blds\b', self.mods))
            if 'load' in op and not self.lds:
                self.w = R[0]; self.r = set().union(*R[1:])
                if 'd16' in op: self.r |= R[0]
            elif 'atomic' in op and 'sc0' in self.mods:
                self.w = R[0]; self.r = set().union(*R)
            else:
                self.r = set().union(*R) if R else set()
                if self.lds: self.r |= {('s','m0')}
            self.wide_store = ('store' in op) and ('x4' in op or 'x3' in op)
            if self.wide_store:
                self.sdata = R[0] if op.startswith('buffer_') else R[1]
        elif op.startswith('s_load') or op.startswith('s_memtime') or op.startswith('s_memrealtime'):
            self.kind = 'smem'; self.w = R[0]; self.r = set().union(*R[1:]) if len(R) > 1 else set()
        elif op.startswith('s_'):
            self.kind = 'salu'
            if op.startswith('s_cmp') or op.startswith('s_cbranch') or op in ('s_waitcnt','s_barrier','s_nop','s_branch','s_endpgm','s_setprio','s_sleep'):
                self.r = set().union(*R) if R else set()
            else:
                self.w = R[0] if R else set(); self.r = set().union(*R[1:]) if len(R) > 1 else set()
        self.trans = op in TRANS

class Asm:
    def __init__(self):
        self.lines = []
        self.hist = []
        self.vmq = []
        self.lgq = []
        self.smem = False
        self.nins = 0
    def raw(self, s):
        self.lines.append(s)
    def label(self, name):
        self.lines.append(name + ':')
    def flush_hist(self):
        self.hist = []
    def reset_state(self):
        self.hist = []; self.vmq = []; self.lgq = []; self.smem = False
    def _need(self, ins):
        need = 0; dist = 0
        for p, st in reversed(self.hist):
            req = 0
            pw = p.w
            vw = {x for x in pw if x[0] in 'va'}
            sw = pw - vw
            if p.kind == 'valu':
                if ins.kind == 'mfma' and (vw & ins.r): req = max(req, 2)
                if p.trans and ins.kind == 'valu' and not ins.trans and (vw & ins.r): req = max(req, 1)
                if p.trans and ins.kind == 'valu' and ins.trans and (vw & ins.r): req = max(req, 1)
                if ins.op.startswith('v_readfirstlane') or ins.op.startswith('v_readlane'):
                    if vw & ins.r: req = max(req, 1)
                if ins.op.startswith('v_permlane') and (vw & ins.r): req = max(req, 2)
                if ins.kind == 'valu' and ('quad_perm' in ins.mods or 'row_' in ins.mods or 'dpp' in ins.op) and (vw & ins.r): req = max(req, 2)
                if sw:
                    if ins.kind == 'vmem' and (sw & ins.r): req = max(req, 5)
                    if ins.kind == 'valu' and (sw & ins.r): req = max(req, 2)
                    if ins.kind == 'salu' and (sw & ins.r): req = max(req, 1)
                    if ('s','exec') in sw:
                        if ins.kind == 'mfma': req = max(req, 4)
                        if ins.op.startswith('v_read') or ins.op.startswith('v_permlane'): req = max(req, 4)
                if p.op.startswith('v_dot') and (vw & (ins.r | ins.w)) and ins.op != p.op: req = max(req, 3)
                if 'op_sel' in p.mods or 'sdwa' in p.op or 'dst_sel' in p.mods:
                    if ins.kind == 'valu' and (vw & (ins.r | ins.w)): req = max(req, 1)
            elif p.kind == 'mfma':
                big = 12 if p.passes == 8 else 8
                if ins.kind == 'mfma':
                    if vw & ins.ab: req = max(req, big)
                    if vw & ins.srcc:
                        if not (vw == ins.srcc and p.passes == ins.passes): req = max(req, big - 2)
                    elif vw & ins.w: req = max(req, big)
                elif ins.kind in ('valu', 'vmem', 'ds'):
                    if vw & (ins.r | ins.w): req = max(req, big)
                if ins.kind == 'valu' and (p.srcc & ins.w): req = max(req, 7 if p.passes == 8 else 3)
            elif p.kind == 'salu':
                if ('s','m0') in pw and ins.kind == 'vmem' and ins.lds: req = max(req, 1)
            elif p.kind == 'vmem' and p.wide_store:
                if p.sdata & ins.w: req = max(req, 2)
            need = max(need, req - dist)
            dist += st
            if dist >= 20: break
        return need
    def _autowait(self, ins):
        touch = ins.r | ins.w
        vm = None; lg = None
        for i, o in enumerate(self.vmq):
            if o['w'] & touch: vm = len(self.vmq) - 1 - i
        for i, o in enumerate(self.lgq):
            if o['w'] & touch:
                if ins.kind == 'ds' and not (o['w'] & ins.r): continue
                lg = len(self.lgq) - 1 - i
        if vm is not None and ins.kind == 'vmem' and not any(o['w'] & ins.r for o in self.vmq):
            vm = None
        if vm is not None and ins.kind == 'vmem' and 'd16' in ins.op:
            other = ins.r - ins.w
            vm = None
            for i, o in enumerate(self.vmq):
                if o['w'] & other: vm = len(self.vmq) - 1 - i
        self.wait(vm, lg)
    def wait(self, vm=None, lg=None):
        parts = []
        if vm is not None and vm < len(self.vmq):
            assert vm <= 63
            parts.append(f"vmcnt({vm})"); self.vmq = self.vmq[len(self.vmq)-vm:] if vm else []
        if lg is not None and lg < len(self.lgq):
            lg = min(lg, 15)
            parts.append(f"lgkmcnt({lg})"); self.lgq = self.lgq[len(self.lgq)-lg:] if lg else []
        if parts: self._emit(Ins("s_waitcnt " + " ".join(parts)))
    def wait_tag(self, tag):
        vm = None
        for i, o in enumerate(self.vmq):
            if o['tag'] == tag: vm = len(self.vmq) - 1 - i
        self.wait(vm, None)
    def wait_lg_tag(self, tag):
        lg = None
        for i, o in enumerate(self.lgq):
            if o['tag'] == tag: lg = len(self.lgq) - 1 - i
        self.wait(None, lg)
    def wait_smem(self):
        self._emit(Ins("s_waitcnt lgkmcnt(0)")); self.lgq = []
    def _emit(self, ins):
        n = self._need(ins)
        if n > 0:
            assert n <= 16
            self.lines.append(f"    s_nop {n-1}"); self.hist.append((Ins(f"s_nop {n-1}"), n)); self.nins += 1
        self.lines.append("    " + ins.text); self.nins += 1
        st = 1
        if ins.op == 's_nop': st = int(ins.ops[0]) + 1
        self.hist.append((ins, st))
        if len(self.hist) > 40: self.hist = self.hist[-30:]
    def __call__(self, text, tag=None):
        for t in text.split('\n'):
            t = t.strip()
            if not t: continue
            ins = Ins(t)
            self._autowait(ins)
            self._emit(ins)
            if ins.kind == 'vmem':
                self.vmq.append(dict(w=ins.w, tag=tag))
                assert len(self.vmq) <= 63, "vmcnt overflow"
            elif ins.kind == 'ds':
                self.lgq.append(dict(w=ins.w, tag=tag))
    def text(self):
        return "\n".join(self.lines) + "\n"

class RegAlloc:
    def __init__(self, start=1, limit=256):
        self.next = start; self.limit = limit; self.maxv = start
    def get(self, n=1, align=1):
        if n >= 2: align = max(align, 2)
        b = (self.next + align - 1) // align * align
        self.next = b + n
        assert self.next <= self.limit, f"out of regs {self.next}"
        self.maxv = max(self.maxv, self.next)
        return b

def v(b, n=1):
    return f"v{b}" if n == 1 else f"v[{b}:{b+n-1}]"
def s(b, n=1):
    return f"s{b}" if n == 1 else f"s[{b}:{b+n-1}]"
```

```python
import sys, struct, math
sys.path.insert(0, 'work')
from asmlib import *

NAME = "recurrent_scan__spectral_gfnet__swiglu_ffn__prompt"
OFF_H = 0
OFF_V1 = 0x800000
OFF_V2 = 0xA00000
OFF_ST = 0xC00000
OFF_FL = 0xC10000
OFF_DIAG = 0x2000000
OPT = sys.argv[2:]
DIAG = 'diag' in OPT
STAMP_OP = 's_memtime' if 'cyc' in OPT else 's_memrealtime'
LIMIT = 0x20000

def lit(x):
    return "0x%08x" % struct.unpack('<I', struct.pack('<f', x))[0]
def m32(d, a, b, c=None):
    return f"v_mfma_f32_32x32x16_bf16 {v(d,16)}, {v(a,4)}, {v(b,4)}, {v(d,16) if c is None else c}"
def m16(d, a, b, c=None):
    return f"v_mfma_f32_16x16x32_bf16 {v(d,4)}, {v(a,4)}, {v(b,4)}, {v(d,4) if c is None else c}"

def em(a, x):
    if callable(x): x()
    elif isinstance(x, tuple): a(x[0], tag=x[1])
    else: a(x)
def weave(a, mains, fills, span=None):
    n = len(mains) if span is None else min(span, len(mains)); k = len(fills); done = 0
    for i, m in enumerate(mains):
        em(a, m)
        upto = min(k, (k * (i + 1) + n - 1) // n)
        while done < upto:
            em(a, fills[done]); done += 1
def merge(*lists):
    items = []
    for li, l in enumerate(lists):
        for i, x in enumerate(l):
            items.append(((i + 0.5) / len(l), li, i, x))
    items.sort(key=lambda t: (t[0], t[1], t[2]))
    return [t[3] for t in items]

class Stamp:
    def __init__(self, a):
        self.a = a; self.n = 0
    def __call__(self):
        if not DIAG: return
        self.a.raw(f"    {STAMP_OP} s[{66+2*self.n}:{67+2*self.n}]")
        self.a.raw("    s_waitcnt lgkmcnt(0)")
        self.a.lgq = []
        self.n += 1
        assert self.n <= 16
    def dump(self, vt):
        if not DIAG: return
        a = self.a
        self()
        a(f"s_lshl_b32 s98, s2, 3\ns_add_u32 s98, s98, s3\ns_lshl_b32 s98, s98, 6")
        a(f"s_add_u32 s98, s98, {OFF_DIAG}")
        for i in range(self.n):
            a(f"v_mov_b32 {v(vt)}, s{66+2*i}")
            a(f"buffer_store_dword {v(vt)}, off, s[16:19], s98 offset:{4*i}")
            a.wait(vm=0)

NLAB = [0]
def spin(a, vdst, vaddr, srd, soff, mask, first=True):
    NLAB[0] += 1; L = f"SP{NLAB[0]}"
    a("s_mov_b32 s99, 0")
    if not first:
        a(f"v_cmp_ne_u32 vcc, 1, {v(vdst)}")
        a(f"s_and_b64 vcc, vcc, {mask}")
        a(f"s_cbranch_scc0 {L}_D")
    a(f"s_mov_b64 exec, {mask}")
    a.raw(f"{L}:")
    a.raw(f"    buffer_load_dword {v(vdst)}, {v(vaddr)}, {srd}, {soff} offen sc1")
    a.raw("    s_add_u32 s99, s99, 1")
    a.raw("    s_waitcnt vmcnt(0)")
    a.raw(f"    v_cmp_ne_u32 vcc, 1, {v(vdst)}")
    a.raw("    s_nop 1")
    a.raw("    s_cmp_eq_u64 vcc, 0")
    a.raw(f"    s_cbranch_scc1 {L}_E")
    a.raw(f"    s_cmp_lt_u32 s99, {LIMIT}")
    a.raw(f"    s_cbranch_scc1 {L}")
    a.raw(f"{L}_E:")
    a.raw("    s_mov_b64 exec, -1")
    a.raw(f"{L}_D:")
    if first: a.vmq = []

def wave0(a, lines):
    NLAB[0] += 1; L = f"W0_{NLAB[0]}"
    a("s_cmp_lg_u32 s3, 0")
    a(f"s_cbranch_scc1 {L}")
    for l in lines: a.raw("    " + l)
    a.raw(f"{L}:")

def ffn(a, st):
    XB = 16384; WB = 114688
    X = lambda s: XB + 32768 * s
    W = lambda s: WB + 16384 * s
    USLOT = [X(1), X(1) + 16384, W(1), X(2), X(2) + 16384, W(2), X(0), X(0) + 16384, W(0),
             X(1), X(1) + 16384, W(1), X(2), X(2) + 16384]
    a("""s_load_dwordx2 s[8:9], s[0:1], 32
         s_load_dwordx2 s[12:13], s[0:1], 40
         s_load_dwordx2 s[20:21], s[0:1], 48
         s_load_dwordx2 s[24:25], s[0:1], 56""")
    a("""s_mov_b32 s10, 1605632
         s_mov_b32 s14, 1605632
         s_mov_b32 s22, 1605632
         s_mov_b32 s23, 0x00020000
         s_mov_b32 s26, 1835008
         s_mov_b32 s27, 0x00020000""")
    R = RegAlloc(start=3, limit=256)
    t0 = R.get(); t1 = R.get(); t2 = R.get()
    vx = [R.get(), R.get()]; vw = R.get(); vd = R.get()
    xa = [[R.get(), R.get()] for _ in range(2)]
    wa = [[R.get(), R.get()] for _ in range(2)]
    da = [R.get() for _ in range(4)]
    big = R.get(144, 2)
    acc = [[[big + 32 * mat + 16 * F + 4 * nt for nt in range(4)] for F in range(2)] for mat in range(2)]
    wf = [[big + 64 + 16 * b + 4 * i for i in range(4)] for b in range(2)]
    xf = [[big + 96 + 16 * b + 4 * i for i in range(4)] for b in range(2)]
    cs = [big + 128, big + 132]; ones = big + 136; stv = big + 140
    wd = [R.get(16, 2) for _ in range(5)]
    sp = R.get(8, 2)
    a("""s_and_b32 s33, s2, 7
         s_lshr_b32 s47, s2, 3
         s_sub_u32 s47, s47, 4
         s_mul_i32 s34, s47, 37
         s_lshr_b32 s34, s34, 8
         s_mul_i32 s35, s34, 7
         s_sub_u32 s35, s47, s35
         s_and_b32 s36, s33, 4
         s_add_u32 s36, s36, s34
         s_and_b32 s37, s33, 3
         s_mul_i32 s37, s37, 7
         s_add_u32 s37, s37, s35
         s_and_b32 s38, s3, 3
         s_lshr_b32 s39, s3, 2""")
    a(f"""v_lshrrev_b32 {v(t0)}, 3, v1
          v_and_b32 {v(t1)}, 7, v1
          v_lshrrev_b32 {v(t2)}, 4, v1
          v_xor_b32 {v(vx[1])}, {v(t1)}, {v(t2)}
          v_lshlrev_b32 {v(vx[1])}, 4, {v(vx[1])}
          v_mul_u32_u24 {v(vx[0])}, 28672, {v(t0)}
          v_add_u32 {v(vx[0])}, {v(vx[0])}, {v(vx[1])}
          v_xor_b32 {v(vx[1])}, 64, {v(vx[0])}""")
    a(f"""s_lshl_b32 s48, s36, 2
          s_add_u32 s48, s48, s38
          s_mul_i32 s40, s48, 896
          s_mul_i32 s49, s39, {32*28672}
          s_add_u32 s40, s40, s49""")
    for i in range(1, 4): a(f"s_add_u32 s{40+i}, s40, {i*(8*28672-1024)}")
    a(f"""s_lshl_b32 s44, s38, 13
          s_lshl_b32 s49, s39, 12
          s_add_u32 s44, s44, s49""")
    def xdma(c):
        out = []
        for i in range(4):
            def f(i=i):
                a(f"s_add_u32 m0, s44, {X(c%3) - c*128}")
                a(f"buffer_load_dwordx4 {v(vx[i&1])}, s[4:7], s{40+i} offen offset:{i*1024 + c*128} lds", tag=('x', c))
            out.append(f)
        return out
    def wdma(c):
        out = []
        for mat in range(2):
            def f(mat=mat):
                a(f"s_add_u32 m0, s46, {W(c%3) + mat*1024}")
                a(f"s_add_u32 s49, s45, {c*64*3584}")
                a(f"buffer_load_dwordx4 {v(vw)}, s[{8+4*mat}:{11+4*mat}], s49 offen lds", tag=('x', c))
            out.append(f)
        return out
    a(f"""v_and_b32 {v(vw)}, 1, {v(t2)}
          s_and_b32 s49, s3, 1
          s_lshl_b32 s49, s49, 1
          v_or_b32 {v(vw)}, s49, {v(vw)}
          v_lshlrev_b32 {v(vw)}, 1, {v(vw)}
          v_xor_b32 {v(vw)}, {v(vw)}, {v(t1)}
          v_lshlrev_b32 {v(vw)}, 4, {v(vw)}
          v_mul_u32_u24 {v(vd)}, 3584, {v(t0)}
          v_add_u32 {v(vw)}, {v(vw)}, {v(vd)}
          s_mul_i32 s45, s3, {8*3584}
          s_lshl_b32 s49, s37, 7
          s_add_u32 s45, s45, s49
          s_lshl_b32 s46, s3, 11""")
    a.wait_smem()
    st()
    for c in range(3):
        for f in xdma(c) + wdma(c): f()
    a(f"""v_lshlrev_b32 {v(vd)}, 1, {v(t2)}
          v_xor_b32 {v(vd)}, {v(vd)}, {v(t1)}
          v_lshlrev_b32 {v(vd)}, 4, {v(vd)}
          v_mul_u32_u24 {v(t0)}, 896, {v(t0)}
          v_add_u32 {v(vd)}, {v(vd)}, {v(t0)}""")
    a(f"""s_lshl_b32 s50, s33, 2
          s_add_u32 s50, s50, s34
          s_mul_i32 s51, s38, {448*896}
          s_mul_i32 s49, s39, {16*896}
          s_add_u32 s51, s51, s49
          s_lshl_b32 s49, s35, 7
          s_add_u32 s51, s51, s49
          s_add_u32 s52, s51, {8*896-1024}
          s_xor_b32 s49, s39, s50
          s_and_b32 s49, s49, 1
          s_lshl_b32 s49, s49, 11
          s_lshl_b32 s53, s38, 12
          s_add_u32 s53, s53, s49""")
    def ddma(u):
        out = []
        for i in range(2):
            def f(i=i):
                a(f"s_add_u32 m0, s53, {USLOT[u]}")
                a(f"s_add_u32 s49, s{51+i}, {u*28672}")
                a(f"buffer_load_dwordx4 {v(vd)}, s[20:23], s49 offen offset:{i*1024} lds", tag=('d', u))
            out.append(f)
        return out
    a(f"""v_and_b32 {v(t0)}, 15, v1
          v_bfe_u32 {v(t1)}, v1, 1, 3
          v_xor_b32 {v(t1)}, {v(t1)}, {v(t2)}
          s_and_b32 s49, s38, 2
          s_lshl_b32 s49, s49, 1
          v_xor_b32 {v(t1)}, s49, {v(t1)}
          v_lshlrev_b32 {v(t1)}, 4, {v(t1)}
          v_lshl_add_u32 {v(t1)}, {v(t0)}, 7, {v(t1)}
          s_lshl_b32 s49, s38, 13
          s_add_u32 s49, s49, {XB}
          v_add_u32 {v(xa[0][0])}, s49, {v(t1)}
          v_xor_b32 {v(xa[1][0])}, 64, {v(xa[0][0])}
          v_add_u32 {v(xa[0][1])}, 0x10000, {v(xa[0][0])}
          v_add_u32 {v(xa[1][1])}, 0x10000, {v(xa[1][0])}""")
    a(f"""v_bfe_u32 {v(t0)}, v1, 3, 2
          s_lshl_b32 s49, s39, 1
          s_and_b32 s54, s38, 1
          s_or_b32 s49, s49, s54
          v_xor_b32 {v(t0)}, s49, {v(t0)}
          v_lshlrev_b32 {v(t0)}, 5, {v(t0)}
          v_bfe_u32 {v(t1)}, v1, 2, 2
          v_lshl_add_u32 {v(t0)}, {v(t1)}, 7, {v(t0)}
          v_and_b32 {v(t1)}, 3, v1
          v_lshl_add_u32 {v(t0)}, {v(t1)}, 3, {v(t0)}
          v_lshl_add_u32 {v(t0)}, {v(t2)}, 11, {v(t0)}
          s_and_b32 s49, s38, 2
          s_lshl_b32 s49, s49, 12
          s_add_u32 s49, s49, {WB}
          v_add_u32 {v(wa[0][0])}, s49, {v(t0)}
          v_xor_b32 {v(wa[0][1])}, 32, {v(wa[0][0])}
          v_xor_b32 {v(wa[1][0])}, 0x2000, {v(wa[0][0])}
          v_xor_b32 {v(wa[1][1])}, 0x2000, {v(wa[0][1])}""")
    a(f"""v_bfe_u32 {v(t0)}, v1, 3, 2
          s_and_b32 s49, s38, 2
          v_xor_b32 {v(t0)}, s49, {v(t0)}
          v_lshlrev_b32 {v(t0)}, 5, {v(t0)}
          v_lshl_add_u32 {v(t0)}, {v(t1)}, 3, {v(t0)}
          v_lshrrev_b32 {v(t1)}, 2, v1
          v_lshl_add_u32 {v(t0)}, {v(t1)}, 7, {v(t0)}
          s_lshl_b32 s49, s38, 12
          s_add_u32 s49, s49, {USLOT[0]}
          v_add_u32 {v(da[0])}, s49, {v(t0)}""")
    for i in range(1, 4): a(f"v_xor_b32 {v(da[i])}, {32*i}, {v(da[0])}")
    for i in range(4): a(f"v_mov_b32 {v(ones+i)}, 0x3f803f80")
    dbase = [USLOT[0]]
    def dreads(u):
        out = []
        off = USLOT[u] - dbase[0]
        if off < 0 or off > 49152:
            for i in range(4): out.append(f"v_add_u32 {v(da[i])}, {off & 0xffffffff:#x}, {v(da[i])}")
            dbase[0] = USLOT[u]; off = 0
        for i in range(4):
            for h in range(2):
                out.append(f"ds_read_b64_tr_b16 {v(wd[u%5]+4*i+2*h,2)}, {v(da[i])} offset:{off + h*2048}")
        return out
    tch = sp; dbg = sp + 1; pv = sp + 2; sta = sp + 3
    a(f"""v_min_u32 {v(tch)}, 55, v1
          v_lshlrev_b32 {v(tch)}, 7, {v(tch)}
          s_mul_i32 s55, s47, {448*128}
          s_mul_i32 s49, s3, {56*128}
          s_add_u32 s55, s55, s49
          v_and_b32 {v(dbg)}, 31, v1
          v_lshlrev_b32 {v(dbg)}, 2, {v(dbg)}
          v_and_b32 {v(sta)}, 15, v1
          v_lshlrev_b32 {v(sta)}, 4, {v(sta)}
          s_lshl_b32 s56, s48, 8
          s_add_u32 s56, s56, {OFF_ST}""")
    def wreads(S):
        c, e = divmod(S, 2)
        return [f"ds_read_b64_tr_b16 {v(wf[S&1][2*mat+F]+2*u,2)}, {v(wa[e][F])} offset:{(c%3)*16384 + mat*1024 + u*512}"
                for F in range(2) for mat in range(2) for u in range(2)]
    def xreads(S):
        c, e = divmod(S, 2); s = c % 3
        return [f"ds_read_b128 {v(xf[S&1][nt],4)}, {v(xa[e][s>>1])} offset:{(s&1)*32768 + nt*2048}" for nt in range(4)]
    def reads(S):
        w = wreads(S); x = xreads(S)
        return [x[0]] + w[0:4] + [x[1]] + w[4:8] + [x[2], x[3]]
    a.wait_tag(('x', 0))
    a("s_barrier")
    st()
    for x in reads(0): a(x)
    for S in range(14):
        c, e = divmod(S, 2)
        mains = []
        for nt in range(4):
            for F in range(2):
                for mat in range(2):
                    mains.append(m16(acc[mat][F][nt], wf[S & 1][2 * mat + F], xf[S & 1][nt], '0' if S == 0 else None))
        if e == 0:
            for mat in range(2):
                mains.insert(2 + mat, m16(cs[mat], wf[S & 1][2 * mat], ones, '0' if S == 0 else None))
        pre = []; rd = []; dm = []; ex = []
        if e == 1:
            def sync(c=c):
                if c < 6: a.wait_tag(('x', c + 1))
                if c == 5: a.wait_tag(('d', 2))
                if c == 6: a.wait_tag(('d', 4))
                a.wait(lg=0)
                a("s_barrier")
            pre = [sync]
            if c + 3 <= 6: dm = xdma(c + 3) + wdma(c + 3)
            if c == 4: dm = ddma(0) + ddma(1) + ddma(2)
            if c == 5: dm = ddma(3) + ddma(4) + ddma(5)
            if c == 6: dm = ddma(6) + ddma(7) + ddma(8)
        if S < 13: rd = reads(S + 1)
        if S == 2: dm = [f"buffer_load_dword {v(pv)}, {v(tch)}, s[20:23], s55 offen"]
        if S == 8: dm = [f"buffer_load_dword {v(pv)}, {v(dbg)}, s[28:31], 0 offen sc1"]
        if S == 10:
            def chk():
                spin(a, pv, dbg, 's[28:31]', '0', '-1', first=False)
                a(f"buffer_load_dwordx4 {v(stv,4)}, {v(sta)}, s[16:19], s56 offen sc1")
            dm = [chk]
        if S == 11: ex = dreads(0) + dreads(1)[:4]
        if S == 12:
            ex = dreads(1)[4:] + dreads(2)
            ex += [f"s_lshl_b32 s49, s3, 11", f"v_add_u32 {v(t0)}, s49, v2",
                   f"ds_write_b128 {v(t0)}, {v(cs[0],4)}", f"ds_write_b128 {v(t0)}, {v(cs[1],4)} offset:1024"]
        if S == 13:
            r0 = wf[0][0]
            ex = [f"s_and_b32 s49, s3, 5", f"s_lshl_b32 s49, s49, 11", f"v_add_u32 {v(t0)}, s49, v2", f"v_xor_b32 {v(t1)}, 0x800, {v(t0)}"]
            for F in range(2):
                for mat in range(2):
                    for hp in range(2):
                        dst = (wf[0][0] if hp == 0 else xf[0][0]) + 8 * mat + 4 * F
                        ex.append(f"ds_read_b128 {v(dst,4)}, {v(t1 if F else t0)} offset:{hp*4096 + mat*1024}")
            ex += dreads(3) + dreads(4)
        fills = pre + merge(*[l for l in (rd, dm) if l]) + ex if (rd or dm) else pre + ex
        weave(a, mains, fills)
    st()
    cv = wf[0][0]
    nm = wf[1][0]; c1 = nm + 4; d2 = nm + 8
    for i in range(4):
        a(f"v_lshlrev_b32 {v(d2+i)}, 16, {v(stv+i)}")
        a(f"v_and_b32 {v(nm+i)}, 0xffff0000, {v(stv+i)}")
        a(f"v_rcp_f32 {v(c1+i)}, {v(d2+i)}")
    for i in range(16): a(f"v_add_f32 {v(cv+i)}, {v(cv+i)}, {v(xf[0][0]+i)}")
    for i in range(4):
        a(f"v_mul_f32 {v(d2+i)}, {v(d2+i)}, {v(d2+i)}")
        a(f"v_mul_f32 {v(c1+i)}, {lit(-math.log2(math.e))}, {v(c1+i)}")
    a(f"""s_mul_i32 s57, s48, 56
          s_lshl_b32 s49, s37, 1
          s_add_u32 s57, s57, s49
          s_add_u32 s57, s57, s39
          s_lshl_b32 s57, s57, 12""")
    late = ddma(9) + ddma(10) + ddma(11)
    for nt in range(4):
        e = xf[0][0] + 8 * (nt & 1); hp = xf[1][nt]
        idx = [(F, r) for F in range(2) for r in range(4)]
        G = lambda F, r: acc[0][F][nt] + r
        U = lambda F, r: acc[1][F][nt] + r
        for F, r in idx: a(f"v_fmac_f32 {v(G(F,r))}, {v(cv+4*F+r)}, {v(nm+nt)}")
        for F, r in idx: a(f"v_mul_f32 {v(e+4*F+r)}, {v(c1+nt)}, {v(G(F,r))}")
        if nt < 3: late[2 * nt]()
        for F, r in idx:
            a(f"v_exp_f32 {v(e+4*F+r)}, {v(e+4*F+r)}")
            a(f"v_fmac_f32 {v(U(F,r))}, {v(cv+8+4*F+r)}, {v(nm+nt)}")
        for F, r in idx: a(f"v_fma_f32 {v(e+4*F+r)}, {v(e+4*F+r)}, {v(d2+nt)}, {v(d2+nt)}")
        if nt < 3: late[2 * nt + 1]()
        for F, r in idx:
            a(f"v_rcp_f32 {v(e+4*F+r)}, {v(e+4*F+r)}")
            a(f"v_mul_f32 {v(U(F,r))}, {v(U(F,r))}, {v(G(F,r))}")
        for F, r in idx: a(f"v_mul_f32 {v(U(F,r))}, {v(U(F,r))}, {v(e+4*F+r)}")
        for i in range(4): a(f"v_cvt_pk_bf16_f32 {v(hp+i)}, {v(U(i>>1,2*(i&1)))}, {v(U(i>>1,2*(i&1)+1))}")
        a(f"buffer_store_dwordx4 {v(hp,4)}, v2, s[16:19], s57 offen offset:{nt*1024} sc1")
    st()
    T2 = sp
    vh = vx; pa = vw; pv = xa[0][0]; vo = xa[0][1]; v2a = xa[1][0]; one = xa[1][1]
    xv = wa[0][0]
    assert xv % 2 == 0 and wa[1][1] == xv + 3
    tmp = acc[0][0][0]
    a(f"""s_and_b32 s54, s38, 1
          s_lshl_b32 s58, s39, 1
          s_add_u32 s58, s58, s54
          s_lshl_b32 s49, s54, 10
          v_add_u32 {v(vh[0])}, s49, v2
          v_xor_b32 {v(vh[1])}, 0x400, {v(vh[0])}
          s_mul_i32 s59, s50, 56
          s_mul_i32 s49, s38, 14
          s_add_u32 s59, s59, s49
          s_lshl_b32 s59, s59, 12
          s_lshl_b32 s49, s39, 11
          s_add_u32 s59, s59, s49
          s_lshl_b32 s60, s36, 2
          s_and_b32 s49, s33, 3
          s_add_u32 s60, s60, s49
          s_lshl_b32 s60, s60, 4
          s_add_u32 s60, s60, s35
          s_lshl_b32 s60, s60, 7
          s_add_u32 s60, s60, {OFF_FL + 9*128}
          s_lshl_b32 s61, s33, 2
          s_add_u32 s61, s61, s38
          s_lshl_b32 s61, s61, 11
          s_add_u32 s61, s61, {OFF_FL + 9*128}
          s_lshl_b32 s62, s3, 13
          s_lshl_b32 s49, s33, 7
          s_add_u32 s62, s62, s49
          s_add_u32 s62, s62, {OFF_FL + 128}
          s_lshl_b32 s63, s58, 9
          s_add_u32 s63, s63, s50
          s_mul_i32 s63, s63, 896
          s_lshl_b32 s49, s35, 7
          s_add_u32 s63, s63, s49
          s_and_b32 s49, s38, 2
          s_lshl_b32 s49, s49, 5
          s_add_u32 s63, s63, s49
          v_lshlrev_b32 {v(pa)}, 7, v1
          v_mov_b32 {v(one)}, 1
          v_and_b32 {v(t0)}, 15, v1
          v_mul_u32_u24 {v(vo)}, 28672, {v(t0)}
          v_lshl_add_u32 {v(vo)}, {v(t2)}, 3, {v(vo)}""")
    a(f"""s_lshl_b32 s49, s58, 4
          v_add_u32 {v(t0)}, s49, {v(t0)}
          v_cvt_f32_u32 {v(t0)}, {v(t0)}
          v_mul_f32 {v(t0)}, {lit(1/64)}, {v(t0)}
          v_cvt_f32_u32 {v(t1)}, {v(t2)}
          v_mul_f32 {v(t1)}, 4.0, {v(t1)}
          v_mul_f32 {v(tmp)}, {v(t1)}, {v(t0)}""")
    for k in range(1, 8): a(f"v_fmamk_f32 {v(tmp+k)}, {v(t0)}, {lit(float(16*(k>>2)+(k&3)))}, {v(tmp)}")
    for k in range(8): a(f"v_cos_f32 {v(tmp+8+k)}, {v(tmp+k)}")
    for k in range(8): a(f"v_sin_f32 {v(tmp+k)}, {v(tmp+k)}")
    a(f"""v_lshlrev_b32 {v(t1)}, 31, v1
          v_or_b32 {v(t1)}, 1.0, {v(t1)}
          v_cmp_gt_u32 vcc, 16, v1
          v_cndmask_b32 {v(tmp)}, {v(tmp)}, {v(t1)}, vcc""")
    for k in range(8): a(f"v_cvt_pk_bf16_f32 {v(T2+k)}, {v(tmp+8+k)}, {v(tmp+k)}")
    a(f"""v_bfe_u32 {v(t0)}, v1, 2, 2
          s_and_b32 s49, s3, 1
          v_xor_b32 {v(t0)}, s49, {v(t0)}
          s_lshl_b32 s49, s35, 2
          v_add_u32 {v(t0)}, s49, {v(t0)}
          v_subrev_u32 {v(t1)}, 14, {v(t0)}
          v_min_u32 {v(t0)}, {v(t0)}, {v(t1)}
          v_lshlrev_b32 {v(t0)}, 6, {v(t0)}
          v_sub_u32 {v(t1)}, 1344, {v(t0)}
          v_cmp_gt_u32 vcc, 448, {v(t0)}
          v_cndmask_b32 {v(t0)}, {v(t1)}, {v(t0)}, vcc
          v_lshl_add_u32 {v(t0)}, {v(t2)}, 10, {v(t0)}
          v_and_b32 {v(t1)}, 3, v1
          v_lshl_add_u32 {v(v2a)}, {v(t1)}, 4, {v(t0)}""")
    a.wait(vm=0, lg=0)
    a("s_barrier")
    wave0(a, ["s_mov_b64 exec, 1", f"buffer_store_dword {v(one)}, off, s[16:19], s60 sc1", "s_mov_b64 exec, -1"])
    st()
    for f in ddma(12) + ddma(13): f()
    spin(a, pv, pa, 's[16:19]', 's61', '0x7f')
    st()
    hf = [[big + 8 * s + 4 * N for N in range(2)] for s in range(14)]
    ab = [[big + 112 + 16 * N + 4 * i for i in range(4)] for N in range(2)]
    for s in range(14):
        a(f"s_add_u32 s49, s59, {s*4096}")
        for N in range(2):
            a(f"buffer_load_dwordx4 {v(hf[s][N],4)}, {v(vh[N])}, s[16:19], s49 offen sc1")
    for cl in range(2):
        a(f"buffer_load_dwordx2 {v(xv+2*cl,2)}, {v(vo)}, s[4:7], s63 offen offset:{cl*32}")
    a(f"v_lshlrev_b32 {v(pa)}, 11, v1")
    for s in range(14):
        mains = [m16(ab[N][i], wd[s % 5] + 4 * i, hf[s][N], '0' if s == 0 else None) for N in range(2) for i in range(4)]
        for m in mains: a(m)
        if s == 0: st()
        if s == 7:
            a.wait(lg=0)
            a("s_barrier")
        if s + 5 < 14:
            for x in dreads(s + 5): a(x)
    st()
    for k in range(1, 4):
        C, N = k >> 1, k & 1
        a(f"s_xor_b32 s49, s3, {k}")
        a(f"s_mul_i32 s49, s49, 6144")
        a(f"v_add_u32 {v(t0)}, s49, v2")
        for cl in range(2):
            a(f"ds_write_b128 {v(t0)}, {v(ab[N][2*C+cl],4)} offset:{XB + (k-1)*2048 + cl*1024}")
    a(f"s_mul_i32 s49, s3, 6144")
    a(f"v_add_u32 {v(t0)}, s49, v2")
    va = [da[0], da[1]]
    for cl in range(2):
        a(f"""s_and_b32 s49, s38, 2
              s_add_u32 s49, s49, {cl}
              s_lshl_b32 s54, s35, 2
              s_add_u32 s54, s54, s49
              s_cmp_ge_u32 s54, 14
              s_cselect_b32 s64, 14, 0
              s_cselect_b32 s65, 0x80008000, 0
              s_sub_u32 s54, s54, s64
              s_cmp_ge_u32 s54, 7
              s_cselect_b32 s64, 15, 0
              s_cselect_b32 s54, 0x80008000, 0
              s_xor_b32 s65, s65, s54
              v_and_b32 {v(t1)}, 1, {v(t2)}
              v_xor_b32 {v(t1)}, s49, {v(t1)}
              v_lshlrev_b32 {v(t1)}, 6, {v(t1)}
              v_lshl_add_u32 {v(t1)}, {v(t2)}, 11, {v(t1)}
              v_and_b32 {v(va[cl])}, 15, v1
              v_xor_b32 {v(va[cl])}, s64, {v(va[cl])}
              v_lshl_add_u32 {v(va[cl])}, {v(va[cl])}, 2, {v(t1)}""")
        for k in range(8): a(f"v_xor_b32 {v(wd[0]+8*cl+k)}, s65, {v(T2+k)}")
    a.wait(lg=0)
    a("s_barrier")
    pr = big
    for k in range(3):
        for cl in range(2):
            a(f"ds_read_b128 {v(pr+8*k+4*cl,4)}, {v(t0)} offset:{XB + k*2048 + cl*1024}")
    y = ab[0][0]; e = big + 32; xs = big + 40
    for i in range(8): a(f"v_add_f32 {v(y+i)}, {v(y+i)}, {v(pr+i)}")
    for i in range(8): a(f"v_add_f32 {v(pr+8+i)}, {v(pr+8+i)}, {v(pr+16+i)}")
    for i in range(8): a(f"v_add_f32 {v(y+i)}, {v(y+i)}, {v(pr+8+i)}")
    for i in range(8): a(f"v_mul_f32 {v(e+i)}, {lit(-math.log2(math.e))}, {v(y+i)}")
    for i in range(8): a(f"v_exp_f32 {v(e+i)}, {v(e+i)}")
    a(f"v_mov_b32 {v(t1)}, {lit(2048*448/2)}")
    for i in range(8): a(f"v_fma_f32 {v(e+i)}, {v(e+i)}, {v(t1)}, {v(t1)}")
    for i in range(8): a(f"v_rcp_f32 {v(e+i)}, {v(e+i)}")
    for i in range(4):
        a(f"v_lshlrev_b32 {v(xs+2*i)}, 16, {v(xv+i)}")
        a(f"v_and_b32 {v(xs+2*i+1)}, 0xffff0000, {v(xv+i)}")
    for i in range(8): a(f"v_mul_f32 {v(y+i)}, {v(y+i)}, {v(e+i)}")
    st()
    a(f"""s_lshl_b32 s54, s50, 16
          s_lshl_b32 s49, s3, 13
          s_add_u32 s54, s54, s49
          s_add_u32 s54, s54, {OFF_V2}
          s_add_u32 s64, s54, 3072
          s_lshl_b32 m0, s3, 11""")
    spin(a, pv, pa, 's[16:19]', 's62', '0xf')
    st()
    a(f"buffer_load_dwordx4 {v(v2a)}, s[16:19], s54 offen sc1 lds")
    a(f"buffer_load_dwordx4 {v(v2a)}, s[16:19], s64 offen offset:1024 sc1 lds")
    a.wait(vm=0)
    a("s_barrier")
    st()
    vf = big + 48; so = big + 80
    n = 0
    for cl in range(2):
        for par in range(2):
            for kk in range(2):
                for hh in range(2):
                    o = (16 * kk + 2 * hh) * 2 + par
                    a(f"ds_read2st64_b32 {v(vf+4*n+2*hh,2)}, {v(va[cl])} offset0:{o} offset1:{o+2}")
                n += 1
    n = 0
    for cl in range(2):
        for par in range(2):
            for kk in range(2):
                b = (T2 if par == 0 else wd[0] + 8 * cl) + 4 * kk
                a(m16(so + 4 * cl, vf + 4 * n, b, '0' if (par == 0 and kk == 0) else None)); n += 1
    for cl in range(2):
        for i in range(4): a(f"v_fmac_f32 {v(xs+4*cl+i)}, {v(so+4*cl+i)}, {v(y+4*cl+i)}")
        for i in range(2): a(f"v_cvt_pk_bf16_f32 {v(xv+2*cl+i)}, {v(xs+4*cl+2*i)}, {v(xs+4*cl+2*i+1)}")
        a(f"buffer_store_dwordx2 {v(xv+2*cl,2)}, {v(vo)}, s[24:27], s63 offen offset:{cl*32}")
    st.dump(t0)
    a("s_endpgm")
    return R.maxv

def spec(a, st):
    XS = 928; VS = 1032
    WB = 66560; TB = WB + 65536; SB = TB + 16384
    a("""s_load_dwordx2 s[8:9], s[0:1], 8
         s_load_dwordx2 s[12:13], s[0:1], 16
         s_mov_b32 s10, 921600
         s_mov_b32 s14, 921600""")
    R = RegAlloc(start=3, limit=256)
    t0 = R.get(); t1 = R.get(); t2 = R.get(); t3 = R.get(); t4 = R.get()
    mi = R.get(8, 2)
    IT = R.get(56, 2); FT = R.get(56, 2); AC = R.get(64, 2); AF = R.get(32, 2); TF = R.get(32, 2)
    a(f"""s_and_b32 s33, s3, 3
          s_lshr_b32 s34, s3, 2
          s_mul_i32 s35, s2, 896
          s_mul_i32 s49, s3, {8*28672}
          s_add_u32 s35, s35, s49
          s_mul_i32 s36, s3, {8*XS}
          s_lshl_b32 s37, s2, 11
          s_add_u32 s37, s37, {OFF_FL}
          v_lshlrev_b32 {v(t0)}, 7, v1
          v_mov_b32 {v(t1)}, 0""")
    a.wait_smem()
    st()
    a("s_mov_b32 exec_hi, 0x00ffffff")
    for i in range(8):
        a(f"s_add_u32 m0, s36, {i*XS}")
        a(f"s_add_u32 s49, s35, {i*28672}")
        a(f"buffer_load_dwordx4 v2, s[4:7], s49 offen lds", tag='x')
    a("s_mov_b32 exec_hi, -1")
    wave0(a, ["s_mov_b64 exec, 0xffff", f"buffer_store_dword {v(t1)}, {v(t0)}, s[16:19], s37 offen sc1", "s_mov_b64 exec, -1"])
    a(f"""s_lshl_b32 s38, s3, 8
          s_add_u32 s38, s38, s2
          s_mul_i32 s49, s34, 992
          s_cmp_eq_u32 s2, 0
          s_cselect_b32 s49, s49, 0
          s_sub_u32 s38, s38, s49
          s_sub_u32 s39, 2048, s38
          s_cmp_eq_u32 s38, 0
          s_cselect_b32 s40, 1024, s39
          v_and_b32 {v(t0)}, 31, v1
          v_lshlrev_b32 {v(t0)}, 4, {v(t0)}
          v_add_u32 {v(t0)}, 2, {v(t0)}
          v_cmp_gt_u32 vcc, 32, v1
          v_mov_b32 {v(t1)}, s38
          v_mov_b32 {v(t2)}, s39
          v_mov_b32 {v(t3)}, s40
          v_cndmask_b32 {v(t2)}, {v(t2)}, {v(t1)}, vcc
          v_cndmask_b32 {v(t3)}, {v(t3)}, {v(t1)}, vcc
          v_mov_b32 {v(t1)}, 450
          v_mad_u32_u24 {v(t2)}, {v(t2)}, {v(t1)}, {v(t0)}
          v_mad_u32_u24 {v(t3)}, {v(t3)}, {v(t1)}, {v(t0)}
          v_mov_b32 {v(t0)}, {(-28800) & 0xffffffff:#x}
          v_mov_b32 {v(t1)}, 28800
          v_cndmask_b32 {v(t0)}, {v(t0)}, {v(t1)}, vcc
          s_lshl_b32 s41, s3, 13""")
    for i in range(4):
        if i: a(f"v_add_u32 {v(t2)}, {v(t2)}, {v(t0)}")
        for mat in range(2):
            a(f"s_add_u32 m0, s41, {WB + i*2048 + mat*1024}")
            a(f"buffer_load_dwordx4 {v(t2 if i else t3)}, s[{8+4*mat}:{11+4*mat}], 0 offen lds", tag='w')
    a(f"""v_and_b32 {v(t0)}, 15, v1
          s_lshl_b32 s49, s33, 4
          v_add_u32 {v(t0)}, s49, {v(t0)}
          v_cmp_eq_u32 vcc, 1, {v(t0)}
          v_cndmask_b32 {v(t0)}, {v(t0)}, 64, vcc
          v_and_b32 {v(t1)}, 1, {v(t0)}
          v_cvt_f32_u32 {v(t1)}, {v(t1)}
          v_mul_f32 {v(t1)}, {lit(-0.25)}, {v(t1)}
          v_lshrrev_b32 {v(t0)}, 1, {v(t0)}
          v_cvt_f32_u32 {v(t0)}, {v(t0)}
          v_mul_f32 {v(t0)}, {lit(1/64)}, {v(t0)}
          v_lshrrev_b32 {v(t4)}, 4, v1
          v_lshlrev_b32 {v(t2)}, 2, {v(t4)}
          v_cvt_f32_u32 {v(t2)}, {v(t2)}
          v_fma_f32 {v(TF)}, {v(t2)}, {v(t0)}, {v(t1)}""")
    for k in range(1, 16): a(f"v_fmamk_f32 {v(TF+k)}, {v(t0)}, {lit(float(16*(k>>2)+(k&3)))}, {v(TF)}")
    for k in range(16): a(f"v_cos_f32 {v(TF+k)}, {v(TF+k)}")
    a(f"""v_lshrrev_b32 {v(t0)}, 2, v1
          v_mul_u32_u24 {v(t0)}, {XS}, {v(t0)}
          v_and_b32 {v(t1)}, 3, v1
          v_lshlrev_b32 {v(t1)}, 3, {v(t1)}
          v_add_u32 {v(t2)}, {v(t0)}, {v(t1)}
          v_sub_u32 {v(t3)}, {v(t0)}, {v(t1)}
          s_lshl_b32 s42, s34, 7
          s_lshl_b32 s49, s34, 3
          s_sub_u32 s43, 32, s49""")
    for t in range(4):
        if t: a("s_add_u32 s42, s42, s43")
        a(f"v_add_u32 {v(mi+t)}, s42, {v(t2)}")
        a(f"s_sub_u32 s49, 440, s42")
        a(f"v_add_u32 {v(mi+4+t)}, s49, {v(t3)}")
    tv = AC
    a(f"""s_lshr_b32 s44, s3, 1
          s_and_b32 s44, s44, 1
          s_and_b32 s45, s3, 1
          v_and_b32 {v(t0)}, 31, v1
          v_lshrrev_b32 {v(t1)}, 5, v1
          v_lshlrev_b32 {v(t1)}, 2, {v(t1)}
          s_lshl_b32 s49, s44, 4
          v_add_u32 {v(t1)}, s49, {v(t1)}
          s_cmp_eq_u32 s34, 0
          s_cselect_b64 vcc, -1, 0
          v_cndmask_b32 {v(t2)}, {v(t1)}, {v(t0)}, vcc
          v_cndmask_b32 {v(t3)}, {v(t0)}, {v(t1)}, vcc""")
    a(f"""v_cmp_le_u32 s[46:47], 16, {v(t2)}
          v_cmp_eq_u32 s[50:51], 0, {v(t2)}
          s_cmp_eq_u32 s2, 0
          s_cselect_b64 s[52:53], -1, 0
          s_and_b64 s[54:55], s[46:47], s[52:53]
          s_and_b64 s[50:51], s[50:51], s[52:53]
          s_cmp_eq_u32 s45, 1
          s_cselect_b64 s[50:51], s[50:51], 0
          s_and_b64 s[56:57], s[50:51], vcc
          v_lshlrev_b32 {v(t2)}, 6, {v(t2)}
          v_add_u32 {v(t2)}, s2, {v(t2)}
          v_subrev_u32 {v(t0)}, 992, {v(t2)}
          v_cndmask_b32 {v(t2)}, {v(t2)}, {v(t0)}, s[54:55]
          v_mov_b32 {v(t0)}, 1024
          v_cndmask_b32 {v(t2)}, {v(t2)}, {v(t0)}, s[56:57]
          v_cvt_f32_u32 {v(t2)}, {v(t2)}
          v_cvt_f32_u32 {v(t3)}, {v(t3)}
          v_mul_f32 {v(t2)}, {lit(1/2048)}, {v(t2)}
          v_mul_f32 {v(t0)}, {lit(1/32)}, {v(t3)}
          v_cndmask_b32 {v(t0)}, {v(t0)}, {v(t2)}, vcc
          s_cmp_eq_u32 s45, 1
          s_cselect_b32 s49, {lit(-0.25)}, 0
          v_mov_b32 {v(t1)}, s49
          v_cndmask_b32 {v(t1)}, {v(t1)}, 0, s[56:57]
          v_fma_f32 {v(tv)}, {v(t2)}, {v(t3)}, {v(t1)}""")
    for i in range(1, 8): a(f"v_fmamk_f32 {v(tv+i)}, {v(t0)}, {lit(float(8*(i>>2)+(i&3)))}, {v(tv)}")
    a(f"v_mul_f32 {v(t3)}, 0.5, {v(t3)}")
    a(f"v_cndmask_b32 {v(tv)}, {v(tv)}, {v(t3)}, s[50:51]")
    for i in range(8): a(f"v_cos_f32 {v(tv+i)}, {v(tv+i)}")
    for i in range(4): a(f"v_cvt_pk_bf16_f32 {v(tv+8+i)}, {v(tv+2*i)}, {v(tv+2*i+1)}")
    a(f"""s_andn2_b64 s[58:59], s[52:53], s[46:47]
          s_cmp_lg_u32 s2, 0
          s_cselect_b32 s49, s45, 0
          s_mul_i32 s49, s49, 0x80008000""")
    for i in range(4): a(f"v_xor_b32 {v(tv+12+i)}, s49, {v(tv+8+i)}")
    for i in range(4): a(f"v_cndmask_b32 {v(tv+12+i)}, {v(tv+12+i)}, 0, s[58:59]")
    for i in range(4): a(f"v_cndmask_b32 {v(tv+8+i)}, {v(tv+8+i)}, 0, s[54:55]")
    a(f"""s_lshl_b32 s60, s34, 3
          s_add_u32 s60, s60, s44
          s_lshl_b32 s60, s60, 10
          s_add_u32 s60, s60, {TB}
          s_mul_i32 s49, s45, 6144
          s_add_u32 s49, s49, s60
          v_add_u32 {v(t0)}, s49, v2
          s_cmp_eq_u32 s2, 0
          s_cselect_b32 s49, 0, 1
          s_xor_b32 s49, s49, s45
          s_lshl_b32 s49, s49, 11
          s_add_u32 s49, s49, s60
          v_add_u32 {v(t1)}, s49, v2""")
    a(f"ds_write_b128 {v(t0)}, {v(tv+8,4)}")
    a(f"ds_write_b128 {v(t1)}, {v(tv+12,4)} offset:2048")
    a(f"""v_and_b32 {v(t0)}, 31, v1
          s_lshl_b32 s49, s33, 6
          s_add_u32 s49, s49, 2
          s_sub_u32 s49, s49, s34
          v_lshl_add_u32 {v(t0)}, {v(t0)}, 1, s49
          v_cvt_f32_u32 {v(t0)}, {v(t0)}
          v_mul_f32 {v(t0)}, {lit(1/448)}, {v(t0)}
          v_lshrrev_b32 {v(t1)}, 5, v1
          v_cvt_f32_u32 {v(t1)}, {v(t1)}
          v_fma_f32 {v(t1)}, {v(t1)}, 2.0, 0.5
          v_mul_f32 {v(t1)}, {v(t1)}, {v(t0)}""")
    def tabgen(dst, mult, step, base, scr, post=None):
        for ks in range(7):
            an = scr + 16 * (ks & 1); cv = an + 8
            for i in range(8):
                k = mult(ks, i)
                if k == 0: a(f"v_mov_b32 {v(an+i)}, {v(base)}")
                else: a(f"v_fmamk_f32 {v(an+i)}, {v(step)}, {lit(float(k))}, {v(base)}")
            for i in range(8): a(f"v_cos_f32 {v(cv+i)}, {v(an+i)}")
            for i in range(8): a(f"v_sin_f32 {v(an+i)}, {v(an+i)}")
            if post: post(ks, an, cv)
            for i in range(4): a(f"v_cvt_pk_bf16_f32 {v(dst+8*ks+i)}, {v(cv+2*i)}, {v(cv+2*i+1)}")
            for i in range(4): a(f"v_cvt_pk_bf16_f32 {v(dst+8*ks+4+i)}, {v(an+2*i)}, {v(an+2*i+1)}")
    def f1mult(ks, i):
        u, t = i >> 2, i & 3
        P = 4 * t + ks if ks < 4 else 16 + 3 * t + (ks - 4)
        return 4 * P + u
    tabgen(FT, f1mult, t0, t1, AC + 16)
    a(f"""v_lshrrev_b32 {v(t0)}, 3, v1
          v_mul_u32_u24 {v(t1)}, {XS}, {v(t0)}
          v_and_b32 {v(t2)}, 7, v1
          v_lshl_add_u32 {v(t1)}, {v(t2)}, 4, {v(t1)}
          v_add_u32 {v(t1)}, s36, {v(t1)}""")
    s1 = [AF, AF + 1]; s2 = [AF + 2, AF + 3]
    for r in s1 + s2: a(f"v_mov_b32 {v(r)}, 0")
    a(f"""s_lshl_b32 s49, s3, 5
          s_add_u32 s49, s49, {SB}
          v_lshl_add_u32 {v(t2)}, {v(t0)}, 2, s49
          s_lshl_b32 s49, s34, 6
          s_lshl_b32 s46, s45, 5
          s_add_u32 s49, s49, s46
          s_lshl_b32 s46, s44, 3
          s_add_u32 s49, s49, s46
          s_add_u32 s49, s49, {SB + 256}
          v_lshrrev_b32 {v(t3)}, 5, v1
          v_lshl_add_u32 {v(t3)}, {v(t3)}, 4, s49
          v_and_b32 {v(AF+4)}, 3, {v(t0)}
          v_lshl_add_u32 {v(t3)}, {v(AF+4)}, 1, {v(t3)}
          v_lshlrev_b32 {v(AF+4)}, 4, {v(t0)}
          s_lshl_b32 s46, s2, 8
          s_lshl_b32 s49, s45, 7
          s_add_u32 s46, s46, s49
          s_lshr_b32 s49, s3, 1
          s_lshl_b32 s49, s49, 2
          s_add_u32 s46, s46, s49
          s_add_u32 s46, s46, {OFF_ST}
          v_lshlrev_b32 {v(t4)}, 4, {v(t4)}
          v_add_u32 {v(t4)}, {SB}, {v(t4)}""")
    st()
    a.wait_tag('x')
    st()
    for i in range(7): a(f"ds_read_b128 {v(AC+4*i,4)}, {v(t1)} offset:{i*128}")
    for i in range(28):
        a(f"v_dot2c_f32_bf16 {v(s1[i&1])}, 0x3f803f80, {v(AC+i)}")
        a(f"v_dot2c_f32_bf16 {v(s2[i&1])}, {v(AC+i)}, {v(AC+i)}")
    mean = s1[0]; var = s2[0]
    a(f"v_add_f32 {v(mean)}, {v(s1[0])}, {v(s1[1])}")
    a(f"v_add_f32 {v(var)}, {v(s2[0])}, {v(s2[1])}")
    for m in ("quad_perm:[1,0,3,2]", "quad_perm:[2,3,0,1]", "row_half_mirror"):
        for r in (mean, var): a(f"v_add_f32_dpp {v(r)}, {v(r)}, {v(r)} {m} row_mask:0xf bank_mask:0xf")
    nm = s1[1]; rs = s2[1]
    a(f"""v_mul_f32 {v(mean)}, {lit(1/448)}, {v(mean)}
          v_mul_f32 {v(var)}, {lit(1/448)}, {v(var)}
          v_fma_f32 {v(var)}, -{v(mean)}, {v(mean)}, {v(var)}
          v_max_f32 {v(var)}, 0, {v(var)}
          v_cvt_pk_bf16_f32 {v(var)}, {v(var)}, {v(var)}
          v_lshlrev_b32 {v(var)}, 16, {v(var)}
          v_add_f32 {v(var)}, {lit(1e-5)}, {v(var)}
          v_cvt_pk_bf16_f32 {v(var)}, {v(var)}, {v(var)}
          v_lshlrev_b32 {v(var)}, 16, {v(var)}
          v_sqrt_f32 {v(var)}, {v(var)}
          v_cvt_pk_bf16_f32 {v(nm)}, {v(var)}, -{v(mean)}
          v_lshlrev_b32 {v(var)}, 16, {v(nm)}
          v_rcp_f32 {v(rs)}, {v(var)}""")
    a("s_mov_b32 exec_lo, 0x01010101\ns_mov_b32 exec_hi, 0x01010101")
    a(f"ds_write_b16_d16_hi {v(t3)}, {v(nm)}")
    a(f"ds_write_b32 {v(t2)}, {v(rs)}")
    a(f"buffer_store_dword {v(nm)}, {v(AF+4)}, s[16:19], s46 offen sc1", tag='st')
    a("s_mov_b64 exec, -1")
    a.wait(lg=0)
    a("s_barrier")
    st()
    rsv = TF + 16; nmf = AF; Tp = AF + 8; cin = AF + 16
    for k in range(4): a(f"ds_read_b128 {v(rsv+4*k,4)}, {v(t4)} offset:{64*k}")
    for ks in range(2): a(f"ds_read_b128 {v(nmf+4*ks,4)}, {v(t4)} offset:{256 + 64*ks}")
    seq = [(t, arr, ks) for t in range(4) for arr in range(4) for ks in range(2)]
    def xr(n):
        t, arr, ks = seq[n]
        return [f"ds_read_b64_tr_b16 {v(IT+4*(n%14)+2*u,2)}, {v(mi+4*(arr>>1)+t)} offset:{(32*ks+16*u)*XS + 448*(arr&1)}" for u in range(2)]
    for n in range(4):
        for x in xr(n): a(x)
    for k in range(16): a(f"v_mul_f32 {v(TF+k)}, {v(TF+k)}, {v(rsv+k)}")
    for n in range(4, 10):
        for x in xr(n): a(x)
    for k in range(8): a(f"v_cvt_pk_bf16_f32 {v(Tp+k)}, {v(TF+2*k)}, {v(TF+2*k+1)}")
    a(m16(cin, Tp, nmf, '0')); a(m16(cin, Tp + 4, nmf + 4))
    for n in range(10, 14):
        for x in xr(n): a(x)
    A = lambda t, arr: AC + 16 * t + 4 * arr
    def fold(t):
        out = []
        d1 = TF + 8 * (t & 1); d2 = d1 + 4
        for r in range(4):
            out += [f"v_sub_f32 {v(d1+r)}, {v(A(t,0)+r)}, {v(A(t,1)+r)}",
                    f"v_add_f32 {v(A(t,0)+r)}, {v(A(t,0)+r)}, {v(A(t,1)+r)}"]
        for r in range(4):
            out += [f"v_sub_f32 {v(d2+r)}, {v(A(t,2)+r)}, {v(A(t,3)+r)}",
                    f"v_add_f32 {v(A(t,2)+r)}, {v(A(t,2)+r)}, {v(A(t,3)+r)}"]
        q = "quad_perm:[3,2,1,0] row_mask:0xf bank_mask:0xf"
        for r in range(4):
            out += [f"v_subrev_f32_dpp {v(A(t,1)+r)}, {v(A(t,2)+r)}, {v(A(t,0)+r)} {q}",
                    f"v_add_f32_dpp {v(A(t,0)+r)}, {v(A(t,2)+r)}, {v(A(t,0)+r)} {q}"]
        for r in range(4):
            out += [f"v_subrev_f32_dpp {v(A(t,2)+r)}, {v(d2+r)}, {v(d1+r)} {q}",
                    f"v_add_f32_dpp {v(A(t,3)+r)}, {v(d2+r)}, {v(d1+r)} {q}"]
        return out
    for t in range(4):
        mains = []; fills = []
        for n in range(8 * t, 8 * t + 8):
            _, arr, ks = seq[n]
            mains.append(m16(A(t, arr), Tp + 4 * ks, IT + 4 * (n % 14), v(cin, 4) if ks == 0 else None))
        fl = fold(t - 1) if t else []
        for i, m in enumerate(mains):
            a(m)
            n = 8 * t + i + 14
            if n < 32:
                for x in xr(n): a(x)
            if i >= 2:
                for x in fl[(i - 2) * 6:(i - 1) * 6]: a(x)
    a.wait_tag('st')
    a("s_barrier")
    a(f"v_mov_b32 {v(t0)}, 1")
    a(f"s_lshl_b32 s49, s2, 2")
    wave0(a, ["s_mov_b64 exec, 1", f"buffer_store_dword {v(t0)}, off, s[28:31], s49 sc1", "s_mov_b64 exec, -1"])
    a(f"""v_lshrrev_b32 {v(t1)}, 4, v1
          v_lshlrev_b32 {v(t1)}, 17, {v(t1)}
          v_and_b32 {v(t2)}, 15, v1
          v_lshl_add_u32 {v(t1)}, {v(t2)}, 4, {v(t1)}
          s_lshl_b32 s46, s33, 19
          s_lshl_b32 s49, s2, 11
          s_add_u32 s46, s46, s49
          s_lshl_b32 s49, s34, 10
          s_add_u32 s46, s46, s49
          s_add_u32 s46, s46, {OFF_V1}
          s_add_u32 s47, s46, 65536""")
    for x in fold(3): a(x)
    st()
    for r in range(4):
        for par in range(2):
            o = AF + 4 * (2 * r + par)
            for cs_ in range(2):
                for th in range(2):
                    a(f"v_cvt_pk_bf16_f32 {v(o+2*cs_+th)}, {v(A(2*th,2*par+cs_)+r)}, {v(A(2*th+1,2*par+cs_)+r)}")
            a(f"buffer_store_dwordx4 {v(o,4)}, {v(t1)}, s[16:19], s{46+(r>>1)} offen offset:{(r&1)*512 + par*256} sc1")
    st()
    a(f"""v_and_b32 {v(t2)}, 31, v1
          s_lshl_b32 s49, s33, 5
          v_add_u32 {v(t2)}, s49, {v(t2)}
          v_cvt_f32_u32 {v(t3)}, {v(t2)}
          v_add_f32 {v(t3)}, 0.5, {v(t3)}
          v_mul_f32 {v(t3)}, {lit(1/448)}, {v(t3)}
          v_lshrrev_b32 {v(t1)}, 5, v1
          s_sub_u32 s49, 2, s34
          v_lshl_add_u32 {v(t4)}, {v(t1)}, 3, s49
          v_cmp_eq_u32 vcc, 10, {v(t4)}
          v_cvt_f32_u32 {v(t4)}, {v(t4)}
          v_mul_f32 {v(t4)}, {v(t4)}, {v(t3)}
          v_cndmask_b32 {v(mi)}, 1.0, 0.5, vcc""")
    def half(ks, an, cv):
        if ks == 6: a(f"v_mul_f32 {v(an+7)}, {v(an+7)}, {v(mi)}")
    tabgen(IT, lambda ks, i: 32 * ks + 16 * (i >> 2) + 2 * (i & 3), t3, t4, AC, half)
    fa = mi + 1; wr = mi + 2; ga = mi + 3; gr = mi + 4; vo = mi + 5; tb = mi + 6; pv = mi + 7
    a(f"""v_and_b32 {v(t3)}, 31, v1
          v_mul_u32_u24 {v(fa)}, {VS}, {v(t3)}
          v_lshl_add_u32 {v(fa)}, {v(t1)}, 5, {v(fa)}
          s_lshl_b32 s49, s34, 8
          v_add_u32 {v(fa)}, s49, {v(fa)}
          v_lshlrev_b32 {v(vo)}, 2, {v(t2)}
          s_lshl_b32 s49, s34, 1
          s_sub_u32 s49, {WB + 2}, s49
          v_lshl_add_u32 {v(wr)}, {v(t1)}, 13, s49
          v_add_u32 {v(wr)}, {v(wr)}, {v(vo)}
          v_lshl_add_u32 {v(vo)}, {v(t1)}, 18, {v(vo)}
          s_lshl_b32 s49, s34, 15
          v_add_u32 {v(gr)}, s49, v2
          s_lshl_b32 s49, s33, 11
          v_add_u32 {v(ga)}, s49, {v(gr)}
          v_add_u32 {v(tb)}, {TB}, v2
          v_lshlrev_b32 {v(t3)}, 2, {v(t3)}
          v_lshlrev_b32 {v(t4)}, 11, v1
          s_lshl_b32 s50, s3, 13
          s_add_u32 s50, s50, {OFF_FL}
          s_lshl_b32 s51, s2, 16
          s_lshl_b32 s49, s3, 13
          s_add_u32 s51, s51, s49
          s_add_u32 s51, s51, {OFF_V1}
          s_mul_i32 s52, s3, {4*VS}
          s_lshl_b32 s53, s2, 11
          s_lshl_b32 s49, s34, 10
          s_add_u32 s53, s53, s49
          s_add_u32 s53, s53, {OFF_V2}""")
    for k in range(8): a(f"ds_read_b128 {v(TF+4*k,4)}, {v(tb)} offset:{k*1024}")
    st()
    a.wait(vm=0)
    a("s_barrier")
    wave0(a, ["s_mov_b64 exec, 1", f"buffer_store_dword {v(t0)}, off, s[16:19], s37 sc1", "s_mov_b64 exec, -1"])
    st()
    spin(a, pv, t3, 's[28:31]', '0', '0xffffffff')
    spin(a, pv, t4, 's[16:19]', 's50', '0xf')
    st()
    for hh in range(2):
        for i in range(4):
            a(f"s_add_u32 m0, s52, {(hh*32+i)*VS}")
            a(f"s_add_u32 s49, s51, {i*2048 + hh*1024}")
            a(f"buffer_load_dwordx4 v2, s[16:19], s49 offen sc1 lds", tag=('v', hh))
    def f1r(ks):
        hh, q = (0, ks) if ks < 4 else (1, ks - 4)
        return [f"ds_read_b64 {v(AF+16*(ks&1)+4*(2*d+c)+2*u,2)}, {v(fa)} offset:{hh*32*VS + c*512 + (4*q+u)*16 + 8*d}"
                for d in range(2) for c in range(2) for u in range(2)]
    a.wait_tag(('v', 0))
    a("s_barrier")
    st()
    for x in f1r(0): a(x)
    for ks in range(7):
        mains = [m32(AC + 16 * i, AF + 16 * (ks & 1) + 4 * i, FT + 8 * ks + 4 * (i >> 1), '0' if ks == 0 else None) for i in range(4)]
        fills = f1r(ks + 1) if ks < 6 else []
        if ks == 3:
            def sy():
                a.wait_tag(('v', 1)); a("s_barrier")
            fills = [sy] + fills
        weave(a, mains, fills, span=3)
    def wrd(r):
        return [f"ds_read_u16_d16_hi {v(FT+4*(r%14)+2*pm+mat)}, {v(wr)} offset:{(8*(r>>2)+(r&3))*2048 + mat*1024 + pm*512}"
                for pm in range(2) for mat in range(2)]
    BF = lambda i: AF + 8 * ((i + 2) & 3)
    Tf = lambda T, s: TF + 8 * T + 4 * s
    cvt = lambda i: [f"v_cvt_pk_bf16_f32 {v(BF(i)+k)}, {v(AC+16*i+2*k)}, {v(AC+16*i+2*k+1)}" for k in range(8)]
    for x in cvt(0) + cvt(1): a(x)
    def f2(i0):
        o0, o1 = AC + 16 * i0, AC + 16 * i0 + 16
        C, S = BF(i0), BF(i0 + 1)
        return [m32(o0, Tf(0, 0), C, '0'), m32(o1, Tf(3, 0), C, '0'), m32(o0, Tf(0, 1), C + 4), m32(o1, Tf(3, 1), C + 4),
                m32(o0, Tf(1, 0), S), m32(o1, Tf(2, 0), S), m32(o0, Tf(1, 1), S + 4), m32(o1, Tf(2, 1), S + 4)]
    wl = [x for r in range(14) for x in wrd(r)]
    weave(a, f2(0), cvt(2) + cvt(3) + wl[:16])
    weave(a, f2(2), wl[16:])
    st()
    for k in range(8): a(f"ds_read_b128 {v(TF+4*k,4)}, {v(tb)} offset:{8192 + k*1024}")
    a("s_barrier")
    al, de, gm, be = AC, AC + 16, AC + 32, AC + 48
    for r in range(16):
        Pr, Pi, Mr, Mi = [FT + 4 * (r % 14) + k for k in range(4)]
        a1, b1 = (t1, t2) if r & 1 else (t3, t4)
        A_, D_, G_, B_ = al + r, de + r, gm + r, be + r
        if r == 0:
            for k, x in enumerate((A_, D_, G_, B_)): a(f"v_mov_b32 {v(AF+k)}, {v(x)}")
        a(f"""v_sub_f32 {v(a1)}, {v(A_)}, {v(B_)}
              v_add_f32 {v(b1)}, {v(G_)}, {v(D_)}
              v_add_f32 {v(A_)}, {v(A_)}, {v(B_)}
              v_sub_f32 {v(G_)}, {v(G_)}, {v(D_)}
              v_mul_f32 {v(B_)}, {v(a1)}, {v(Pr)}
              v_mul_f32 {v(D_)}, {v(a1)}, {v(Pi)}
              v_fmac_f32 {v(B_)}, {v(b1)}, {v(Pi)}
              v_fma_f32 {v(D_)}, -{v(b1)}, {v(Pr)}, {v(D_)}
              v_fma_f32 {v(a1)}, {v(A_)}, {v(Mr)}, {v(B_)}
              v_fma_f32 {v(b1)}, {v(A_)}, {v(Mi)}, {v(D_)}
              v_fma_f32 {v(A_)}, {v(G_)}, {v(Mi)}, {v(a1)}
              v_fma_f32 {v(G_)}, -{v(G_)}, {v(Mr)}, {v(b1)}
              v_fma_f32 {v(B_)}, {v(B_)}, 2.0, -{v(A_)}
              v_fma_f32 {v(D_)}, {v(D_)}, -2.0, {v(G_)}""")
        if r == 0:
            a("s_cmp_lg_u32 s2, 0")
            a("s_cbranch_scc1 NOFIX")
            a("s_mov_b32 exec_hi, 0")
            a(f"""v_mul_f32 {v(A_)}, {v(AF)}, {v(Pr)}
                  v_mul_f32 {v(G_)}, {v(AF)}, {v(Pi)}
                  v_mul_f32 {v(D_)}, {v(AF+1)}, {v(Mr)}
                  v_mul_f32 {v(B_)}, {v(AF+1)}, {v(Mi)}
                  v_fmac_f32 {v(A_)}, {v(AF+2)}, {v(Pi)}
                  v_fma_f32 {v(G_)}, -{v(AF+2)}, {v(Pr)}, {v(G_)}
                  v_fmac_f32 {v(D_)}, {v(AF+3)}, {v(Mi)}
                  v_fma_f32 {v(B_)}, -{v(AF+3)}, {v(Mr)}, {v(B_)}""")
            a("s_mov_b32 exec_hi, -1")
            a.raw("NOFIX:")
        if r < 2:
            for x in wrd(r + 14): a(x)
        if r & 1:
            for i in range(4): a(f"v_cvt_pk_bf16_f32 {v(AF+8*i+(r>>1))}, {v(AC+16*i+r-1)}, {v(AC+16*i+r)}")
    st()
    def i2(i0):
        o0, o1 = AC + 16 * i0, AC + 16 * i0 + 16
        S, D = AF + 8 * i0, AF + 8 * i0 + 8
        return [m32(o0, S, Tf(0, 0), '0'), m32(o0, S + 4, Tf(0, 1)), m32(o0, D, Tf(3, 0)), m32(o0, D + 4, Tf(3, 1)),
                m32(o1, S, Tf(1, 0), '0'), m32(o1, S + 4, Tf(1, 1)), m32(o1, D, Tf(2, 0)), m32(o1, D + 4, Tf(2, 1))]
    def gout(i):
        out = []
        for s_ in range(2):
            o = FT + 8 * i + 4 * s_
            out += [f"v_cvt_pk_bf16_f32 {v(o+k)}, {v(AC+16*i+8*s_+2*k)}, {v(AC+16*i+8*s_+2*k+1)}" for k in range(4)]
            out.append(f"ds_write_b128 {v(ga)}, {v(o,4)} offset:{i*8192 + s_*1024}")
        return out
    mm = i2(0) + i2(2)
    for x in mm[:6]: a(x)
    weave(a, mm[6:], gout(0) + gout(1) + gout(2)[:5])
    for x in gout(2)[5:] + gout(3): a(x)
    a.wait(lg=0)
    a("s_barrier")
    st()
    ring = [AF, AF + 16, TF]
    def i1r(ks):
        return [f"ds_read_b128 {v(ring[ks%3]+4*i,4)}, {v(gr)} offset:{i*8192 + ks*1024}" for i in range(4)]
    for x in i1r(0) + i1r(1): a(x)
    for ks in range(7):
        mains = [m32(AC + 16 * i, ring[ks % 3] + 4 * i, IT + 8 * ks + 4 * (i >> 1), '0' if ks == 0 else None) for i in range(4)]
        weave(a, mains, i1r(ks + 2) if ks < 5 else [])
    st()
    for r in range(16):
        x0, x1 = (t1, t2) if r & 1 else (t3, t4)
        a(f"""v_sub_f32 {v(x0)}, {v(AC+r)}, {v(AC+32+r)}
              v_sub_f32 {v(x1)}, {v(AC+16+r)}, {v(AC+48+r)}
              v_add_f32 {v(AC+r)}, {v(AC+r)}, {v(AC+32+r)}
              v_add_f32 {v(AC+16+r)}, {v(AC+16+r)}, {v(AC+48+r)}
              v_cvt_pk_bf16_f32 {v(AC+32+r)}, {v(x0)}, {v(x1)}
              v_cvt_pk_bf16_f32 {v(AC+48+r)}, {v(AC+r)}, {v(AC+16+r)}
              s_add_u32 s49, s53, {(8*(r>>2)+(r&3))*65536}
              buffer_store_dword {v(AC+32+r)}, {v(vo)}, s[16:19], s49 offen sc1
              buffer_store_dword {v(AC+48+r)}, {v(vo)}, s[16:19], s49 offen offset:512 sc1""")
    st()
    a(f"v_lshlrev_b32 {v(t1)}, 7, v1")
    a.wait(vm=0)
    a("s_barrier")
    wave0(a, ["s_mov_b64 exec, 0xff", f"buffer_store_dword {v(t0)}, {v(t1)}, s[16:19], s37 offen offset:128 sc1", "s_mov_b64 exec, -1"])
    st.dump(t1)
    return R.maxv

def kern(a):
    st = Stamp(a)
    a("s_cmp_ge_u32 s2, 0x100")
    a("s_cbranch_scc1 KEND")
    st()
    a("""s_load_dwordx2 s[4:5], s[0:1], 0
         s_load_dwordx2 s[16:17], s[0:1], 72
         s_load_dwordx2 s[28:29], s[0:1], 64""")
    a("""v_lshrrev_b32 v2, 6, v0
         v_and_b32 v1, 63, v0
         v_readfirstlane_b32 s3, v2
         v_lshlrev_b32 v2, 4, v1
         s_mov_b32 s6, 1835008
         s_mov_b32 s7, 0x00020000
         s_mov_b32 s11, 0x00020000
         s_mov_b32 s15, 0x00020000
         s_mov_b32 s18, 0x10000000
         s_mov_b32 s19, 0x00020000
         s_mov_b32 s30, 256
         s_mov_b32 s31, 0x00020000""")
    a("s_cmp_lt_u32 s2, 32")
    a("s_cbranch_scc1 SPEC")
    n0 = st.n
    m1 = ffn(a, st)
    a.raw(".p2align 6")
    a.label("SPEC")
    a.reset_state()
    st.n = n0
    m2 = spec(a, st)
    a.label("KEND")
    a("s_endpgm")
    return max(m1, m2)

def build():
    label = NAME + "_kernel"
    a = Asm()
    a.raw(f"; @launch grid=(256,1,1) block=(512,1,1) lds=163840")
    a.raw('.amdgcn_target "amdgcn-amd-amdhsa--gfx950"\n.text')
    a.raw(f".globl {label}\n.p2align 8\n.type {label},@function\n{label}:")
    nv = kern(a)
    print("vgprs", nv, "instrs", a.nins, file=sys.stderr)
    nv = (nv + 7) // 8 * 8
    a.raw(f""".section .rodata,"a"
.p2align 6
.amdhsa_kernel {label}
  .amdhsa_next_free_vgpr {nv}
  .amdhsa_next_free_sgpr 102
  .amdhsa_accum_offset {nv}
  .amdhsa_group_segment_fixed_size 0
  .amdhsa_kernarg_size 80
  .amdhsa_user_sgpr_count 2
  .amdhsa_user_sgpr_kernarg_segment_ptr 1
  .amdhsa_system_sgpr_workgroup_id_x 1
.end_amdhsa_kernel""")
    return a.text()

if __name__ == "__main__":
    open(sys.argv[1], "w").write(build())
```

```python
import sys, struct, math
sys.path.insert(0, 'work')
from asmlib import *

NAME = "recurrent_scan__spectral_gfnet__swiglu_ffn__prompt"
OFF_H = 0
OFF_V1 = 0x800000
OFF_V2 = 0xA00000
OFF_ST = 0xC00000
OFF_FL = 0xC10000
OFF_DIAG = 0x2000000
OPT = sys.argv[2:]
DIAG = 'diag' in OPT
STAMP_OP = 's_memtime' if 'cyc' in OPT else 's_memrealtime'
LIMIT = 0x20000

def lit(x):
    return "0x%08x" % struct.unpack('<I', struct.pack('<f', x))[0]
def m32(d, a, b, c=None):
    return f"v_mfma_f32_32x32x16_bf16 {v(d,16)}, {v(a,4)}, {v(b,4)}, {v(d,16) if c is None else c}"
def m16(d, a, b, c=None):
    return f"v_mfma_f32_16x16x32_bf16 {v(d,4)}, {v(a,4)}, {v(b,4)}, {v(d,4) if c is None else c}"

def em(a, x):
    if callable(x): x()
    elif isinstance(x, tuple): a(x[0], tag=x[1])
    else: a(x)
def weave(a, mains, fills, span=None):
    n = len(mains) if span is None else min(span, len(mains)); k = len(fills); done = 0
    for i, m in enumerate(mains):
        em(a, m)
        upto = min(k, (k * (i + 1) + n - 1) // n)
        while done < upto:
            em(a, fills[done]); done += 1
def merge(*lists):
    items = []
    for li, l in enumerate(lists):
        for i, x in enumerate(l):
            items.append(((i + 0.5) / len(l), li, i, x))
    items.sort(key=lambda t: (t[0], t[1], t[2]))
    return [t[3] for t in items]

NLAB = [0]
class Stamp:
    def __init__(self, a):
        self.a = a; self.n = 0
    def __call__(self):
        if not DIAG: return
        self.a.raw(f"    {STAMP_OP} s[96:97]")
        self.a.raw("    s_waitcnt lgkmcnt(0)")
        self.a.raw(f"    s_mov_b32 s{66+self.n}, s96")
        self.a.lgq = []
        self.n += 1
        assert self.n <= 30
    def dump(self, vt):
        if not DIAG: return
        a = self.a
        self()
        if 'dbgdiag' in OPT:
            NLAB[0] += 1; L = f"DD{NLAB[0]}"
            a(f"s_lshl_b32 s98, s2, 3\ns_add_u32 s98, s98, s3")
            a(f"s_cmp_lg_u32 s98, {8*int(OPT[OPT.index('dbgdiag')+1])+7}")
            a(f"s_cbranch_scc1 {L}")
            for i in range(1, min(17, self.n)):
                a(f"s_sub_u32 s98, s{66+i}, s66")
                a(f"v_mov_b32 {v(vt)}, s98")
                a(f"buffer_store_dword {v(vt)}, off, s[28:31], 0 offset:{4*i-4}")
                a.wait(vm=0)
            a.raw(f"{L}:")
            return
        a(f"s_lshl_b32 s98, s2, 3\ns_add_u32 s98, s98, s3\ns_lshl_b32 s98, s98, 7")
        a(f"s_add_u32 s98, s98, {OFF_DIAG}")
        for i in range(self.n):
            a(f"v_mov_b32 {v(vt)}, s{66+i}")
            a(f"buffer_store_dword {v(vt)}, off, s[16:19], s98 offset:{4*i}")
            a.wait(vm=0)

def spin(a, vdst, vaddr, srd, soff, mask, first=True):
    NLAB[0] += 1; L = f"SP{NLAB[0]}"
    a("s_mov_b32 s99, 0")
    if not first:
        a(f"v_cmp_ne_u32 vcc, 1, {v(vdst)}")
        a(f"s_and_b64 vcc, vcc, {mask}")
        a(f"s_cbranch_scc0 {L}_D")
    a(f"s_mov_b64 exec, {mask}")
    a.raw(f"{L}:")
    a.raw(f"    buffer_load_dword {v(vdst)}, {v(vaddr)}, {srd}, {soff} offen sc1")
    a.raw("    s_add_u32 s99, s99, 1")
    a.raw("    s_waitcnt vmcnt(0)")
    a.raw(f"    v_cmp_ne_u32 vcc, 1, {v(vdst)}")
    a.raw("    s_nop 1")
    a.raw("    s_cmp_eq_u64 vcc, 0")
    a.raw(f"    s_cbranch_scc1 {L}_E")
    a.raw(f"    s_cmp_lt_u32 s99, {LIMIT}")
    a.raw(f"    s_cbranch_scc1 {L}")
    a.raw(f"{L}_E:")
    a.raw("    s_mov_b64 exec, -1")
    a.raw(f"{L}_D:")
    if first: a.vmq = []

def wave0(a, lines):
    NLAB[0] += 1; L = f"W0_{NLAB[0]}"
    a("s_cmp_lg_u32 s3, 0")
    a(f"s_cbranch_scc1 {L}")
    for l in lines: a.raw("    " + l)
    a.raw(f"{L}:")

def ffn(a, st):
    XB = 16384; WB = 114688
    X = lambda s: XB + 32768 * s
    W = lambda s: WB + 16384 * s
    USLOT = [X(1), X(1) + 16384, W(1), X(2), X(2) + 16384, W(2), X(0), X(0) + 16384, W(0),
             X(1), X(1) + 16384, W(1), X(2), X(2) + 16384]
    a("""s_load_dwordx2 s[8:9], s[0:1], 32
         s_load_dwordx2 s[12:13], s[0:1], 40
         s_load_dwordx2 s[20:21], s[0:1], 48
         s_load_dwordx2 s[24:25], s[0:1], 56""")
    a("""s_mov_b32 s10, 1605632
         s_mov_b32 s14, 1605632
         s_mov_b32 s22, 1605632
         s_mov_b32 s23, 0x00020000
         s_mov_b32 s26, 1835008
         s_mov_b32 s27, 0x00020000""")
    R = RegAlloc(start=3, limit=256)
    t0 = R.get(); t1 = R.get(); t2 = R.get()
    vx = [R.get(), R.get()]; vw = R.get(); vd = R.get()
    xa = [[R.get(), R.get()] for _ in range(2)]
    wa = [[R.get(), R.get()] for _ in range(2)]
    da = [R.get() for _ in range(4)]
    big = R.get(144, 2)
    acc = [[[big + 32 * mat + 16 * F + 4 * nt for nt in range(4)] for F in range(2)] for mat in range(2)]
    wf = [[big + 64 + 16 * b + 4 * i for i in range(4)] for b in range(2)]
    xf = [[big + 96 + 16 * b + 4 * i for i in range(4)] for b in range(2)]
    cs = [big + 128, big + 132]; ones = big + 136; stv = big + 140
    wd = [R.get(16, 2) for _ in range(5)]
    sp = R.get(8, 2)
    a("""s_and_b32 s33, s2, 7
         s_lshr_b32 s47, s2, 3
         s_sub_u32 s47, s47, 4
         s_mul_i32 s34, s47, 37
         s_lshr_b32 s34, s34, 8
         s_mul_i32 s35, s34, 7
         s_sub_u32 s35, s47, s35
         s_and_b32 s36, s33, 4
         s_add_u32 s36, s36, s34
         s_and_b32 s37, s33, 3
         s_mul_i32 s37, s37, 7
         s_add_u32 s37, s37, s35
         s_and_b32 s38, s3, 3
         s_lshr_b32 s39, s3, 2""")
    a(f"""v_lshrrev_b32 {v(t0)}, 3, v1
          v_and_b32 {v(t1)}, 7, v1
          v_lshrrev_b32 {v(t2)}, 4, v1
          v_xor_b32 {v(vx[1])}, {v(t1)}, {v(t2)}
          v_lshlrev_b32 {v(vx[1])}, 4, {v(vx[1])}
          v_mul_u32_u24 {v(vx[0])}, 28672, {v(t0)}
          v_add_u32 {v(vx[0])}, {v(vx[0])}, {v(vx[1])}
          v_xor_b32 {v(vx[1])}, 64, {v(vx[0])}""")
    a(f"""s_lshl_b32 s48, s36, 2
          s_add_u32 s48, s48, s38
          s_mul_i32 s40, s48, 896
          s_mul_i32 s49, s39, {32*28672}
          s_add_u32 s40, s40, s49""")
    for i in range(1, 4): a(f"s_add_u32 s{40+i}, s40, {i*(8*28672-1024)}")
    a(f"""s_lshl_b32 s44, s38, 13
          s_lshl_b32 s49, s39, 12
          s_add_u32 s44, s44, s49""")
    def xdma(c):
        out = []
        for i in range(4):
            def f(i=i):
                a(f"s_add_u32 m0, s44, {X(c%3) - c*128}")
                a(f"buffer_load_dwordx4 {v(vx[i&1])}, s[4:7], s{40+i} offen offset:{i*1024 + c*128} lds", tag=('x', c))
            out.append(f)
        return out
    def wdma(c):
        out = []
        for mat in range(2):
            def f(mat=mat):
                a(f"s_add_u32 m0, s46, {W(c%3) + mat*1024}")
                a(f"s_add_u32 s49, s45, {c*64*3584}")
                a(f"buffer_load_dwordx4 {v(vw)}, s[{8+4*mat}:{11+4*mat}], s49 offen lds", tag=('x', c))
            out.append(f)
        return out
    a(f"""v_and_b32 {v(vw)}, 1, {v(t2)}
          s_and_b32 s49, s3, 1
          s_lshl_b32 s49, s49, 1
          v_or_b32 {v(vw)}, s49, {v(vw)}
          v_lshlrev_b32 {v(vw)}, 1, {v(vw)}
          v_xor_b32 {v(vw)}, {v(vw)}, {v(t1)}
          v_lshlrev_b32 {v(vw)}, 4, {v(vw)}
          v_mul_u32_u24 {v(vd)}, 3584, {v(t0)}
          v_add_u32 {v(vw)}, {v(vw)}, {v(vd)}
          s_mul_i32 s45, s3, {8*3584}
          s_lshl_b32 s49, s37, 7
          s_add_u32 s45, s45, s49
          s_lshl_b32 s46, s3, 11""")
    a.wait_smem()
    st()
    for c in range(3):
        for f in xdma(c) + wdma(c): f()
    a(f"""v_lshlrev_b32 {v(vd)}, 1, {v(t2)}
          v_xor_b32 {v(vd)}, {v(vd)}, {v(t1)}
          v_lshlrev_b32 {v(vd)}, 4, {v(vd)}
          v_mul_u32_u24 {v(t0)}, 896, {v(t0)}
          v_add_u32 {v(vd)}, {v(vd)}, {v(t0)}""")
    a(f"""s_lshl_b32 s50, s33, 2
          s_add_u32 s50, s50, s34
          s_mul_i32 s51, s38, {448*896}
          s_mul_i32 s49, s39, {16*896}
          s_add_u32 s51, s51, s49
          s_lshl_b32 s49, s35, 7
          s_add_u32 s51, s51, s49
          s_add_u32 s52, s51, {8*896-1024}
          s_xor_b32 s49, s39, s50
          s_and_b32 s49, s49, 1
          s_lshl_b32 s49, s49, 11
          s_lshl_b32 s53, s38, 12
          s_add_u32 s53, s53, s49""")
    def ddma(u):
        out = []
        for i in range(2):
            def f(i=i):
                a(f"s_add_u32 m0, s53, {USLOT[u]}")
                a(f"s_add_u32 s49, s{51+i}, {u*28672}")
                a(f"buffer_load_dwordx4 {v(vd)}, s[20:23], s49 offen offset:{i*1024} lds", tag=('d', u))
            out.append(f)
        return out
    a(f"""v_and_b32 {v(t0)}, 15, v1
          v_bfe_u32 {v(t1)}, v1, 1, 3
          v_xor_b32 {v(t1)}, {v(t1)}, {v(t2)}
          s_and_b32 s49, s38, 2
          s_lshl_b32 s49, s49, 1
          v_xor_b32 {v(t1)}, s49, {v(t1)}
          v_lshlrev_b32 {v(t1)}, 4, {v(t1)}
          v_lshl_add_u32 {v(t1)}, {v(t0)}, 7, {v(t1)}
          s_lshl_b32 s49, s38, 13
          s_add_u32 s49, s49, {XB}
          v_add_u32 {v(xa[0][0])}, s49, {v(t1)}
          v_xor_b32 {v(xa[1][0])}, 64, {v(xa[0][0])}
          v_add_u32 {v(xa[0][1])}, 0x10000, {v(xa[0][0])}
          v_add_u32 {v(xa[1][1])}, 0x10000, {v(xa[1][0])}""")
    a(f"""v_bfe_u32 {v(t0)}, v1, 3, 2
          s_lshl_b32 s49, s39, 1
          s_and_b32 s54, s38, 1
          s_or_b32 s49, s49, s54
          v_xor_b32 {v(t0)}, s49, {v(t0)}
          v_lshlrev_b32 {v(t0)}, 5, {v(t0)}
          v_bfe_u32 {v(t1)}, v1, 2, 2
          v_lshl_add_u32 {v(t0)}, {v(t1)}, 7, {v(t0)}
          v_and_b32 {v(t1)}, 3, v1
          v_lshl_add_u32 {v(t0)}, {v(t1)}, 3, {v(t0)}
          v_lshl_add_u32 {v(t0)}, {v(t2)}, 11, {v(t0)}
          s_and_b32 s49, s38, 2
          s_lshl_b32 s49, s49, 12
          s_add_u32 s49, s49, {WB}
          v_add_u32 {v(wa[0][0])}, s49, {v(t0)}
          v_xor_b32 {v(wa[0][1])}, 32, {v(wa[0][0])}
          v_xor_b32 {v(wa[1][0])}, 0x2000, {v(wa[0][0])}
          v_xor_b32 {v(wa[1][1])}, 0x2000, {v(wa[0][1])}""")
    a(f"""v_bfe_u32 {v(t0)}, v1, 3, 2
          s_and_b32 s49, s38, 2
          v_xor_b32 {v(t0)}, s49, {v(t0)}
          v_lshlrev_b32 {v(t0)}, 5, {v(t0)}
          v_lshl_add_u32 {v(t0)}, {v(t1)}, 3, {v(t0)}
          v_lshrrev_b32 {v(t1)}, 2, v1
          v_lshl_add_u32 {v(t0)}, {v(t1)}, 7, {v(t0)}
          s_lshl_b32 s49, s38, 12
          s_add_u32 s49, s49, {USLOT[0]}
          v_add_u32 {v(da[0])}, s49, {v(t0)}""")
    for i in range(1, 4): a(f"v_xor_b32 {v(da[i])}, {32*i}, {v(da[0])}")
    for i in range(4): a(f"v_mov_b32 {v(ones+i)}, 0x3f803f80")
    dbase = [USLOT[0]]
    def dreads(u):
        out = []
        off = USLOT[u] - dbase[0]
        if off < 0 or off > 49152:
            for i in range(4): out.append(f"v_add_u32 {v(da[i])}, {off & 0xffffffff:#x}, {v(da[i])}")
            dbase[0] = USLOT[u]; off = 0
        for i in range(4):
            for h in range(2):
                out.append(f"ds_read_b64_tr_b16 {v(wd[u%5]+4*i+2*h,2)}, {v(da[i])} offset:{off + h*2048}")
        return out
    tch = sp; dbg = sp + 1; pv = sp + 2; sta = sp + 3
    a(f"""v_min_u32 {v(tch)}, 55, v1
          v_lshlrev_b32 {v(tch)}, 7, {v(tch)}
          s_mul_i32 s55, s47, {448*128}
          s_mul_i32 s49, s3, {56*128}
          s_add_u32 s55, s55, s49
          v_or_b32 {v(dbg)}, 32, v1
          v_lshlrev_b32 {v(dbg)}, 2, {v(dbg)}
          v_and_b32 {v(sta)}, 15, v1
          v_lshlrev_b32 {v(sta)}, 4, {v(sta)}
          s_lshl_b32 s56, s48, 8
          s_add_u32 s56, s56, {OFF_ST}""")
    def wreads(S):
        c, e = divmod(S, 2)
        return [f"ds_read_b64_tr_b16 {v(wf[S&1][2*mat+F]+2*u,2)}, {v(wa[e][F])} offset:{(c%3)*16384 + mat*1024 + u*512}"
                for F in range(2) for mat in range(2) for u in range(2)]
    def xreads(S):
        c, e = divmod(S, 2); s = c % 3
        return [f"ds_read_b128 {v(xf[S&1][nt],4)}, {v(xa[e][s>>1])} offset:{(s&1)*32768 + nt*2048}" for nt in range(4)]
    def reads(S):
        w = wreads(S); x = xreads(S)
        return [x[0]] + w[0:4] + [x[1]] + w[4:8] + [x[2], x[3]]
    a.wait_tag(('x', 0))
    a("s_barrier")
    st()
    for x in reads(0): a(x)
    for S in range(14):
        c, e = divmod(S, 2)
        mains = []
        for nt in range(4):
            for F in range(2):
                for mat in range(2):
                    mains.append(m16(acc[mat][F][nt], wf[S & 1][2 * mat + F], xf[S & 1][nt], '0' if S == 0 else None))
        if e == 0:
            for mat in range(2):
                mains.insert(2 + mat, m16(cs[mat], wf[S & 1][2 * mat], ones, '0' if S == 0 else None))
        pre = []; rd = []; dm = []; ex = []
        if e == 1:
            def sync(c=c):
                if c < 6: a.wait_tag(('x', c + 1))
                if c == 5: a.wait_tag(('d', 2))
                if c == 6: a.wait_tag(('d', 4))
                a.wait(lg=0)
                a("s_barrier")
            pre = [sync]
            if c + 3 <= 6: dm = xdma(c + 3) + wdma(c + 3)
            if c == 4: dm = ddma(0) + ddma(1) + ddma(2)
            if c == 5: dm = ddma(3) + ddma(4) + ddma(5)
            if c == 6: dm = ddma(6) + ddma(7) + ddma(8)
        if S < 13: rd = reads(S + 1)
        if S == 2: dm = [f"buffer_load_dword {v(pv)}, {v(tch)}, s[20:23], s55 offen"]
        if S == 8: dm = [f"buffer_load_dword {v(pv)}, {v(dbg)}, s[28:31], 0 offen sc1"]
        if S == 10:
            def chk():
                spin(a, pv, dbg, 's[28:31]', '0', '-1', first=False)
                a(f"buffer_load_dwordx4 {v(stv,4)}, {v(sta)}, s[16:19], s56 offen sc1")
            dm = [chk]
        if S == 11: ex = dreads(0) + dreads(1)[:4]
        if S == 12:
            ex = dreads(1)[4:] + dreads(2)
            ex += [f"s_lshl_b32 s49, s3, 11", f"v_add_u32 {v(t0)}, s49, v2",
                   f"ds_write_b128 {v(t0)}, {v(cs[0],4)}", f"ds_write_b128 {v(t0)}, {v(cs[1],4)} offset:1024"]
        if S == 13:
            r0 = wf[0][0]
            ex = [f"s_and_b32 s49, s3, 5", f"s_lshl_b32 s49, s49, 11", f"v_add_u32 {v(t0)}, s49, v2", f"v_xor_b32 {v(t1)}, 0x800, {v(t0)}"]
            for F in range(2):
                for mat in range(2):
                    for hp in range(2):
                        dst = (wf[0][0] if hp == 0 else xf[0][0]) + 8 * mat + 4 * F
                        ex.append(f"ds_read_b128 {v(dst,4)}, {v(t1 if F else t0)} offset:{hp*4096 + mat*1024}")
            ex += dreads(3) + dreads(4)
        fills = pre + merge(*[l for l in (rd, dm) if l]) + ex if (rd or dm) else pre + ex
        weave(a, mains, fills)
    st()
    cv = wf[0][0]
    nm = wf[1][0]; c1 = nm + 4; d2 = nm + 8
    for i in range(4):
        a(f"v_lshlrev_b32 {v(d2+i)}, 16, {v(stv+i)}")
        a(f"v_and_b32 {v(nm+i)}, 0xffff0000, {v(stv+i)}")
        a(f"v_rcp_f32 {v(c1+i)}, {v(d2+i)}")
    for i in range(16): a(f"v_add_f32 {v(cv+i)}, {v(cv+i)}, {v(xf[0][0]+i)}")
    for i in range(4):
        a(f"v_mul_f32 {v(d2+i)}, {v(d2+i)}, {v(d2+i)}")
        a(f"v_mul_f32 {v(c1+i)}, {lit(-math.log2(math.e))}, {v(c1+i)}")
    a(f"""s_mul_i32 s57, s48, 56
          s_lshl_b32 s49, s37, 1
          s_add_u32 s57, s57, s49
          s_add_u32 s57, s57, s39
          s_lshl_b32 s57, s57, 12""")
    late = ddma(9) + ddma(10) + ddma(11)
    for nt in range(4):
        e = xf[0][0] + 8 * (nt & 1); hp = xf[1][nt]
        idx = [(F, r) for F in range(2) for r in range(4)]
        G = lambda F, r: acc[0][F][nt] + r
        U = lambda F, r: acc[1][F][nt] + r
        for F, r in idx: a(f"v_fmac_f32 {v(G(F,r))}, {v(cv+4*F+r)}, {v(nm+nt)}")
        for F, r in idx: a(f"v_mul_f32 {v(e+4*F+r)}, {v(c1+nt)}, {v(G(F,r))}")
        if nt < 3: late[2 * nt]()
        for F, r in idx:
            a(f"v_exp_f32 {v(e+4*F+r)}, {v(e+4*F+r)}")
            a(f"v_fmac_f32 {v(U(F,r))}, {v(cv+8+4*F+r)}, {v(nm+nt)}")
        for F, r in idx: a(f"v_fma_f32 {v(e+4*F+r)}, {v(e+4*F+r)}, {v(d2+nt)}, {v(d2+nt)}")
        if nt < 3: late[2 * nt + 1]()
        for F, r in idx:
            a(f"v_rcp_f32 {v(e+4*F+r)}, {v(e+4*F+r)}")
            a(f"v_mul_f32 {v(U(F,r))}, {v(U(F,r))}, {v(G(F,r))}")
        for F, r in idx: a(f"v_mul_f32 {v(U(F,r))}, {v(U(F,r))}, {v(e+4*F+r)}")
        for i in range(4): a(f"v_cvt_pk_bf16_f32 {v(hp+i)}, {v(U(i>>1,2*(i&1)))}, {v(U(i>>1,2*(i&1)+1))}")
        a(f"buffer_store_dwordx4 {v(hp,4)}, v2, s[16:19], s57 offen offset:{nt*1024} sc1")
    st()
    T2 = sp
    vh = vx; pa = vw; pv = xa[0][0]; vo = xa[0][1]; v2a = xa[1][0]; one = xa[1][1]
    xv = wa[0][0]
    assert xv % 2 == 0 and wa[1][1] == xv + 3
    tmp = acc[0][0][0]
    a(f"""s_and_b32 s54, s38, 1
          s_lshl_b32 s58, s39, 1
          s_add_u32 s58, s58, s54
          s_lshl_b32 s49, s54, 10
          v_add_u32 {v(vh[0])}, s49, v2
          v_xor_b32 {v(vh[1])}, 0x400, {v(vh[0])}
          s_mul_i32 s59, s50, 56
          s_mul_i32 s49, s38, 14
          s_add_u32 s59, s59, s49
          s_lshl_b32 s59, s59, 12
          s_lshl_b32 s49, s39, 11
          s_add_u32 s59, s59, s49
          s_lshl_b32 s60, s36, 2
          s_and_b32 s49, s33, 3
          s_add_u32 s60, s60, s49
          s_lshl_b32 s60, s60, 4
          s_add_u32 s60, s60, s35
          s_lshl_b32 s60, s60, 7
          s_add_u32 s60, s60, {OFF_FL + 9*128}
          s_lshl_b32 s61, s33, 2
          s_add_u32 s61, s61, s38
          s_lshl_b32 s61, s61, 11
          s_add_u32 s61, s61, {OFF_FL + 9*128}
          s_lshl_b32 s62, s3, 13
          s_lshl_b32 s49, s33, 7
          s_add_u32 s62, s62, s49
          s_add_u32 s62, s62, {OFF_FL + 128}
          s_lshl_b32 s63, s58, 9
          s_add_u32 s63, s63, s50
          s_mul_i32 s63, s63, 896
          s_lshl_b32 s49, s35, 7
          s_add_u32 s63, s63, s49
          s_and_b32 s49, s38, 2
          s_lshl_b32 s49, s49, 5
          s_add_u32 s63, s63, s49
          v_lshlrev_b32 {v(pa)}, 7, v1
          v_mov_b32 {v(one)}, 1
          v_and_b32 {v(t0)}, 15, v1
          v_mul_u32_u24 {v(vo)}, 28672, {v(t0)}
          v_lshl_add_u32 {v(vo)}, {v(t2)}, 3, {v(vo)}""")
    a(f"""s_lshl_b32 s49, s58, 4
          v_add_u32 {v(t0)}, s49, {v(t0)}
          v_cvt_f32_u32 {v(t0)}, {v(t0)}
          v_mul_f32 {v(t0)}, {lit(1/64)}, {v(t0)}
          v_cvt_f32_u32 {v(t1)}, {v(t2)}
          v_mul_f32 {v(t1)}, 4.0, {v(t1)}
          v_mul_f32 {v(tmp)}, {v(t1)}, {v(t0)}""")
    for k in range(1, 8): a(f"v_fmamk_f32 {v(tmp+k)}, {v(t0)}, {lit(float(16*(k>>2)+(k&3)))}, {v(tmp)}")
    for k in range(8): a(f"v_cos_f32 {v(tmp+8+k)}, {v(tmp+k)}")
    for k in range(8): a(f"v_sin_f32 {v(tmp+k)}, {v(tmp+k)}")
    a(f"""v_lshlrev_b32 {v(t1)}, 31, v1
          v_or_b32 {v(t1)}, 1.0, {v(t1)}
          v_cmp_gt_u32 vcc, 16, v1
          v_cndmask_b32 {v(tmp)}, {v(tmp)}, {v(t1)}, vcc""")
    for k in range(8): a(f"v_cvt_pk_bf16_f32 {v(T2+k)}, {v(tmp+8+k)}, {v(tmp+k)}")
    a(f"""v_bfe_u32 {v(t0)}, v1, 2, 2
          s_and_b32 s49, s3, 1
          v_xor_b32 {v(t0)}, s49, {v(t0)}
          s_lshl_b32 s49, s35, 2
          v_add_u32 {v(t0)}, s49, {v(t0)}
          v_subrev_u32 {v(t1)}, 14, {v(t0)}
          v_min_u32 {v(t0)}, {v(t0)}, {v(t1)}
          v_lshlrev_b32 {v(t0)}, 6, {v(t0)}
          v_sub_u32 {v(t1)}, 1344, {v(t0)}
          v_cmp_gt_u32 vcc, 448, {v(t0)}
          v_cndmask_b32 {v(t0)}, {v(t1)}, {v(t0)}, vcc
          v_lshl_add_u32 {v(t0)}, {v(t2)}, 10, {v(t0)}
          v_and_b32 {v(t1)}, 3, v1
          v_lshl_add_u32 {v(v2a)}, {v(t1)}, 4, {v(t0)}""")
    a.wait(vm=0, lg=0)
    a("s_barrier")
    wave0(a, ["s_mov_b64 exec, 1", f"buffer_store_dword {v(one)}, off, s[16:19], s60 sc1", "s_mov_b64 exec, -1"])
    st()
    for f in ddma(12) + ddma(13): f()
    spin(a, pv, pa, 's[16:19]', 's61', '0x7f')
    st()
    hf = [[big + 8 * s + 4 * N for N in range(2)] for s in range(14)]
    ab = [[big + 112 + 16 * N + 4 * i for i in range(4)] for N in range(2)]
    for s in range(14):
        a(f"s_add_u32 s49, s59, {s*4096}")
        for N in range(2):
            a(f"buffer_load_dwordx4 {v(hf[s][N],4)}, {v(vh[N])}, s[16:19], s49 offen sc1")
    for cl in range(2):
        a(f"buffer_load_dwordx2 {v(xv+2*cl,2)}, {v(vo)}, s[4:7], s63 offen offset:{cl*32}")
    a(f"v_lshlrev_b32 {v(pa)}, 11, v1")
    for s in range(14):
        mains = [m16(ab[N][i], wd[s % 5] + 4 * i, hf[s][N], '0' if s == 0 else None) for N in range(2) for i in range(4)]
        for m in mains: a(m)
        if s == 0: st()
        if s == 7:
            a.wait(lg=0)
            a("s_barrier")
        if s + 5 < 14:
            for x in dreads(s + 5): a(x)
    st()
    for k in range(1, 4):
        C, N = k >> 1, k & 1
        a(f"s_xor_b32 s49, s3, {k}")
        a(f"s_mul_i32 s49, s49, 6144")
        a(f"v_add_u32 {v(t0)}, s49, v2")
        for cl in range(2):
            a(f"ds_write_b128 {v(t0)}, {v(ab[N][2*C+cl],4)} offset:{XB + (k-1)*2048 + cl*1024}")
    a(f"s_mul_i32 s49, s3, 6144")
    a(f"v_add_u32 {v(t0)}, s49, v2")
    va = [da[0], da[1]]
    for cl in range(2):
        a(f"""s_and_b32 s49, s38, 2
              s_add_u32 s49, s49, {cl}
              s_lshl_b32 s54, s35, 2
              s_add_u32 s54, s54, s49
              s_cmp_ge_u32 s54, 14
              s_cselect_b32 s64, 14, 0
              s_cselect_b32 s65, 0x80008000, 0
              s_sub_u32 s54, s54, s64
              s_cmp_ge_u32 s54, 7
              s_cselect_b32 s64, 15, 0
              s_cselect_b32 s54, 0x80008000, 0
              s_xor_b32 s65, s65, s54
              v_and_b32 {v(t1)}, 1, {v(t2)}
              v_xor_b32 {v(t1)}, s49, {v(t1)}
              v_lshlrev_b32 {v(t1)}, 6, {v(t1)}
              v_lshl_add_u32 {v(t1)}, {v(t2)}, 11, {v(t1)}
              v_and_b32 {v(va[cl])}, 15, v1
              v_xor_b32 {v(va[cl])}, s64, {v(va[cl])}
              v_lshl_add_u32 {v(va[cl])}, {v(va[cl])}, 2, {v(t1)}""")
        for k in range(8): a(f"v_xor_b32 {v(wd[0]+8*cl+k)}, s65, {v(T2+k)}")
    a.wait(lg=0)
    a("s_barrier")
    pr = big
    for k in range(3):
        for cl in range(2):
            a(f"ds_read_b128 {v(pr+8*k+4*cl,4)}, {v(t0)} offset:{XB + k*2048 + cl*1024}")
    y = ab[0][0]; e = big + 32; xs = big + 40
    for i in range(8): a(f"v_add_f32 {v(y+i)}, {v(y+i)}, {v(pr+i)}")
    for i in range(8): a(f"v_add_f32 {v(pr+8+i)}, {v(pr+8+i)}, {v(pr+16+i)}")
    for i in range(8): a(f"v_add_f32 {v(y+i)}, {v(y+i)}, {v(pr+8+i)}")
    for i in range(8): a(f"v_mul_f32 {v(e+i)}, {lit(-math.log2(math.e))}, {v(y+i)}")
    for i in range(8): a(f"v_exp_f32 {v(e+i)}, {v(e+i)}")
    a(f"v_mov_b32 {v(t1)}, {lit(2048*448/2)}")
    for i in range(8): a(f"v_fma_f32 {v(e+i)}, {v(e+i)}, {v(t1)}, {v(t1)}")
    for i in range(8): a(f"v_rcp_f32 {v(e+i)}, {v(e+i)}")
    for i in range(4):
        a(f"v_lshlrev_b32 {v(xs+2*i)}, 16, {v(xv+i)}")
        a(f"v_and_b32 {v(xs+2*i+1)}, 0xffff0000, {v(xv+i)}")
    for i in range(8): a(f"v_mul_f32 {v(y+i)}, {v(y+i)}, {v(e+i)}")
    st()
    a(f"""s_lshl_b32 s54, s50, 16
          s_lshl_b32 s49, s3, 13
          s_add_u32 s54, s54, s49
          s_add_u32 s54, s54, {OFF_V2}
          s_add_u32 s64, s54, 3072
          s_lshl_b32 m0, s3, 11""")
    spin(a, pv, pa, 's[16:19]', 's62', '0xf')
    st()
    a(f"buffer_load_dwordx4 {v(v2a)}, s[16:19], s54 offen sc1 lds")
    a(f"buffer_load_dwordx4 {v(v2a)}, s[16:19], s64 offen offset:1024 sc1 lds")
    a.wait(vm=0)
    a("s_barrier")
    st()
    vf = big + 48; so = big + 80
    n = 0
    for cl in range(2):
        for par in range(2):
            for kk in range(2):
                for hh in range(2):
                    o = (16 * kk + 2 * hh) * 2 + par
                    a(f"ds_read2st64_b32 {v(vf+4*n+2*hh,2)}, {v(va[cl])} offset0:{o} offset1:{o+2}")
                n += 1
    n = 0
    for cl in range(2):
        for par in range(2):
            for kk in range(2):
                b = (T2 if par == 0 else wd[0] + 8 * cl) + 4 * kk
                a(m16(so + 4 * cl, vf + 4 * n, b, '0' if (par == 0 and kk == 0) else None)); n += 1
    for cl in range(2):
        for i in range(4): a(f"v_fmac_f32 {v(xs+4*cl+i)}, {v(so+4*cl+i)}, {v(y+4*cl+i)}")
        for i in range(2): a(f"v_cvt_pk_bf16_f32 {v(xv+2*cl+i)}, {v(xs+4*cl+2*i)}, {v(xs+4*cl+2*i+1)}")
        a(f"buffer_store_dwordx2 {v(xv+2*cl,2)}, {v(vo)}, s[24:27], s63 offen offset:{cl*32}")
    st.dump(t0)
    a("s_endpgm")
    return R.maxv

def spec(a, st):
    XS = 928; VS = 1032
    WB = 66560; TB = WB + 65536; SB = TB + 16384
    a("""s_load_dwordx2 s[8:9], s[0:1], 8
         s_load_dwordx2 s[12:13], s[0:1], 16
         s_mov_b32 s10, 921600
         s_mov_b32 s14, 921600""")
    R = RegAlloc(start=3, limit=256)
    t0 = R.get(); t1 = R.get(); t2 = R.get(); t3 = R.get(); t4 = R.get()
    mi = R.get(8, 2)
    IT = R.get(56, 2); FT = R.get(56, 2); AC = R.get(64, 2); AF = R.get(32, 2); TF = R.get(32, 2)
    a(f"""s_and_b32 s33, s3, 3
          s_lshr_b32 s34, s3, 2
          s_mul_i32 s35, s2, 896
          s_mul_i32 s49, s3, {8*28672}
          s_add_u32 s35, s35, s49
          s_mul_i32 s36, s3, {8*XS}
          s_lshl_b32 s37, s2, 11
          s_add_u32 s37, s37, {OFF_FL}
          v_lshlrev_b32 {v(t0)}, 7, v1
          v_mov_b32 {v(t1)}, 0""")
    a.wait_smem()
    st()
    a("s_mov_b32 exec_hi, 0x00ffffff")
    for i in range(8):
        a(f"s_add_u32 m0, s36, {i*XS}")
        a(f"s_add_u32 s49, s35, {i*28672}")
        a(f"buffer_load_dwordx4 v2, s[4:7], s49 offen lds", tag='x')
    a("s_mov_b32 exec_hi, -1")
    wave0(a, ["s_mov_b64 exec, 0xffff", f"buffer_store_dword {v(t1)}, {v(t0)}, s[16:19], s37 offen sc1", "s_mov_b64 exec, -1"])
    a(f"""s_lshl_b32 s38, s3, 8
          s_add_u32 s38, s38, s2
          s_mul_i32 s49, s34, 992
          s_cmp_eq_u32 s2, 0
          s_cselect_b32 s49, s49, 0
          s_sub_u32 s38, s38, s49
          s_sub_u32 s39, 2048, s38
          s_cmp_eq_u32 s38, 0
          s_cselect_b32 s40, 1024, s39
          v_and_b32 {v(t0)}, 31, v1
          v_lshlrev_b32 {v(t0)}, 4, {v(t0)}
          v_add_u32 {v(t0)}, 2, {v(t0)}
          v_cmp_gt_u32 vcc, 32, v1
          v_mov_b32 {v(t1)}, s38
          v_mov_b32 {v(t2)}, s39
          v_mov_b32 {v(t3)}, s40
          v_cndmask_b32 {v(t2)}, {v(t2)}, {v(t1)}, vcc
          v_cndmask_b32 {v(t3)}, {v(t3)}, {v(t1)}, vcc
          v_mov_b32 {v(t1)}, 450
          v_mad_u32_u24 {v(t2)}, {v(t2)}, {v(t1)}, {v(t0)}
          v_mad_u32_u24 {v(t3)}, {v(t3)}, {v(t1)}, {v(t0)}
          v_mov_b32 {v(t0)}, {(-28800) & 0xffffffff:#x}
          v_mov_b32 {v(t1)}, 28800
          v_cndmask_b32 {v(t0)}, {v(t0)}, {v(t1)}, vcc
          s_lshl_b32 s41, s3, 13""")
    for i in range(4):
        if i: a(f"v_add_u32 {v(t2)}, {v(t2)}, {v(t0)}")
        for mat in range(2):
            a(f"s_add_u32 m0, s41, {WB + i*2048 + mat*1024}")
            a(f"buffer_load_dwordx4 {v(t2 if i else t3)}, s[{8+4*mat}:{11+4*mat}], 0 offen lds", tag='w')
    a(f"""v_and_b32 {v(t0)}, 15, v1
          s_lshl_b32 s49, s33, 4
          v_add_u32 {v(t0)}, s49, {v(t0)}
          v_cmp_eq_u32 vcc, 1, {v(t0)}
          v_cndmask_b32 {v(t0)}, {v(t0)}, 64, vcc
          v_and_b32 {v(t1)}, 1, {v(t0)}
          v_cvt_f32_u32 {v(t1)}, {v(t1)}
          v_mul_f32 {v(t1)}, {lit(-0.25)}, {v(t1)}
          v_lshrrev_b32 {v(t0)}, 1, {v(t0)}
          v_cvt_f32_u32 {v(t0)}, {v(t0)}
          v_mul_f32 {v(t0)}, {lit(1/64)}, {v(t0)}
          v_lshrrev_b32 {v(t4)}, 4, v1
          v_lshlrev_b32 {v(t2)}, 2, {v(t4)}
          v_cvt_f32_u32 {v(t2)}, {v(t2)}
          v_fma_f32 {v(TF)}, {v(t2)}, {v(t0)}, {v(t1)}""")
    for k in range(1, 16): a(f"v_fmamk_f32 {v(TF+k)}, {v(t0)}, {lit(float(16*(k>>2)+(k&3)))}, {v(TF)}")
    for k in range(16): a(f"v_cos_f32 {v(TF+k)}, {v(TF+k)}")
    a(f"""v_lshrrev_b32 {v(t0)}, 2, v1
          v_mul_u32_u24 {v(t0)}, {XS}, {v(t0)}
          v_and_b32 {v(t1)}, 3, v1
          v_lshlrev_b32 {v(t1)}, 3, {v(t1)}
          v_add_u32 {v(t2)}, {v(t0)}, {v(t1)}
          v_sub_u32 {v(t3)}, {v(t0)}, {v(t1)}
          s_lshl_b32 s42, s34, 7
          s_lshl_b32 s49, s34, 3
          s_sub_u32 s43, 32, s49""")
    for t in range(4):
        if t: a("s_add_u32 s42, s42, s43")
        a(f"v_add_u32 {v(mi+t)}, s42, {v(t2)}")
        a(f"s_sub_u32 s49, 440, s42")
        a(f"v_add_u32 {v(mi+4+t)}, s49, {v(t3)}")
    tv = AC
    a(f"""s_lshr_b32 s44, s3, 1
          s_and_b32 s44, s44, 1
          s_and_b32 s45, s3, 1
          v_and_b32 {v(t0)}, 31, v1
          v_lshrrev_b32 {v(t1)}, 5, v1
          v_lshlrev_b32 {v(t1)}, 2, {v(t1)}
          s_lshl_b32 s49, s44, 4
          v_add_u32 {v(t1)}, s49, {v(t1)}
          s_cmp_eq_u32 s34, 0
          s_cselect_b64 vcc, -1, 0
          v_cndmask_b32 {v(t2)}, {v(t1)}, {v(t0)}, vcc
          v_cndmask_b32 {v(t3)}, {v(t0)}, {v(t1)}, vcc""")
    a(f"""v_cmp_le_u32 s[46:47], 16, {v(t2)}
          v_cmp_eq_u32 s[50:51], 0, {v(t2)}
          s_cmp_eq_u32 s2, 0
          s_cselect_b64 s[52:53], -1, 0
          s_and_b64 s[54:55], s[46:47], s[52:53]
          s_and_b64 s[50:51], s[50:51], s[52:53]
          s_cmp_eq_u32 s45, 1
          s_cselect_b64 s[50:51], s[50:51], 0
          s_and_b64 s[56:57], s[50:51], vcc
          v_lshlrev_b32 {v(t2)}, 6, {v(t2)}
          v_add_u32 {v(t2)}, s2, {v(t2)}
          v_subrev_u32 {v(t0)}, 992, {v(t2)}
          v_cndmask_b32 {v(t2)}, {v(t2)}, {v(t0)}, s[54:55]
          v_mov_b32 {v(t0)}, 1024
          v_cndmask_b32 {v(t2)}, {v(t2)}, {v(t0)}, s[56:57]
          v_cvt_f32_u32 {v(t2)}, {v(t2)}
          v_cvt_f32_u32 {v(t3)}, {v(t3)}
          v_mul_f32 {v(t2)}, {lit(1/2048)}, {v(t2)}
          v_mul_f32 {v(t0)}, {lit(1/32)}, {v(t3)}
          v_cndmask_b32 {v(t0)}, {v(t0)}, {v(t2)}, vcc
          s_cmp_eq_u32 s45, 1
          s_cselect_b32 s49, {lit(-0.25)}, 0
          v_mov_b32 {v(t1)}, s49
          v_cndmask_b32 {v(t1)}, {v(t1)}, 0, s[56:57]
          v_fma_f32 {v(tv)}, {v(t2)}, {v(t3)}, {v(t1)}""")
    for i in range(1, 8): a(f"v_fmamk_f32 {v(tv+i)}, {v(t0)}, {lit(float(8*(i>>2)+(i&3)))}, {v(tv)}")
    a(f"v_mul_f32 {v(t3)}, 0.5, {v(t3)}")
    a(f"v_cndmask_b32 {v(tv)}, {v(tv)}, {v(t3)}, s[50:51]")
    for i in range(8): a(f"v_cos_f32 {v(tv+i)}, {v(tv+i)}")
    for i in range(4): a(f"v_cvt_pk_bf16_f32 {v(tv+8+i)}, {v(tv+2*i)}, {v(tv+2*i+1)}")
    a(f"""s_andn2_b64 s[58:59], s[52:53], s[46:47]
          s_cmp_lg_u32 s2, 0
          s_cselect_b32 s49, s45, 0
          s_mul_i32 s49, s49, 0x80008000""")
    for i in range(4): a(f"v_xor_b32 {v(tv+12+i)}, s49, {v(tv+8+i)}")
    for i in range(4): a(f"v_cndmask_b32 {v(tv+12+i)}, {v(tv+12+i)}, 0, s[58:59]")
    for i in range(4): a(f"v_cndmask_b32 {v(tv+8+i)}, {v(tv+8+i)}, 0, s[54:55]")
    a(f"""s_lshl_b32 s60, s34, 3
          s_add_u32 s60, s60, s44
          s_lshl_b32 s60, s60, 10
          s_add_u32 s60, s60, {TB}
          s_mul_i32 s49, s45, 6144
          s_add_u32 s49, s49, s60
          v_add_u32 {v(t0)}, s49, v2
          s_cmp_eq_u32 s2, 0
          s_cselect_b32 s49, 0, 1
          s_xor_b32 s49, s49, s45
          s_lshl_b32 s49, s49, 11
          s_add_u32 s49, s49, s60
          v_add_u32 {v(t1)}, s49, v2""")
    a(f"ds_write_b128 {v(t0)}, {v(tv+8,4)}")
    a(f"ds_write_b128 {v(t1)}, {v(tv+12,4)} offset:2048")
    a(f"""v_and_b32 {v(t0)}, 31, v1
          s_lshl_b32 s49, s33, 6
          s_add_u32 s49, s49, 2
          s_sub_u32 s49, s49, s34
          v_lshl_add_u32 {v(t0)}, {v(t0)}, 1, s49
          v_cvt_f32_u32 {v(t0)}, {v(t0)}
          v_mul_f32 {v(t0)}, {lit(1/448)}, {v(t0)}
          v_lshrrev_b32 {v(t1)}, 5, v1
          v_cvt_f32_u32 {v(t1)}, {v(t1)}
          v_fma_f32 {v(t1)}, {v(t1)}, 2.0, 0.5
          v_mul_f32 {v(t1)}, {v(t1)}, {v(t0)}""")
    def tabgen(dst, mult, step, base, scr, post=None):
        for ks in range(7):
            an = scr + 16 * (ks & 1); cv = an + 8
            for i in range(8):
                k = mult(ks, i)
                if k == 0: a(f"v_mov_b32 {v(an+i)}, {v(base)}")
                else: a(f"v_fmamk_f32 {v(an+i)}, {v(step)}, {lit(float(k))}, {v(base)}")
            for i in range(8): a(f"v_cos_f32 {v(cv+i)}, {v(an+i)}")
            for i in range(8): a(f"v_sin_f32 {v(an+i)}, {v(an+i)}")
            if post: post(ks, an, cv)
            for i in range(4): a(f"v_cvt_pk_bf16_f32 {v(dst+8*ks+i)}, {v(cv+2*i)}, {v(cv+2*i+1)}")
            for i in range(4): a(f"v_cvt_pk_bf16_f32 {v(dst+8*ks+4+i)}, {v(an+2*i)}, {v(an+2*i+1)}")
    def f1mult(ks, i):
        u, t = i >> 2, i & 3
        P = 4 * t + ks if ks < 4 else 16 + 3 * t + (ks - 4)
        return 4 * P + u
    tabgen(FT, f1mult, t0, t1, AC + 16)
    a(f"""v_lshrrev_b32 {v(t0)}, 3, v1
          v_mul_u32_u24 {v(t1)}, {XS}, {v(t0)}
          v_and_b32 {v(t2)}, 7, v1
          v_lshl_add_u32 {v(t1)}, {v(t2)}, 4, {v(t1)}
          v_add_u32 {v(t1)}, s36, {v(t1)}""")
    s1 = [AF, AF + 1]; s2 = [AF + 2, AF + 3]
    for r in s1 + s2: a(f"v_mov_b32 {v(r)}, 0")
    a(f"""s_lshl_b32 s49, s3, 5
          s_add_u32 s49, s49, {SB}
          v_lshl_add_u32 {v(t2)}, {v(t0)}, 2, s49
          s_lshl_b32 s49, s34, 6
          s_lshl_b32 s46, s45, 5
          s_add_u32 s49, s49, s46
          s_lshl_b32 s46, s44, 3
          s_add_u32 s49, s49, s46
          s_add_u32 s49, s49, {SB + 256}
          v_lshrrev_b32 {v(t3)}, 5, v1
          v_lshl_add_u32 {v(t3)}, {v(t3)}, 4, s49
          v_and_b32 {v(AF+4)}, 3, {v(t0)}
          v_lshl_add_u32 {v(t3)}, {v(AF+4)}, 1, {v(t3)}
          v_lshlrev_b32 {v(AF+4)}, 4, {v(t0)}
          s_lshl_b32 s46, s2, 8
          s_lshl_b32 s49, s45, 7
          s_add_u32 s46, s46, s49
          s_lshr_b32 s49, s3, 1
          s_lshl_b32 s49, s49, 2
          s_add_u32 s46, s46, s49
          s_add_u32 s46, s46, {OFF_ST}
          v_lshlrev_b32 {v(t4)}, 4, {v(t4)}
          v_add_u32 {v(t4)}, {SB}, {v(t4)}""")
    st()
    a.wait_tag('x')
    st()
    for i in range(7): a(f"ds_read_b128 {v(AC+4*i,4)}, {v(t1)} offset:{i*128}")
    for i in range(28):
        a(f"v_dot2c_f32_bf16 {v(s1[i&1])}, 0x3f803f80, {v(AC+i)}")
        a(f"v_dot2c_f32_bf16 {v(s2[i&1])}, {v(AC+i)}, {v(AC+i)}")
    mean = s1[0]; var = s2[0]
    a(f"v_add_f32 {v(mean)}, {v(s1[0])}, {v(s1[1])}")
    a(f"v_add_f32 {v(var)}, {v(s2[0])}, {v(s2[1])}")
    for m in ("quad_perm:[1,0,3,2]", "quad_perm:[2,3,0,1]", "row_half_mirror"):
        for r in (mean, var): a(f"v_add_f32_dpp {v(r)}, {v(r)}, {v(r)} {m} row_mask:0xf bank_mask:0xf")
    nm = s1[1]; rs = s2[1]
    a(f"""v_mul_f32 {v(mean)}, {lit(1/448)}, {v(mean)}
          v_mul_f32 {v(var)}, {lit(1/448)}, {v(var)}
          v_fma_f32 {v(var)}, -{v(mean)}, {v(mean)}, {v(var)}
          v_max_f32 {v(var)}, 0, {v(var)}
          v_cvt_pk_bf16_f32 {v(var)}, {v(var)}, {v(var)}
          v_lshlrev_b32 {v(var)}, 16, {v(var)}
          v_add_f32 {v(var)}, {lit(1e-5)}, {v(var)}
          v_cvt_pk_bf16_f32 {v(var)}, {v(var)}, {v(var)}
          v_lshlrev_b32 {v(var)}, 16, {v(var)}
          v_sqrt_f32 {v(var)}, {v(var)}
          v_cvt_pk_bf16_f32 {v(nm)}, {v(var)}, -{v(mean)}
          v_lshlrev_b32 {v(var)}, 16, {v(nm)}
          v_rcp_f32 {v(rs)}, {v(var)}""")
    a("s_mov_b32 exec_lo, 0x01010101\ns_mov_b32 exec_hi, 0x01010101")
    a(f"ds_write_b16_d16_hi {v(t3)}, {v(nm)}")
    a(f"ds_write_b32 {v(t2)}, {v(rs)}")
    a(f"buffer_store_dword {v(nm)}, {v(AF+4)}, s[16:19], s46 offen sc1", tag='st')
    a("s_mov_b64 exec, -1")
    a.wait(lg=0)
    a("s_barrier")
    st()
    rsv = TF + 16; nmf = AF; Tp = AF + 8; cin = AF + 16
    for k in range(4): a(f"ds_read_b128 {v(rsv+4*k,4)}, {v(t4)} offset:{64*k}")
    for ks in range(2): a(f"ds_read_b128 {v(nmf+4*ks,4)}, {v(t4)} offset:{256 + 64*ks}")
    seq = [(t, arr, ks) for t in range(4) for arr in range(4) for ks in range(2)]
    def xr(n):
        t, arr, ks = seq[n]
        return [f"ds_read_b64_tr_b16 {v(IT+4*(n%14)+2*u,2)}, {v(mi+4*(arr>>1)+t)} offset:{(32*ks+16*u)*XS + 448*(arr&1)}" for u in range(2)]
    for n in range(4):
        for x in xr(n): a(x)
    for k in range(16): a(f"v_mul_f32 {v(TF+k)}, {v(TF+k)}, {v(rsv+k)}")
    for n in range(4, 10):
        for x in xr(n): a(x)
    for k in range(8): a(f"v_cvt_pk_bf16_f32 {v(Tp+k)}, {v(TF+2*k)}, {v(TF+2*k+1)}")
    a(m16(cin, Tp, nmf, '0')); a(m16(cin, Tp + 4, nmf + 4))
    for n in range(10, 14):
        for x in xr(n): a(x)
    A = lambda t, arr: AC + 16 * t + 4 * arr
    def fold(t):
        out = []
        d1 = TF + 8 * (t & 1); d2 = d1 + 4
        for r in range(4):
            out += [f"v_sub_f32 {v(d1+r)}, {v(A(t,0)+r)}, {v(A(t,1)+r)}",
                    f"v_add_f32 {v(A(t,0)+r)}, {v(A(t,0)+r)}, {v(A(t,1)+r)}"]
        for r in range(4):
            out += [f"v_sub_f32 {v(d2+r)}, {v(A(t,2)+r)}, {v(A(t,3)+r)}",
                    f"v_add_f32 {v(A(t,2)+r)}, {v(A(t,2)+r)}, {v(A(t,3)+r)}"]
        q = "quad_perm:[3,2,1,0] row_mask:0xf bank_mask:0xf"
        for r in range(4):
            out += [f"v_subrev_f32_dpp {v(A(t,1)+r)}, {v(A(t,2)+r)}, {v(A(t,0)+r)} {q}",
                    f"v_add_f32_dpp {v(A(t,0)+r)}, {v(A(t,2)+r)}, {v(A(t,0)+r)} {q}"]
        for r in range(4):
            out += [f"v_subrev_f32_dpp {v(A(t,2)+r)}, {v(d2+r)}, {v(d1+r)} {q}",
                    f"v_add_f32_dpp {v(A(t,3)+r)}, {v(d2+r)}, {v(d1+r)} {q}"]
        return out
    for t in range(4):
        mains = []; fills = []
        for n in range(8 * t, 8 * t + 8):
            _, arr, ks = seq[n]
            mains.append(m16(A(t, arr), Tp + 4 * ks, IT + 4 * (n % 14), v(cin, 4) if ks == 0 else None))
        fl = fold(t - 1) if t else []
        for i, m in enumerate(mains):
            a(m)
            n = 8 * t + i + 14
            if n < 32:
                for x in xr(n): a(x)
            if i >= 2:
                for x in fl[(i - 2) * 6:(i - 1) * 6]: a(x)
    a.wait_tag('st')
    a("s_barrier")
    a(f"v_mov_b32 {v(t0)}, 1")
    a(f"s_lshl_b32 s49, s2, 2")
    wave0(a, ["s_mov_b64 exec, 1", f"buffer_store_dword {v(t0)}, off, s[28:31], s49 offset:128 sc1", "s_mov_b64 exec, -1"])
    a(f"""v_lshrrev_b32 {v(t1)}, 4, v1
          v_lshlrev_b32 {v(t1)}, 17, {v(t1)}
          v_and_b32 {v(t2)}, 15, v1
          v_lshl_add_u32 {v(t1)}, {v(t2)}, 4, {v(t1)}
          s_lshl_b32 s46, s33, 19
          s_lshl_b32 s49, s2, 11
          s_add_u32 s46, s46, s49
          s_lshl_b32 s49, s34, 10
          s_add_u32 s46, s46, s49
          s_add_u32 s46, s46, {OFF_V1}
          s_add_u32 s47, s46, 65536""")
    for x in fold(3): a(x)
    st()
    for r in range(4):
        for par in range(2):
            o = AF + 4 * (2 * r + par)
            for cs_ in range(2):
                for th in range(2):
                    a(f"v_cvt_pk_bf16_f32 {v(o+2*cs_+th)}, {v(A(2*th,2*par+cs_)+r)}, {v(A(2*th+1,2*par+cs_)+r)}")
            a(f"buffer_store_dwordx4 {v(o,4)}, {v(t1)}, s[16:19], s{46+(r>>1)} offen offset:{(r&1)*512 + par*256} sc1")
    st()
    a(f"""v_and_b32 {v(t2)}, 31, v1
          s_lshl_b32 s49, s33, 5
          v_add_u32 {v(t2)}, s49, {v(t2)}
          v_cvt_f32_u32 {v(t3)}, {v(t2)}
          v_add_f32 {v(t3)}, 0.5, {v(t3)}
          v_mul_f32 {v(t3)}, {lit(1/448)}, {v(t3)}
          v_lshrrev_b32 {v(t1)}, 5, v1
          s_sub_u32 s49, 2, s34
          v_lshl_add_u32 {v(t4)}, {v(t1)}, 3, s49
          v_cmp_eq_u32 vcc, 10, {v(t4)}
          v_cvt_f32_u32 {v(t4)}, {v(t4)}
          v_mul_f32 {v(t4)}, {v(t4)}, {v(t3)}
          v_cndmask_b32 {v(mi)}, 1.0, 0.5, vcc""")
    def half(ks, an, cv):
        if ks == 6: a(f"v_mul_f32 {v(an+7)}, {v(an+7)}, {v(mi)}")
    tabgen(IT, lambda ks, i: 32 * ks + 16 * (i >> 2) + 2 * (i & 3), t3, t4, AC, half)
    fa = mi + 1; wr = mi + 2; ga = mi + 3; gr = mi + 4; vo = mi + 5; tb = mi + 6; pv = mi + 7
    a(f"""v_and_b32 {v(t3)}, 31, v1
          v_mul_u32_u24 {v(fa)}, {VS}, {v(t3)}
          v_lshl_add_u32 {v(fa)}, {v(t1)}, 5, {v(fa)}
          s_lshl_b32 s49, s34, 8
          v_add_u32 {v(fa)}, s49, {v(fa)}
          v_lshlrev_b32 {v(vo)}, 2, {v(t2)}
          s_lshl_b32 s49, s34, 1
          s_sub_u32 s49, {WB + 2}, s49
          v_lshl_add_u32 {v(wr)}, {v(t1)}, 13, s49
          v_add_u32 {v(wr)}, {v(wr)}, {v(vo)}
          v_lshl_add_u32 {v(vo)}, {v(t1)}, 18, {v(vo)}
          s_lshl_b32 s49, s34, 15
          v_add_u32 {v(gr)}, s49, v2
          s_lshl_b32 s49, s33, 11
          v_add_u32 {v(ga)}, s49, {v(gr)}
          v_add_u32 {v(tb)}, {TB}, v2
          v_lshl_add_u32 {v(t3)}, {v(t3)}, 2, 64
          v_add_u32 {v(t3)}, 64, {v(t3)}
          v_lshlrev_b32 {v(t4)}, 11, v1
          s_lshl_b32 s50, s3, 13
          s_add_u32 s50, s50, {OFF_FL}
          s_lshl_b32 s51, s2, 16
          s_lshl_b32 s49, s3, 13
          s_add_u32 s51, s51, s49
          s_add_u32 s51, s51, {OFF_V1}
          s_mul_i32 s52, s3, {4*VS}
          s_lshl_b32 s53, s2, 11
          s_lshl_b32 s49, s34, 10
          s_add_u32 s53, s53, s49
          s_add_u32 s53, s53, {OFF_V2}""")
    for k in range(8): a(f"ds_read_b128 {v(TF+4*k,4)}, {v(tb)} offset:{k*1024}")
    st()
    a.wait(vm=0)
    a("s_barrier")
    wave0(a, ["s_mov_b64 exec, 1", f"buffer_store_dword {v(t0)}, off, s[16:19], s37 sc1", "s_mov_b64 exec, -1"])
    st()
    spin(a, pv, t3, 's[28:31]', '0', '0xffffffff')
    spin(a, pv, t4, 's[16:19]', 's50', '0xf')
    st()
    for hh in range(2):
        for i in range(4):
            a(f"s_add_u32 m0, s52, {(hh*32+i)*VS}")
            a(f"s_add_u32 s49, s51, {i*2048 + hh*1024}")
            a(f"buffer_load_dwordx4 v2, s[16:19], s49 offen sc1 lds", tag=('v', hh))
    def f1r(ks):
        hh, q = (0, ks) if ks < 4 else (1, ks - 4)
        return [f"ds_read_b64 {v(AF+16*(ks&1)+4*(2*d+c)+2*u,2)}, {v(fa)} offset:{hh*32*VS + c*512 + (4*q+u)*16 + 8*d}"
                for d in range(2) for c in range(2) for u in range(2)]
    a.wait_tag(('v', 0))
    a("s_barrier")
    st()
    for x in f1r(0): a(x)
    for ks in range(7):
        mains = [m32(AC + 16 * i, AF + 16 * (ks & 1) + 4 * i, FT + 8 * ks + 4 * (i >> 1), '0' if ks == 0 else None) for i in range(4)]
        fills = f1r(ks + 1) if ks < 6 else []
        if ks == 3:
            def sy():
                a.wait_tag(('v', 1)); a("s_barrier")
            fills = [sy] + fills
        weave(a, mains, fills, span=3)
    def wrd(r):
        return [f"ds_read_u16_d16_hi {v(FT+4*(r%14)+2*pm+mat)}, {v(wr)} offset:{(8*(r>>2)+(r&3))*2048 + mat*1024 + pm*512}"
                for pm in range(2) for mat in range(2)]
    BF = lambda i: AF + 8 * ((i + 2) & 3)
    Tf = lambda T, s: TF + 8 * T + 4 * s
    cvt = lambda i: [f"v_cvt_pk_bf16_f32 {v(BF(i)+k)}, {v(AC+16*i+2*k)}, {v(AC+16*i+2*k+1)}" for k in range(8)]
    for x in cvt(0) + cvt(1): a(x)
    def f2(i0):
        o0, o1 = AC + 16 * i0, AC + 16 * i0 + 16
        C, S = BF(i0), BF(i0 + 1)
        return [m32(o0, Tf(0, 0), C, '0'), m32(o1, Tf(3, 0), C, '0'), m32(o0, Tf(0, 1), C + 4), m32(o1, Tf(3, 1), C + 4),
                m32(o0, Tf(1, 0), S), m32(o1, Tf(2, 0), S), m32(o0, Tf(1, 1), S + 4), m32(o1, Tf(2, 1), S + 4)]
    wl = [x for r in range(14) for x in wrd(r)]
    weave(a, f2(0), cvt(2) + cvt(3) + wl[:16])
    weave(a, f2(2), wl[16:])
    st()
    for k in range(8): a(f"ds_read_b128 {v(TF+4*k,4)}, {v(tb)} offset:{8192 + k*1024}")
    a("s_barrier")
    al, de, gm, be = AC, AC + 16, AC + 32, AC + 48
    for r in range(16):
        Pr, Pi, Mr, Mi = [FT + 4 * (r % 14) + k for k in range(4)]
        a1, b1 = (t1, t2) if r & 1 else (t3, t4)
        A_, D_, G_, B_ = al + r, de + r, gm + r, be + r
        if r == 0:
            for k, x in enumerate((A_, D_, G_, B_)): a(f"v_mov_b32 {v(AF+k)}, {v(x)}")
        a(f"""v_sub_f32 {v(a1)}, {v(A_)}, {v(B_)}
              v_add_f32 {v(b1)}, {v(G_)}, {v(D_)}
              v_add_f32 {v(A_)}, {v(A_)}, {v(B_)}
              v_sub_f32 {v(G_)}, {v(G_)}, {v(D_)}
              v_mul_f32 {v(B_)}, {v(a1)}, {v(Pr)}
              v_mul_f32 {v(D_)}, {v(a1)}, {v(Pi)}
              v_fmac_f32 {v(B_)}, {v(b1)}, {v(Pi)}
              v_fma_f32 {v(D_)}, -{v(b1)}, {v(Pr)}, {v(D_)}
              v_fma_f32 {v(a1)}, {v(A_)}, {v(Mr)}, {v(B_)}
              v_fma_f32 {v(b1)}, {v(A_)}, {v(Mi)}, {v(D_)}
              v_fma_f32 {v(A_)}, {v(G_)}, {v(Mi)}, {v(a1)}
              v_fma_f32 {v(G_)}, -{v(G_)}, {v(Mr)}, {v(b1)}
              v_fma_f32 {v(B_)}, {v(B_)}, 2.0, -{v(A_)}
              v_fma_f32 {v(D_)}, {v(D_)}, -2.0, {v(G_)}""")
        if r == 0:
            a("s_cmp_lg_u32 s2, 0")
            a("s_cbranch_scc1 NOFIX")
            a("s_mov_b32 exec_hi, 0")
            a(f"""v_mul_f32 {v(A_)}, {v(AF)}, {v(Pr)}
                  v_mul_f32 {v(G_)}, {v(AF)}, {v(Pi)}
                  v_mul_f32 {v(D_)}, {v(AF+1)}, {v(Mr)}
                  v_mul_f32 {v(B_)}, {v(AF+1)}, {v(Mi)}
                  v_fmac_f32 {v(A_)}, {v(AF+2)}, {v(Pi)}
                  v_fma_f32 {v(G_)}, -{v(AF+2)}, {v(Pr)}, {v(G_)}
                  v_fmac_f32 {v(D_)}, {v(AF+3)}, {v(Mi)}
                  v_fma_f32 {v(B_)}, -{v(AF+3)}, {v(Mr)}, {v(B_)}""")
            a("s_mov_b32 exec_hi, -1")
            a.raw("NOFIX:")
        if r < 2:
            for x in wrd(r + 14): a(x)
        if r & 1:
            for i in range(4): a(f"v_cvt_pk_bf16_f32 {v(AF+8*i+(r>>1))}, {v(AC+16*i+r-1)}, {v(AC+16*i+r)}")
    st()
    def i2(i0):
        o0, o1 = AC + 16 * i0, AC + 16 * i0 + 16
        S, D = AF + 8 * i0, AF + 8 * i0 + 8
        return [m32(o0, S, Tf(0, 0), '0'), m32(o0, S + 4, Tf(0, 1)), m32(o0, D, Tf(3, 0)), m32(o0, D + 4, Tf(3, 1)),
                m32(o1, S, Tf(1, 0), '0'), m32(o1, S + 4, Tf(1, 1)), m32(o1, D, Tf(2, 0)), m32(o1, D + 4, Tf(2, 1))]
    def gout(i):
        out = []
        for s_ in range(2):
            o = FT + 8 * i + 4 * s_
            out += [f"v_cvt_pk_bf16_f32 {v(o+k)}, {v(AC+16*i+8*s_+2*k)}, {v(AC+16*i+8*s_+2*k+1)}" for k in range(4)]
            out.append(f"ds_write_b128 {v(ga)}, {v(o,4)} offset:{i*8192 + s_*1024}")
        return out
    mm = i2(0) + i2(2)
    for x in mm[:6]: a(x)
    weave(a, mm[6:], gout(0) + gout(1) + gout(2)[:5])
    for x in gout(2)[5:] + gout(3): a(x)
    a.wait(lg=0)
    a("s_barrier")
    st()
    ring = [AF, AF + 16, TF]
    def i1r(ks):
        return [f"ds_read_b128 {v(ring[ks%3]+4*i,4)}, {v(gr)} offset:{i*8192 + ks*1024}" for i in range(4)]
    for x in i1r(0) + i1r(1): a(x)
    for ks in range(7):
        mains = [m32(AC + 16 * i, ring[ks % 3] + 4 * i, IT + 8 * ks + 4 * (i >> 1), '0' if ks == 0 else None) for i in range(4)]
        weave(a, mains, i1r(ks + 2) if ks < 5 else [])
    st()
    for r in range(16):
        x0, x1 = (t1, t2) if r & 1 else (t3, t4)
        a(f"""v_sub_f32 {v(x0)}, {v(AC+r)}, {v(AC+32+r)}
              v_sub_f32 {v(x1)}, {v(AC+16+r)}, {v(AC+48+r)}
              v_add_f32 {v(AC+r)}, {v(AC+r)}, {v(AC+32+r)}
              v_add_f32 {v(AC+16+r)}, {v(AC+16+r)}, {v(AC+48+r)}
              v_cvt_pk_bf16_f32 {v(AC+32+r)}, {v(x0)}, {v(x1)}
              v_cvt_pk_bf16_f32 {v(AC+48+r)}, {v(AC+r)}, {v(AC+16+r)}
              s_add_u32 s49, s53, {(8*(r>>2)+(r&3))*65536}
              buffer_store_dword {v(AC+32+r)}, {v(vo)}, s[16:19], s49 offen sc1
              buffer_store_dword {v(AC+48+r)}, {v(vo)}, s[16:19], s49 offen offset:512 sc1""")
    st()
    a(f"v_lshlrev_b32 {v(t1)}, 7, v1")
    a.wait(vm=0)
    a("s_barrier")
    wave0(a, ["s_mov_b64 exec, 0xff", f"buffer_store_dword {v(t0)}, {v(t1)}, s[16:19], s37 offen offset:128 sc1", "s_mov_b64 exec, -1"])
    st.dump(t1)
    return R.maxv

def kern(a):
    st = Stamp(a)
    a("s_cmp_ge_u32 s2, 0x100")
    a("s_cbranch_scc1 KEND")
    st()
    a("""s_load_dwordx2 s[4:5], s[0:1], 0
         s_load_dwordx2 s[16:17], s[0:1], 72
         s_load_dwordx2 s[28:29], s[0:1], 64""")
    a("""v_lshrrev_b32 v2, 6, v0
         v_and_b32 v1, 63, v0
         v_readfirstlane_b32 s3, v2
         v_lshlrev_b32 v2, 4, v1
         s_mov_b32 s6, 1835008
         s_mov_b32 s7, 0x00020000
         s_mov_b32 s11, 0x00020000
         s_mov_b32 s15, 0x00020000
         s_mov_b32 s18, 0x10000000
         s_mov_b32 s19, 0x00020000
         s_mov_b32 s30, 256
         s_mov_b32 s31, 0x00020000""")
    a("s_cmp_lt_u32 s2, 32")
    a("s_cbranch_scc1 SPEC")
    n0 = st.n
    m1 = ffn(a, st)
    a.raw(".p2align 6")
    a.label("SPEC")
    a.reset_state()
    st.n = n0
    m2 = spec(a, st)
    a.label("KEND")
    a("s_endpgm")
    return max(m1, m2)

def build():
    label = NAME + "_kernel"
    a = Asm()
    a.raw(f"; @launch grid=(256,1,1) block=(512,1,1) lds=163840")
    a.raw('.amdgcn_target "amdgcn-amd-amdhsa--gfx950"\n.text')
    a.raw(f".globl {label}\n.p2align 8\n.type {label},@function\n{label}:")
    nv = kern(a)
    print("vgprs", nv, "instrs", a.nins, file=sys.stderr)
    nv = (nv + 7) // 8 * 8
    a.raw(f""".section .rodata,"a"
.p2align 6
.amdhsa_kernel {label}
  .amdhsa_next_free_vgpr {nv}
  .amdhsa_next_free_sgpr 102
  .amdhsa_accum_offset {nv}
  .amdhsa_group_segment_fixed_size 0
  .amdhsa_kernarg_size 80
  .amdhsa_user_sgpr_count 2
  .amdhsa_user_sgpr_kernarg_segment_ptr 1
  .amdhsa_system_sgpr_workgroup_id_x 1
.end_amdhsa_kernel""")
    return a.text()

if __name__ == "__main__":
    open(sys.argv[1], "w").write(build())
```

```python
import sys, struct, math
sys.path.insert(0, 'work')
from asmlib import *

NAME = "recurrent_scan__spectral_gfnet__swiglu_ffn__prompt"
OFF_H = 0
OFF_V1 = 0x800000
OFF_V2 = 0xA00000
OFF_ST = 0xC00000
OFF_FL = 0xC10000
OFF_DIAG = 0x2000000
OPT = sys.argv[2:]
DIAG = 'diag' in OPT
STAMP_OP = 's_memtime' if 'cyc' in OPT else 's_memrealtime'
LIMIT = 0x20000

def lit(x):
    return "0x%08x" % struct.unpack('<I', struct.pack('<f', x))[0]
def m32(d, a, b, c=None):
    return f"v_mfma_f32_32x32x16_bf16 {v(d,16)}, {v(a,4)}, {v(b,4)}, {v(d,16) if c is None else c}"
def m16(d, a, b, c=None):
    return f"v_mfma_f32_16x16x32_bf16 {v(d,4)}, {v(a,4)}, {v(b,4)}, {v(d,4) if c is None else c}"

def em(a, x):
    if callable(x): x()
    elif isinstance(x, tuple): a(x[0], tag=x[1])
    else: a(x)
def weave(a, mains, fills, span=None):
    n = len(mains) if span is None else min(span, len(mains)); k = len(fills); done = 0
    for i, m in enumerate(mains):
        em(a, m)
        upto = min(k, (k * (i + 1) + n - 1) // n)
        while done < upto:
            em(a, fills[done]); done += 1
def merge(*lists):
    items = []
    for li, l in enumerate(lists):
        for i, x in enumerate(l):
            items.append(((i + 0.5) / len(l), li, i, x))
    items.sort(key=lambda t: (t[0], t[1], t[2]))
    return [t[3] for t in items]

NLAB = [0]
class Stamp:
    def __init__(self, a):
        self.a = a; self.n = 0
    def __call__(self):
        if not DIAG: return
        self.a.raw(f"    {STAMP_OP} s[96:97]")
        self.a.raw("    s_waitcnt lgkmcnt(0)")
        self.a.raw(f"    s_mov_b32 s{66+self.n}, s96")
        self.a.lgq = []
        self.n += 1
        assert self.n <= 30
    def dump(self, vt):
        if not DIAG: return
        a = self.a
        self()
        if 'probe' in OPT:
            NLAB[0] += 1; L = f"PR{NLAB[0]}"
            wgp = int(OPT[OPT.index('probe')+1]); ip = int(OPT[OPT.index('probe')+2])
            if ip < 0: ip += self.n
            a(f"s_lshl_b32 s98, s2, 3\ns_add_u32 s98, s98, s3")
            a(f"s_cmp_lg_u32 s98, {8*wgp+7}")
            a(f"s_cbranch_scc1 {L}")
            a(f"s_sub_u32 s98, s{66+min(ip, self.n-1)}, s66")
            a(f"s_add_u32 s98, s98, {int(OPT[OPT.index('probe')+3])}")
            a(f"s_mov_b32 s99, 0")
            a.raw(f"{L}_L:")
            a.raw(f"    s_memrealtime s[96:97]\n    s_add_u32 s99, s99, 1\n    s_waitcnt lgkmcnt(0)\n    s_sub_u32 s96, s96, s66\n    s_cmp_ge_u32 s96, s98\n    s_cbranch_scc1 {L}\n    s_cmp_lt_u32 s99, 100000\n    s_cbranch_scc1 {L}_L")
            a.raw(f"{L}:")
            return
        if 'dbgdiag' in OPT:
            NLAB[0] += 1; L = f"DD{NLAB[0]}"
            a(f"s_lshl_b32 s98, s2, 3\ns_add_u32 s98, s98, s3")
            a(f"s_cmp_lg_u32 s98, {8*int(OPT[OPT.index('dbgdiag')+1])+7}")
            a(f"s_cbranch_scc1 {L}")
            for i in range(1, min(17, self.n)):
                a(f"s_sub_u32 s98, s{66+i}, s66")
                a(f"v_mov_b32 {v(vt)}, s98")
                a(f"buffer_store_dword {v(vt)}, off, s[28:31], 0 offset:{4*i-4}")
                a.wait(vm=0)
            a.raw(f"{L}:")
            return
        a(f"s_lshl_b32 s98, s2, 3\ns_add_u32 s98, s98, s3\ns_lshl_b32 s98, s98, 7")
        a(f"s_add_u32 s98, s98, {OFF_DIAG}")
        for i in range(self.n):
            a(f"v_mov_b32 {v(vt)}, s{66+i}")
            a(f"buffer_store_dword {v(vt)}, off, s[16:19], s98 offset:{4*i}")
            a.wait(vm=0)

def spin(a, vdst, vaddr, srd, soff, mask, first=True):
    NLAB[0] += 1; L = f"SP{NLAB[0]}"
    a("s_mov_b32 s99, 0")
    if not first:
        a(f"v_cmp_ne_u32 vcc, 1, {v(vdst)}")
        a(f"s_and_b64 vcc, vcc, {mask}")
        a(f"s_cbranch_scc0 {L}_D")
    a(f"s_mov_b64 exec, {mask}")
    a.raw(f"{L}:")
    a.raw(f"    buffer_load_dword {v(vdst)}, {v(vaddr)}, {srd}, {soff} offen sc1")
    a.raw("    s_add_u32 s99, s99, 1")
    a.raw("    s_waitcnt vmcnt(0)")
    a.raw(f"    v_cmp_ne_u32 vcc, 1, {v(vdst)}")
    a.raw("    s_nop 1")
    a.raw("    s_cmp_eq_u64 vcc, 0")
    a.raw(f"    s_cbranch_scc1 {L}_E")
    a.raw(f"    s_cmp_lt_u32 s99, {LIMIT}")
    a.raw(f"    s_cbranch_scc1 {L}")
    a.raw(f"{L}_E:")
    a.raw("    s_mov_b64 exec, -1")
    a.raw(f"{L}_D:")
    if first: a.vmq = []

def wave0(a, lines):
    NLAB[0] += 1; L = f"W0_{NLAB[0]}"
    a("s_cmp_lg_u32 s3, 0")
    a(f"s_cbranch_scc1 {L}")
    for l in lines: a.raw("    " + l)
    a.raw(f"{L}:")

def ffn(a, st):
    XB = 16384; WB = 114688
    X = lambda s: XB + 32768 * s
    W = lambda s: WB + 16384 * s
    USLOT = [X(1), X(1) + 16384, W(1), X(2), X(2) + 16384, W(2), X(0), X(0) + 16384, W(0),
             X(1), X(1) + 16384, W(1), X(2), X(2) + 16384]
    a("""s_load_dwordx2 s[8:9], s[0:1], 32
         s_load_dwordx2 s[12:13], s[0:1], 40
         s_load_dwordx2 s[20:21], s[0:1], 48
         s_load_dwordx2 s[24:25], s[0:1], 56""")
    a("""s_mov_b32 s10, 1605632
         s_mov_b32 s14, 1605632
         s_mov_b32 s22, 1605632
         s_mov_b32 s23, 0x00020000
         s_mov_b32 s26, 1835008
         s_mov_b32 s27, 0x00020000""")
    R = RegAlloc(start=3, limit=256)
    t0 = R.get(); t1 = R.get(); t2 = R.get()
    vx = [R.get(), R.get()]; vw = R.get(); vd = R.get()
    xa = [[R.get(), R.get()] for _ in range(2)]
    wa = [[R.get(), R.get()] for _ in range(2)]
    da = [R.get() for _ in range(4)]
    big = R.get(144, 2)
    acc = [[[big + 32 * mat + 16 * F + 4 * nt for nt in range(4)] for F in range(2)] for mat in range(2)]
    wf = [[big + 64 + 16 * b + 4 * i for i in range(4)] for b in range(2)]
    xf = [[big + 96 + 16 * b + 4 * i for i in range(4)] for b in range(2)]
    cs = [big + 128, big + 132]; ones = big + 136; stv = big + 140
    wd = [R.get(16, 2) for _ in range(5)]
    sp = R.get(8, 2)
    a("""s_and_b32 s33, s2, 7
         s_lshr_b32 s47, s2, 3
         s_sub_u32 s47, s47, 4
         s_mul_i32 s34, s47, 37
         s_lshr_b32 s34, s34, 8
         s_mul_i32 s35, s34, 7
         s_sub_u32 s35, s47, s35
         s_and_b32 s36, s33, 4
         s_add_u32 s36, s36, s34
         s_and_b32 s37, s33, 3
         s_mul_i32 s37, s37, 7
         s_add_u32 s37, s37, s35
         s_and_b32 s38, s3, 3
         s_lshr_b32 s39, s3, 2""")
    a(f"""v_lshrrev_b32 {v(t0)}, 3, v1
          v_and_b32 {v(t1)}, 7, v1
          v_lshrrev_b32 {v(t2)}, 4, v1
          v_xor_b32 {v(vx[1])}, {v(t1)}, {v(t2)}
          v_lshlrev_b32 {v(vx[1])}, 4, {v(vx[1])}
          v_mul_u32_u24 {v(vx[0])}, 28672, {v(t0)}
          v_add_u32 {v(vx[0])}, {v(vx[0])}, {v(vx[1])}
          v_xor_b32 {v(vx[1])}, 64, {v(vx[0])}""")
    a(f"""s_lshl_b32 s48, s36, 2
          s_add_u32 s48, s48, s38
          s_mul_i32 s40, s48, 896
          s_mul_i32 s49, s39, {32*28672}
          s_add_u32 s40, s40, s49""")
    for i in range(1, 4): a(f"s_add_u32 s{40+i}, s40, {i*(8*28672-1024)}")
    a(f"""s_lshl_b32 s44, s38, 13
          s_lshl_b32 s49, s39, 12
          s_add_u32 s44, s44, s49""")
    def xdma(c):
        out = []
        for i in range(4):
            def f(i=i):
                a(f"s_add_u32 m0, s44, {X(c%3) - c*128}")
                a(f"buffer_load_dwordx4 {v(vx[i&1])}, s[4:7], s{40+i} offen offset:{i*1024 + c*128} lds", tag=('x', c))
            out.append(f)
        return out
    def wdma(c):
        out = []
        for mat in range(2):
            def f(mat=mat):
                a(f"s_add_u32 m0, s46, {W(c%3) + mat*1024}")
                a(f"s_add_u32 s49, s45, {c*64*3584}")
                a(f"buffer_load_dwordx4 {v(vw)}, s[{8+4*mat}:{11+4*mat}], s49 offen lds", tag=('x', c))
            out.append(f)
        return out
    a(f"""v_and_b32 {v(vw)}, 1, {v(t2)}
          s_and_b32 s49, s3, 1
          s_lshl_b32 s49, s49, 1
          v_or_b32 {v(vw)}, s49, {v(vw)}
          v_lshlrev_b32 {v(vw)}, 1, {v(vw)}
          v_xor_b32 {v(vw)}, {v(vw)}, {v(t1)}
          v_lshlrev_b32 {v(vw)}, 4, {v(vw)}
          v_mul_u32_u24 {v(vd)}, 3584, {v(t0)}
          v_add_u32 {v(vw)}, {v(vw)}, {v(vd)}
          s_mul_i32 s45, s3, {8*3584}
          s_lshl_b32 s49, s37, 7
          s_add_u32 s45, s45, s49
          s_lshl_b32 s46, s3, 11""")
    a.wait_smem()
    st()
    for c in range(3):
        for f in xdma(c) + wdma(c): f()
    a(f"""v_lshlrev_b32 {v(vd)}, 1, {v(t2)}
          v_xor_b32 {v(vd)}, {v(vd)}, {v(t1)}
          v_lshlrev_b32 {v(vd)}, 4, {v(vd)}
          v_mul_u32_u24 {v(t0)}, 896, {v(t0)}
          v_add_u32 {v(vd)}, {v(vd)}, {v(t0)}""")
    a(f"""s_lshl_b32 s50, s33, 2
          s_add_u32 s50, s50, s34
          s_mul_i32 s51, s38, {448*896}
          s_mul_i32 s49, s39, {16*896}
          s_add_u32 s51, s51, s49
          s_lshl_b32 s49, s35, 7
          s_add_u32 s51, s51, s49
          s_add_u32 s52, s51, {8*896-1024}
          s_xor_b32 s49, s39, s50
          s_and_b32 s49, s49, 1
          s_lshl_b32 s49, s49, 11
          s_lshl_b32 s53, s38, 12
          s_add_u32 s53, s53, s49""")
    def ddma(u):
        out = []
        for i in range(2):
            def f(i=i):
                a(f"s_add_u32 m0, s53, {USLOT[u]}")
                a(f"s_add_u32 s49, s{51+i}, {u*28672}")
                a(f"buffer_load_dwordx4 {v(vd)}, s[20:23], s49 offen offset:{i*1024} lds", tag=('d', u))
            out.append(f)
        return out
    a(f"""v_and_b32 {v(t0)}, 15, v1
          v_bfe_u32 {v(t1)}, v1, 1, 3
          v_xor_b32 {v(t1)}, {v(t1)}, {v(t2)}
          s_and_b32 s49, s38, 2
          s_lshl_b32 s49, s49, 1
          v_xor_b32 {v(t1)}, s49, {v(t1)}
          v_lshlrev_b32 {v(t1)}, 4, {v(t1)}
          v_lshl_add_u32 {v(t1)}, {v(t0)}, 7, {v(t1)}
          s_lshl_b32 s49, s38, 13
          s_add_u32 s49, s49, {XB}
          v_add_u32 {v(xa[0][0])}, s49, {v(t1)}
          v_xor_b32 {v(xa[1][0])}, 64, {v(xa[0][0])}
          v_add_u32 {v(xa[0][1])}, 0x10000, {v(xa[0][0])}
          v_add_u32 {v(xa[1][1])}, 0x10000, {v(xa[1][0])}""")
    a(f"""v_bfe_u32 {v(t0)}, v1, 3, 2
          s_lshl_b32 s49, s39, 1
          s_and_b32 s54, s38, 1
          s_or_b32 s49, s49, s54
          v_xor_b32 {v(t0)}, s49, {v(t0)}
          v_lshlrev_b32 {v(t0)}, 5, {v(t0)}
          v_bfe_u32 {v(t1)}, v1, 2, 2
          v_lshl_add_u32 {v(t0)}, {v(t1)}, 7, {v(t0)}
          v_and_b32 {v(t1)}, 3, v1
          v_lshl_add_u32 {v(t0)}, {v(t1)}, 3, {v(t0)}
          v_lshl_add_u32 {v(t0)}, {v(t2)}, 11, {v(t0)}
          s_and_b32 s49, s38, 2
          s_lshl_b32 s49, s49, 12
          s_add_u32 s49, s49, {WB}
          v_add_u32 {v(wa[0][0])}, s49, {v(t0)}
          v_xor_b32 {v(wa[0][1])}, 32, {v(wa[0][0])}
          v_xor_b32 {v(wa[1][0])}, 0x2000, {v(wa[0][0])}
          v_xor_b32 {v(wa[1][1])}, 0x2000, {v(wa[0][1])}""")
    a(f"""v_bfe_u32 {v(t0)}, v1, 3, 2
          s_and_b32 s49, s38, 2
          v_xor_b32 {v(t0)}, s49, {v(t0)}
          v_lshlrev_b32 {v(t0)}, 5, {v(t0)}
          v_lshl_add_u32 {v(t0)}, {v(t1)}, 3, {v(t0)}
          v_lshrrev_b32 {v(t1)}, 2, v1
          v_lshl_add_u32 {v(t0)}, {v(t1)}, 7, {v(t0)}
          s_lshl_b32 s49, s38, 12
          s_add_u32 s49, s49, {USLOT[0]}
          v_add_u32 {v(da[0])}, s49, {v(t0)}""")
    for i in range(1, 4): a(f"v_xor_b32 {v(da[i])}, {32*i}, {v(da[0])}")
    for i in range(4): a(f"v_mov_b32 {v(ones+i)}, 0x3f803f80")
    dbase = [USLOT[0]]
    def dreads(u):
        out = []
        off = USLOT[u] - dbase[0]
        if off < 0 or off > 49152:
            for i in range(4): out.append(f"v_add_u32 {v(da[i])}, {off & 0xffffffff:#x}, {v(da[i])}")
            dbase[0] = USLOT[u]; off = 0
        for i in range(4):
            for h in range(2):
                out.append(f"ds_read_b64_tr_b16 {v(wd[u%5]+4*i+2*h,2)}, {v(da[i])} offset:{off + h*2048}")
        return out
    tch = sp; dbg = sp + 1; pv = sp + 2; sta = sp + 3
    a(f"""v_min_u32 {v(tch)}, 55, v1
          v_lshlrev_b32 {v(tch)}, 7, {v(tch)}
          s_mul_i32 s55, s47, {448*128}
          s_mul_i32 s49, s3, {56*128}
          s_add_u32 s55, s55, s49
          v_or_b32 {v(dbg)}, 32, v1
          v_lshlrev_b32 {v(dbg)}, 2, {v(dbg)}
          v_and_b32 {v(sta)}, 15, v1
          v_lshlrev_b32 {v(sta)}, 4, {v(sta)}
          s_lshl_b32 s56, s48, 8
          s_add_u32 s56, s56, {OFF_ST}""")
    def wreads(S):
        c, e = divmod(S, 2)
        return [f"ds_read_b64_tr_b16 {v(wf[S&1][2*mat+F]+2*u,2)}, {v(wa[e][F])} offset:{(c%3)*16384 + mat*1024 + u*512}"
                for F in range(2) for mat in range(2) for u in range(2)]
    def xreads(S):
        c, e = divmod(S, 2); s = c % 3
        return [f"ds_read_b128 {v(xf[S&1][nt],4)}, {v(xa[e][s>>1])} offset:{(s&1)*32768 + nt*2048}" for nt in range(4)]
    def reads(S):
        w = wreads(S); x = xreads(S)
        return [x[0]] + w[0:4] + [x[1]] + w[4:8] + [x[2], x[3]]
    a.wait_tag(('x', 0))
    a("s_barrier")
    st()
    for x in reads(0): a(x)
    for S in range(14):
        c, e = divmod(S, 2)
        mains = []
        for nt in range(4):
            for F in range(2):
                for mat in range(2):
                    mains.append(m16(acc[mat][F][nt], wf[S & 1][2 * mat + F], xf[S & 1][nt], '0' if S == 0 else None))
        if e == 0:
            for mat in range(2):
                mains.insert(2 + mat, m16(cs[mat], wf[S & 1][2 * mat], ones, '0' if S == 0 else None))
        pre = []; rd = []; dm = []; ex = []
        if e == 1:
            def sync(c=c):
                if c < 6: a.wait_tag(('x', c + 1))
                if c == 5: a.wait_tag(('d', 2))
                if c == 6: a.wait_tag(('d', 4))
                a.wait(lg=0)
                a("s_barrier")
            pre = [sync]
            if c + 3 <= 6: dm = xdma(c + 3) + wdma(c + 3)
            if c == 4: dm = ddma(0) + ddma(1) + ddma(2)
            if c == 5: dm = ddma(3) + ddma(4) + ddma(5)
            if c == 6: dm = ddma(6) + ddma(7) + ddma(8)
        if S < 13: rd = reads(S + 1)
        if S == 2: dm = [f"buffer_load_dword {v(pv)}, {v(tch)}, s[20:23], s55 offen"]
        if S == 8: dm = [f"buffer_load_dword {v(pv)}, {v(dbg)}, s[28:31], 0 offen sc1"]
        if S == 10:
            def chk():
                spin(a, pv, dbg, 's[28:31]', '0', '-1', first=False)
                a(f"buffer_load_dwordx4 {v(stv,4)}, {v(sta)}, s[16:19], s56 offen sc1")
            dm = [chk]
        if S == 11: ex = dreads(0) + dreads(1)[:4]
        if S == 12:
            ex = dreads(1)[4:] + dreads(2)
            ex += [f"s_lshl_b32 s49, s3, 11", f"v_add_u32 {v(t0)}, s49, v2",
                   f"ds_write_b128 {v(t0)}, {v(cs[0],4)}", f"ds_write_b128 {v(t0)}, {v(cs[1],4)} offset:1024"]
        if S == 13:
            r0 = wf[0][0]
            ex = [f"s_and_b32 s49, s3, 5", f"s_lshl_b32 s49, s49, 11", f"v_add_u32 {v(t0)}, s49, v2", f"v_xor_b32 {v(t1)}, 0x800, {v(t0)}"]
            for F in range(2):
                for mat in range(2):
                    for hp in range(2):
                        dst = (wf[0][0] if hp == 0 else xf[0][0]) + 8 * mat + 4 * F
                        ex.append(f"ds_read_b128 {v(dst,4)}, {v(t1 if F else t0)} offset:{hp*4096 + mat*1024}")
            ex += dreads(3) + dreads(4)
        fills = pre + merge(*[l for l in (rd, dm) if l]) + ex if (rd or dm) else pre + ex
        weave(a, mains, fills)
    st()
    cv = wf[0][0]
    nm = wf[1][0]; c1 = nm + 4; d2 = nm + 8
    for i in range(4):
        a(f"v_lshlrev_b32 {v(d2+i)}, 16, {v(stv+i)}")
        a(f"v_and_b32 {v(nm+i)}, 0xffff0000, {v(stv+i)}")
        a(f"v_rcp_f32 {v(c1+i)}, {v(d2+i)}")
    for i in range(16): a(f"v_add_f32 {v(cv+i)}, {v(cv+i)}, {v(xf[0][0]+i)}")
    for i in range(4):
        a(f"v_mul_f32 {v(d2+i)}, {v(d2+i)}, {v(d2+i)}")
        a(f"v_mul_f32 {v(c1+i)}, {lit(-math.log2(math.e))}, {v(c1+i)}")
    a(f"""s_mul_i32 s57, s48, 56
          s_lshl_b32 s49, s37, 1
          s_add_u32 s57, s57, s49
          s_add_u32 s57, s57, s39
          s_lshl_b32 s57, s57, 12""")
    late = ddma(9) + ddma(10) + ddma(11)
    for nt in range(4):
        e = xf[0][0] + 8 * (nt & 1); hp = xf[1][nt]
        idx = [(F, r) for F in range(2) for r in range(4)]
        G = lambda F, r: acc[0][F][nt] + r
        U = lambda F, r: acc[1][F][nt] + r
        for F, r in idx: a(f"v_fmac_f32 {v(G(F,r))}, {v(cv+4*F+r)}, {v(nm+nt)}")
        for F, r in idx: a(f"v_mul_f32 {v(e+4*F+r)}, {v(c1+nt)}, {v(G(F,r))}")
        if nt < 3: late[2 * nt]()
        for F, r in idx:
            a(f"v_exp_f32 {v(e+4*F+r)}, {v(e+4*F+r)}")
            a(f"v_fmac_f32 {v(U(F,r))}, {v(cv+8+4*F+r)}, {v(nm+nt)}")
        for F, r in idx: a(f"v_fma_f32 {v(e+4*F+r)}, {v(e+4*F+r)}, {v(d2+nt)}, {v(d2+nt)}")
        if nt < 3: late[2 * nt + 1]()
        for F, r in idx:
            a(f"v_rcp_f32 {v(e+4*F+r)}, {v(e+4*F+r)}")
            a(f"v_mul_f32 {v(U(F,r))}, {v(U(F,r))}, {v(G(F,r))}")
        for F, r in idx: a(f"v_mul_f32 {v(U(F,r))}, {v(U(F,r))}, {v(e+4*F+r)}")
        for i in range(4): a(f"v_cvt_pk_bf16_f32 {v(hp+i)}, {v(U(i>>1,2*(i&1)))}, {v(U(i>>1,2*(i&1)+1))}")
        a(f"buffer_store_dwordx4 {v(hp,4)}, v2, s[16:19], s57 offen offset:{nt*1024} sc1")
    st()
    T2 = sp
    vh = vx; pa = vw; pv = xa[0][0]; vo = xa[0][1]; v2a = xa[1][0]; one = xa[1][1]
    xv = wa[0][0]
    assert xv % 2 == 0 and wa[1][1] == xv + 3
    tmp = acc[0][0][0]
    a(f"""s_and_b32 s54, s38, 1
          s_lshl_b32 s58, s39, 1
          s_add_u32 s58, s58, s54
          s_lshl_b32 s49, s54, 10
          v_add_u32 {v(vh[0])}, s49, v2
          v_xor_b32 {v(vh[1])}, 0x400, {v(vh[0])}
          s_mul_i32 s59, s50, 56
          s_mul_i32 s49, s38, 14
          s_add_u32 s59, s59, s49
          s_lshl_b32 s59, s59, 12
          s_lshl_b32 s49, s39, 11
          s_add_u32 s59, s59, s49
          s_lshl_b32 s60, s36, 2
          s_and_b32 s49, s33, 3
          s_add_u32 s60, s60, s49
          s_lshl_b32 s60, s60, 4
          s_add_u32 s60, s60, s35
          s_lshl_b32 s60, s60, 7
          s_add_u32 s60, s60, {OFF_FL + 9*128}
          s_lshl_b32 s61, s33, 2
          s_add_u32 s61, s61, s38
          s_lshl_b32 s61, s61, 11
          s_add_u32 s61, s61, {OFF_FL + 9*128}
          s_lshl_b32 s62, s3, 13
          s_lshl_b32 s49, s33, 7
          s_add_u32 s62, s62, s49
          s_add_u32 s62, s62, {OFF_FL + 128}
          s_lshl_b32 s63, s58, 9
          s_add_u32 s63, s63, s50
          s_mul_i32 s63, s63, 896
          s_lshl_b32 s49, s35, 7
          s_add_u32 s63, s63, s49
          s_and_b32 s49, s38, 2
          s_lshl_b32 s49, s49, 5
          s_add_u32 s63, s63, s49
          v_lshlrev_b32 {v(pa)}, 7, v1
          v_mov_b32 {v(one)}, 1
          v_and_b32 {v(t0)}, 15, v1
          v_mul_u32_u24 {v(vo)}, 28672, {v(t0)}
          v_lshl_add_u32 {v(vo)}, {v(t2)}, 3, {v(vo)}""")
    a(f"""s_lshl_b32 s49, s58, 4
          v_add_u32 {v(t0)}, s49, {v(t0)}
          v_cvt_f32_u32 {v(t0)}, {v(t0)}
          v_mul_f32 {v(t0)}, {lit(1/64)}, {v(t0)}
          v_cvt_f32_u32 {v(t1)}, {v(t2)}
          v_mul_f32 {v(t1)}, 4.0, {v(t1)}
          v_mul_f32 {v(tmp)}, {v(t1)}, {v(t0)}""")
    for k in range(1, 8): a(f"v_fmamk_f32 {v(tmp+k)}, {v(t0)}, {lit(float(16*(k>>2)+(k&3)))}, {v(tmp)}")
    for k in range(8): a(f"v_cos_f32 {v(tmp+8+k)}, {v(tmp+k)}")
    for k in range(8): a(f"v_sin_f32 {v(tmp+k)}, {v(tmp+k)}")
    a(f"""v_lshlrev_b32 {v(t1)}, 31, v1
          v_or_b32 {v(t1)}, 1.0, {v(t1)}
          v_cmp_gt_u32 vcc, 16, v1
          v_cndmask_b32 {v(tmp)}, {v(tmp)}, {v(t1)}, vcc""")
    for k in range(8): a(f"v_cvt_pk_bf16_f32 {v(T2+k)}, {v(tmp+8+k)}, {v(tmp+k)}")
    a(f"""v_bfe_u32 {v(t0)}, v1, 2, 2
          s_and_b32 s49, s3, 1
          v_xor_b32 {v(t0)}, s49, {v(t0)}
          s_lshl_b32 s49, s35, 2
          v_add_u32 {v(t0)}, s49, {v(t0)}
          v_subrev_u32 {v(t1)}, 14, {v(t0)}
          v_min_u32 {v(t0)}, {v(t0)}, {v(t1)}
          v_lshlrev_b32 {v(t0)}, 6, {v(t0)}
          v_sub_u32 {v(t1)}, 1344, {v(t0)}
          v_cmp_gt_u32 vcc, 448, {v(t0)}
          v_cndmask_b32 {v(t0)}, {v(t1)}, {v(t0)}, vcc
          v_lshl_add_u32 {v(t0)}, {v(t2)}, 10, {v(t0)}
          v_and_b32 {v(t1)}, 3, v1
          v_lshl_add_u32 {v(v2a)}, {v(t1)}, 4, {v(t0)}""")
    a.wait(vm=0, lg=0)
    a("s_barrier")
    wave0(a, ["s_mov_b64 exec, 1", f"buffer_store_dword {v(one)}, off, s[16:19], s60 sc1", "s_mov_b64 exec, -1"])
    st()
    for f in ddma(12) + ddma(13): f()
    spin(a, pv, pa, 's[16:19]', 's61', '0x7f')
    st()
    hf = [[big + 8 * s + 4 * N for N in range(2)] for s in range(14)]
    ab = [[big + 112 + 16 * N + 4 * i for i in range(4)] for N in range(2)]
    for s in range(14):
        a(f"s_add_u32 s49, s59, {s*4096}")
        for N in range(2):
            a(f"buffer_load_dwordx4 {v(hf[s][N],4)}, {v(vh[N])}, s[16:19], s49 offen sc1")
    for cl in range(2):
        a(f"buffer_load_dwordx2 {v(xv+2*cl,2)}, {v(vo)}, s[4:7], s63 offen offset:{cl*32}")
    a(f"v_lshlrev_b32 {v(pa)}, 11, v1")
    for s in range(14):
        mains = [m16(ab[N][i], wd[s % 5] + 4 * i, hf[s][N], '0' if s == 0 else None) for N in range(2) for i in range(4)]
        for m in mains: a(m)
        if s == 0: st()
        if s == 7:
            a.wait(lg=0)
            a("s_barrier")
        if s + 5 < 14:
            for x in dreads(s + 5): a(x)
    st()
    for k in range(1, 4):
        C, N = k >> 1, k & 1
        a(f"s_xor_b32 s49, s3, {k}")
        a(f"s_mul_i32 s49, s49, 6144")
        a(f"v_add_u32 {v(t0)}, s49, v2")
        for cl in range(2):
            a(f"ds_write_b128 {v(t0)}, {v(ab[N][2*C+cl],4)} offset:{XB + (k-1)*2048 + cl*1024}")
    a(f"s_mul_i32 s49, s3, 6144")
    a(f"v_add_u32 {v(t0)}, s49, v2")
    va = [da[0], da[1]]
    for cl in range(2):
        a(f"""s_and_b32 s49, s38, 2
              s_add_u32 s49, s49, {cl}
              s_lshl_b32 s54, s35, 2
              s_add_u32 s54, s54, s49
              s_cmp_ge_u32 s54, 14
              s_cselect_b32 s64, 14, 0
              s_cselect_b32 s65, 0x80008000, 0
              s_sub_u32 s54, s54, s64
              s_cmp_ge_u32 s54, 7
              s_cselect_b32 s64, 15, 0
              s_cselect_b32 s54, 0x80008000, 0
              s_xor_b32 s65, s65, s54
              v_and_b32 {v(t1)}, 1, {v(t2)}
              v_xor_b32 {v(t1)}, s49, {v(t1)}
              v_lshlrev_b32 {v(t1)}, 6, {v(t1)}
              v_lshl_add_u32 {v(t1)}, {v(t2)}, 11, {v(t1)}
              v_and_b32 {v(va[cl])}, 15, v1
              v_xor_b32 {v(va[cl])}, s64, {v(va[cl])}
              v_lshl_add_u32 {v(va[cl])}, {v(va[cl])}, 2, {v(t1)}""")
        for k in range(8): a(f"v_xor_b32 {v(wd[0]+8*cl+k)}, s65, {v(T2+k)}")
    a.wait(lg=0)
    a("s_barrier")
    pr = big
    for k in range(3):
        for cl in range(2):
            a(f"ds_read_b128 {v(pr+8*k+4*cl,4)}, {v(t0)} offset:{XB + k*2048 + cl*1024}")
    y = ab[0][0]; e = big + 32; xs = big + 40
    for i in range(8): a(f"v_add_f32 {v(y+i)}, {v(y+i)}, {v(pr+i)}")
    for i in range(8): a(f"v_add_f32 {v(pr+8+i)}, {v(pr+8+i)}, {v(pr+16+i)}")
    for i in range(8): a(f"v_add_f32 {v(y+i)}, {v(y+i)}, {v(pr+8+i)}")
    for i in range(8): a(f"v_mul_f32 {v(e+i)}, {lit(-math.log2(math.e))}, {v(y+i)}")
    for i in range(8): a(f"v_exp_f32 {v(e+i)}, {v(e+i)}")
    a(f"v_mov_b32 {v(t1)}, {lit(2048*448/2)}")
    for i in range(8): a(f"v_fma_f32 {v(e+i)}, {v(e+i)}, {v(t1)}, {v(t1)}")
    for i in range(8): a(f"v_rcp_f32 {v(e+i)}, {v(e+i)}")
    for i in range(4):
        a(f"v_lshlrev_b32 {v(xs+2*i)}, 16, {v(xv+i)}")
        a(f"v_and_b32 {v(xs+2*i+1)}, 0xffff0000, {v(xv+i)}")
    for i in range(8): a(f"v_mul_f32 {v(y+i)}, {v(y+i)}, {v(e+i)}")
    st()
    a(f"""s_lshl_b32 s54, s50, 16
          s_lshl_b32 s49, s3, 13
          s_add_u32 s54, s54, s49
          s_add_u32 s54, s54, {OFF_V2}
          s_add_u32 s64, s54, 3072
          s_lshl_b32 m0, s3, 11""")
    spin(a, pv, pa, 's[16:19]', 's62', '0xf')
    st()
    a(f"buffer_load_dwordx4 {v(v2a)}, s[16:19], s54 offen sc1 lds")
    a(f"buffer_load_dwordx4 {v(v2a)}, s[16:19], s64 offen offset:1024 sc1 lds")
    a.wait(vm=0)
    a("s_barrier")
    st()
    vf = big + 48; so = big + 80
    n = 0
    for cl in range(2):
        for par in range(2):
            for kk in range(2):
                for hh in range(2):
                    o = (16 * kk + 2 * hh) * 2 + par
                    a(f"ds_read2st64_b32 {v(vf+4*n+2*hh,2)}, {v(va[cl])} offset0:{o} offset1:{o+2}")
                n += 1
    n = 0
    for cl in range(2):
        for par in range(2):
            for kk in range(2):
                b = (T2 if par == 0 else wd[0] + 8 * cl) + 4 * kk
                a(m16(so + 4 * cl, vf + 4 * n, b, '0' if (par == 0 and kk == 0) else None)); n += 1
    for cl in range(2):
        for i in range(4): a(f"v_fmac_f32 {v(xs+4*cl+i)}, {v(so+4*cl+i)}, {v(y+4*cl+i)}")
        for i in range(2): a(f"v_cvt_pk_bf16_f32 {v(xv+2*cl+i)}, {v(xs+4*cl+2*i)}, {v(xs+4*cl+2*i+1)}")
        a(f"buffer_store_dwordx2 {v(xv+2*cl,2)}, {v(vo)}, s[24:27], s63 offen offset:{cl*32}")
    st.dump(t0)
    a("s_endpgm")
    return R.maxv

def spec(a, st):
    XS = 928; VS = 1032
    WB = 66560; TB = WB + 65536; SB = TB + 16384
    a("""s_load_dwordx2 s[8:9], s[0:1], 8
         s_load_dwordx2 s[12:13], s[0:1], 16
         s_mov_b32 s10, 921600
         s_mov_b32 s14, 921600""")
    R = RegAlloc(start=3, limit=256)
    t0 = R.get(); t1 = R.get(); t2 = R.get(); t3 = R.get(); t4 = R.get()
    mi = R.get(8, 2)
    IT = R.get(56, 2); FT = R.get(56, 2); AC = R.get(64, 2); AF = R.get(32, 2); TF = R.get(32, 2)
    a(f"""s_and_b32 s33, s3, 3
          s_lshr_b32 s34, s3, 2
          s_mul_i32 s35, s2, 896
          s_mul_i32 s49, s3, {8*28672}
          s_add_u32 s35, s35, s49
          s_mul_i32 s36, s3, {8*XS}
          s_lshl_b32 s37, s2, 11
          s_add_u32 s37, s37, {OFF_FL}
          v_lshlrev_b32 {v(t0)}, 7, v1
          v_mov_b32 {v(t1)}, 0""")
    a.wait_smem()
    st()
    a("s_mov_b32 exec_hi, 0x00ffffff")
    for i in range(8):
        a(f"s_add_u32 m0, s36, {i*XS}")
        a(f"s_add_u32 s49, s35, {i*28672}")
        a(f"buffer_load_dwordx4 v2, s[4:7], s49 offen lds", tag='x')
    a("s_mov_b32 exec_hi, -1")
    wave0(a, ["s_mov_b64 exec, 0xffff", f"buffer_store_dword {v(t1)}, {v(t0)}, s[16:19], s37 offen sc1", "s_mov_b64 exec, -1"])
    a(f"""s_lshl_b32 s38, s3, 8
          s_add_u32 s38, s38, s2
          s_mul_i32 s49, s34, 992
          s_cmp_eq_u32 s2, 0
          s_cselect_b32 s49, s49, 0
          s_sub_u32 s38, s38, s49
          s_sub_u32 s39, 2048, s38
          s_cmp_eq_u32 s38, 0
          s_cselect_b32 s40, 1024, s39
          v_and_b32 {v(t0)}, 31, v1
          v_lshlrev_b32 {v(t0)}, 4, {v(t0)}
          v_add_u32 {v(t0)}, 2, {v(t0)}
          v_cmp_gt_u32 vcc, 32, v1
          v_mov_b32 {v(t1)}, s38
          v_mov_b32 {v(t2)}, s39
          v_mov_b32 {v(t3)}, s40
          v_cndmask_b32 {v(t2)}, {v(t2)}, {v(t1)}, vcc
          v_cndmask_b32 {v(t3)}, {v(t3)}, {v(t1)}, vcc
          v_mov_b32 {v(t1)}, 450
          v_mad_u32_u24 {v(t2)}, {v(t2)}, {v(t1)}, {v(t0)}
          v_mad_u32_u24 {v(t3)}, {v(t3)}, {v(t1)}, {v(t0)}
          v_mov_b32 {v(t0)}, {(-28800) & 0xffffffff:#x}
          v_mov_b32 {v(t1)}, 28800
          v_cndmask_b32 {v(t0)}, {v(t0)}, {v(t1)}, vcc
          s_lshl_b32 s41, s3, 13""")
    for i in range(4):
        if i: a(f"v_add_u32 {v(t2)}, {v(t2)}, {v(t0)}")
        for mat in range(2):
            a(f"s_add_u32 m0, s41, {WB + i*2048 + mat*1024}")
            a(f"buffer_load_dwordx4 {v(t2 if i else t3)}, s[{8+4*mat}:{11+4*mat}], 0 offen lds", tag='w')
    a(f"""v_and_b32 {v(t0)}, 15, v1
          s_lshl_b32 s49, s33, 4
          v_add_u32 {v(t0)}, s49, {v(t0)}
          v_cmp_eq_u32 vcc, 1, {v(t0)}
          v_cndmask_b32 {v(t0)}, {v(t0)}, 64, vcc
          v_and_b32 {v(t1)}, 1, {v(t0)}
          v_cvt_f32_u32 {v(t1)}, {v(t1)}
          v_mul_f32 {v(t1)}, {lit(-0.25)}, {v(t1)}
          v_lshrrev_b32 {v(t0)}, 1, {v(t0)}
          v_cvt_f32_u32 {v(t0)}, {v(t0)}
          v_mul_f32 {v(t0)}, {lit(1/64)}, {v(t0)}
          v_lshrrev_b32 {v(t4)}, 4, v1
          v_lshlrev_b32 {v(t2)}, 2, {v(t4)}
          v_cvt_f32_u32 {v(t2)}, {v(t2)}
          v_fma_f32 {v(TF)}, {v(t2)}, {v(t0)}, {v(t1)}""")
    for k in range(1, 16): a(f"v_fmamk_f32 {v(TF+k)}, {v(t0)}, {lit(float(16*(k>>2)+(k&3)))}, {v(TF)}")
    for k in range(16): a(f"v_cos_f32 {v(TF+k)}, {v(TF+k)}")
    a(f"""v_lshrrev_b32 {v(t0)}, 2, v1
          v_mul_u32_u24 {v(t0)}, {XS}, {v(t0)}
          v_and_b32 {v(t1)}, 3, v1
          v_lshlrev_b32 {v(t1)}, 3, {v(t1)}
          v_add_u32 {v(t2)}, {v(t0)}, {v(t1)}
          v_sub_u32 {v(t3)}, {v(t0)}, {v(t1)}
          s_lshl_b32 s42, s34, 7
          s_lshl_b32 s49, s34, 3
          s_sub_u32 s43, 32, s49""")
    for t in range(4):
        if t: a("s_add_u32 s42, s42, s43")
        a(f"v_add_u32 {v(mi+t)}, s42, {v(t2)}")
        a(f"s_sub_u32 s49, 440, s42")
        a(f"v_add_u32 {v(mi+4+t)}, s49, {v(t3)}")
    tv = AC
    a(f"""s_lshr_b32 s44, s3, 1
          s_and_b32 s44, s44, 1
          s_and_b32 s45, s3, 1
          v_and_b32 {v(t0)}, 31, v1
          v_lshrrev_b32 {v(t1)}, 5, v1
          v_lshlrev_b32 {v(t1)}, 2, {v(t1)}
          s_lshl_b32 s49, s44, 4
          v_add_u32 {v(t1)}, s49, {v(t1)}
          s_cmp_eq_u32 s34, 0
          s_cselect_b64 vcc, -1, 0
          v_cndmask_b32 {v(t2)}, {v(t1)}, {v(t0)}, vcc
          v_cndmask_b32 {v(t3)}, {v(t0)}, {v(t1)}, vcc""")
    a(f"""v_cmp_le_u32 s[46:47], 16, {v(t2)}
          v_cmp_eq_u32 s[50:51], 0, {v(t2)}
          s_cmp_eq_u32 s2, 0
          s_cselect_b64 s[52:53], -1, 0
          s_and_b64 s[54:55], s[46:47], s[52:53]
          s_and_b64 s[50:51], s[50:51], s[52:53]
          s_cmp_eq_u32 s45, 1
          s_cselect_b64 s[50:51], s[50:51], 0
          s_and_b64 s[56:57], s[50:51], vcc
          v_lshlrev_b32 {v(t2)}, 6, {v(t2)}
          v_add_u32 {v(t2)}, s2, {v(t2)}
          v_subrev_u32 {v(t0)}, 992, {v(t2)}
          v_cndmask_b32 {v(t2)}, {v(t2)}, {v(t0)}, s[54:55]
          v_mov_b32 {v(t0)}, 1024
          v_cndmask_b32 {v(t2)}, {v(t2)}, {v(t0)}, s[56:57]
          v_cvt_f32_u32 {v(t2)}, {v(t2)}
          v_cvt_f32_u32 {v(t3)}, {v(t3)}
          v_mul_f32 {v(t2)}, {lit(1/2048)}, {v(t2)}
          v_mul_f32 {v(t0)}, {lit(1/32)}, {v(t3)}
          v_cndmask_b32 {v(t0)}, {v(t0)}, {v(t2)}, vcc
          s_cmp_eq_u32 s45, 1
          s_cselect_b32 s49, {lit(-0.25)}, 0
          v_mov_b32 {v(t1)}, s49
          v_cndmask_b32 {v(t1)}, {v(t1)}, 0, s[56:57]
          v_fma_f32 {v(tv)}, {v(t2)}, {v(t3)}, {v(t1)}""")
    for i in range(1, 8): a(f"v_fmamk_f32 {v(tv+i)}, {v(t0)}, {lit(float(8*(i>>2)+(i&3)))}, {v(tv)}")
    a(f"v_mul_f32 {v(t3)}, 0.5, {v(t3)}")
    a(f"v_cndmask_b32 {v(tv)}, {v(tv)}, {v(t3)}, s[50:51]")
    for i in range(8): a(f"v_cos_f32 {v(tv+i)}, {v(tv+i)}")
    for i in range(4): a(f"v_cvt_pk_bf16_f32 {v(tv+8+i)}, {v(tv+2*i)}, {v(tv+2*i+1)}")
    a(f"""s_andn2_b64 s[58:59], s[52:53], s[46:47]
          s_cmp_lg_u32 s2, 0
          s_cselect_b32 s49, s45, 0
          s_mul_i32 s49, s49, 0x80008000""")
    for i in range(4): a(f"v_xor_b32 {v(tv+12+i)}, s49, {v(tv+8+i)}")
    for i in range(4): a(f"v_cndmask_b32 {v(tv+12+i)}, {v(tv+12+i)}, 0, s[58:59]")
    for i in range(4): a(f"v_cndmask_b32 {v(tv+8+i)}, {v(tv+8+i)}, 0, s[54:55]")
    a(f"""s_lshl_b32 s60, s34, 3
          s_add_u32 s60, s60, s44
          s_lshl_b32 s60, s60, 10
          s_add_u32 s60, s60, {TB}
          s_mul_i32 s49, s45, 6144
          s_add_u32 s49, s49, s60
          v_add_u32 {v(t0)}, s49, v2
          s_cmp_eq_u32 s2, 0
          s_cselect_b32 s49, 0, 1
          s_xor_b32 s49, s49, s45
          s_lshl_b32 s49, s49, 11
          s_add_u32 s49, s49, s60
          v_add_u32 {v(t1)}, s49, v2""")
    a(f"ds_write_b128 {v(t0)}, {v(tv+8,4)}")
    a(f"ds_write_b128 {v(t1)}, {v(tv+12,4)} offset:2048")
    a(f"""v_and_b32 {v(t0)}, 31, v1
          s_lshl_b32 s49, s33, 6
          s_add_u32 s49, s49, 2
          s_sub_u32 s49, s49, s34
          v_lshl_add_u32 {v(t0)}, {v(t0)}, 1, s49
          v_cvt_f32_u32 {v(t0)}, {v(t0)}
          v_mul_f32 {v(t0)}, {lit(1/448)}, {v(t0)}
          v_lshrrev_b32 {v(t1)}, 5, v1
          v_cvt_f32_u32 {v(t1)}, {v(t1)}
          v_fma_f32 {v(t1)}, {v(t1)}, 2.0, 0.5
          v_mul_f32 {v(t1)}, {v(t1)}, {v(t0)}""")
    def tabgen(dst, mult, step, base, scr, post=None):
        for ks in range(7):
            an = scr + 16 * (ks & 1); cv = an + 8
            for i in range(8):
                k = mult(ks, i)
                if k == 0: a(f"v_mov_b32 {v(an+i)}, {v(base)}")
                else: a(f"v_fmamk_f32 {v(an+i)}, {v(step)}, {lit(float(k))}, {v(base)}")
            for i in range(8): a(f"v_cos_f32 {v(cv+i)}, {v(an+i)}")
            for i in range(8): a(f"v_sin_f32 {v(an+i)}, {v(an+i)}")
            if post: post(ks, an, cv)
            for i in range(4): a(f"v_cvt_pk_bf16_f32 {v(dst+8*ks+i)}, {v(cv+2*i)}, {v(cv+2*i+1)}")
            for i in range(4): a(f"v_cvt_pk_bf16_f32 {v(dst+8*ks+4+i)}, {v(an+2*i)}, {v(an+2*i+1)}")
    def f1mult(ks, i):
        u, t = i >> 2, i & 3
        P = 4 * t + ks if ks < 4 else 16 + 3 * t + (ks - 4)
        return 4 * P + u
    tabgen(FT, f1mult, t0, t1, AC + 16)
    a(f"""v_lshrrev_b32 {v(t0)}, 3, v1
          v_mul_u32_u24 {v(t1)}, {XS}, {v(t0)}
          v_and_b32 {v(t2)}, 7, v1
          v_lshl_add_u32 {v(t1)}, {v(t2)}, 4, {v(t1)}
          v_add_u32 {v(t1)}, s36, {v(t1)}""")
    s1 = [AF, AF + 1]; s2 = [AF + 2, AF + 3]
    for r in s1 + s2: a(f"v_mov_b32 {v(r)}, 0")
    a(f"""s_lshl_b32 s49, s3, 5
          s_add_u32 s49, s49, {SB}
          v_lshl_add_u32 {v(t2)}, {v(t0)}, 2, s49
          s_lshl_b32 s49, s34, 6
          s_lshl_b32 s46, s45, 5
          s_add_u32 s49, s49, s46
          s_lshl_b32 s46, s44, 3
          s_add_u32 s49, s49, s46
          s_add_u32 s49, s49, {SB + 256}
          v_lshrrev_b32 {v(t3)}, 5, v1
          v_lshl_add_u32 {v(t3)}, {v(t3)}, 4, s49
          v_and_b32 {v(AF+4)}, 3, {v(t0)}
          v_lshl_add_u32 {v(t3)}, {v(AF+4)}, 1, {v(t3)}
          v_lshlrev_b32 {v(AF+4)}, 4, {v(t0)}
          s_lshl_b32 s46, s2, 8
          s_lshl_b32 s49, s45, 7
          s_add_u32 s46, s46, s49
          s_lshr_b32 s49, s3, 1
          s_lshl_b32 s49, s49, 2
          s_add_u32 s46, s46, s49
          s_add_u32 s46, s46, {OFF_ST}
          v_lshlrev_b32 {v(t4)}, 4, {v(t4)}
          v_add_u32 {v(t4)}, {SB}, {v(t4)}""")
    st()
    a.wait_tag('x')
    st()
    for i in range(7): a(f"ds_read_b128 {v(AC+4*i,4)}, {v(t1)} offset:{i*128}")
    for i in range(28):
        a(f"v_dot2c_f32_bf16 {v(s1[i&1])}, 0x3f803f80, {v(AC+i)}")
        a(f"v_dot2c_f32_bf16 {v(s2[i&1])}, {v(AC+i)}, {v(AC+i)}")
    mean = s1[0]; var = s2[0]
    a(f"v_add_f32 {v(mean)}, {v(s1[0])}, {v(s1[1])}")
    a(f"v_add_f32 {v(var)}, {v(s2[0])}, {v(s2[1])}")
    for m in ("quad_perm:[1,0,3,2]", "quad_perm:[2,3,0,1]", "row_half_mirror"):
        for r in (mean, var): a(f"v_add_f32_dpp {v(r)}, {v(r)}, {v(r)} {m} row_mask:0xf bank_mask:0xf")
    nm = s1[1]; rs = s2[1]
    a(f"""v_mul_f32 {v(mean)}, {lit(1/448)}, {v(mean)}
          v_mul_f32 {v(var)}, {lit(1/448)}, {v(var)}
          v_fma_f32 {v(var)}, -{v(mean)}, {v(mean)}, {v(var)}
          v_max_f32 {v(var)}, 0, {v(var)}
          v_cvt_pk_bf16_f32 {v(var)}, {v(var)}, {v(var)}
          v_lshlrev_b32 {v(var)}, 16, {v(var)}
          v_add_f32 {v(var)}, {lit(1e-5)}, {v(var)}
          v_cvt_pk_bf16_f32 {v(var)}, {v(var)}, {v(var)}
          v_lshlrev_b32 {v(var)}, 16, {v(var)}
          v_sqrt_f32 {v(var)}, {v(var)}
          v_cvt_pk_bf16_f32 {v(nm)}, {v(var)}, -{v(mean)}
          v_lshlrev_b32 {v(var)}, 16, {v(nm)}
          v_rcp_f32 {v(rs)}, {v(var)}""")
    a("s_mov_b32 exec_lo, 0x01010101\ns_mov_b32 exec_hi, 0x01010101")
    a(f"ds_write_b16_d16_hi {v(t3)}, {v(nm)}")
    a(f"ds_write_b32 {v(t2)}, {v(rs)}")
    a(f"buffer_store_dword {v(nm)}, {v(AF+4)}, s[16:19], s46 offen sc1", tag='st')
    a("s_mov_b64 exec, -1")
    a.wait(lg=0)
    a("s_barrier")
    st()
    rsv = TF + 16; nmf = AF; Tp = AF + 8; cin = AF + 16
    for k in range(4): a(f"ds_read_b128 {v(rsv+4*k,4)}, {v(t4)} offset:{64*k}")
    for ks in range(2): a(f"ds_read_b128 {v(nmf+4*ks,4)}, {v(t4)} offset:{256 + 64*ks}")
    seq = [(t, arr, ks) for t in range(4) for arr in range(4) for ks in range(2)]
    def xr(n):
        t, arr, ks = seq[n]
        return [f"ds_read_b64_tr_b16 {v(IT+4*(n%14)+2*u,2)}, {v(mi+4*(arr>>1)+t)} offset:{(32*ks+16*u)*XS + 448*(arr&1)}" for u in range(2)]
    for n in range(4):
        for x in xr(n): a(x)
    for k in range(16): a(f"v_mul_f32 {v(TF+k)}, {v(TF+k)}, {v(rsv+k)}")
    for n in range(4, 10):
        for x in xr(n): a(x)
    for k in range(8): a(f"v_cvt_pk_bf16_f32 {v(Tp+k)}, {v(TF+2*k)}, {v(TF+2*k+1)}")
    a(m16(cin, Tp, nmf, '0')); a(m16(cin, Tp + 4, nmf + 4))
    for n in range(10, 14):
        for x in xr(n): a(x)
    A = lambda t, arr: AC + 16 * t + 4 * arr
    def fold(t):
        out = []
        d1 = TF + 8 * (t & 1); d2 = d1 + 4
        for r in range(4):
            out += [f"v_sub_f32 {v(d1+r)}, {v(A(t,0)+r)}, {v(A(t,1)+r)}",
                    f"v_add_f32 {v(A(t,0)+r)}, {v(A(t,0)+r)}, {v(A(t,1)+r)}"]
        for r in range(4):
            out += [f"v_sub_f32 {v(d2+r)}, {v(A(t,2)+r)}, {v(A(t,3)+r)}",
                    f"v_add_f32 {v(A(t,2)+r)}, {v(A(t,2)+r)}, {v(A(t,3)+r)}"]
        q = "quad_perm:[3,2,1,0] row_mask:0xf bank_mask:0xf"
        for r in range(4):
            out += [f"v_subrev_f32_dpp {v(A(t,1)+r)}, {v(A(t,2)+r)}, {v(A(t,0)+r)} {q}",
                    f"v_add_f32_dpp {v(A(t,0)+r)}, {v(A(t,2)+r)}, {v(A(t,0)+r)} {q}"]
        for r in range(4):
            out += [f"v_subrev_f32_dpp {v(A(t,2)+r)}, {v(d2+r)}, {v(d1+r)} {q}",
                    f"v_add_f32_dpp {v(A(t,3)+r)}, {v(d2+r)}, {v(d1+r)} {q}"]
        return out
    for t in range(4):
        mains = []; fills = []
        for n in range(8 * t, 8 * t + 8):
            _, arr, ks = seq[n]
            mains.append(m16(A(t, arr), Tp + 4 * ks, IT + 4 * (n % 14), v(cin, 4) if ks == 0 else None))
        fl = fold(t - 1) if t else []
        for i, m in enumerate(mains):
            a(m)
            n = 8 * t + i + 14
            if n < 32:
                for x in xr(n): a(x)
            if i >= 2:
                for x in fl[(i - 2) * 6:(i - 1) * 6]: a(x)
    a.wait_tag('st')
    a("s_barrier")
    a(f"v_mov_b32 {v(t0)}, 1")
    a(f"s_lshl_b32 s49, s2, 2")
    wave0(a, ["s_mov_b64 exec, 1", f"buffer_store_dword {v(t0)}, off, s[28:31], s49 offset:128 sc1", "s_mov_b64 exec, -1"])
    a(f"""v_lshrrev_b32 {v(t1)}, 4, v1
          v_lshlrev_b32 {v(t1)}, 17, {v(t1)}
          v_and_b32 {v(t2)}, 15, v1
          v_lshl_add_u32 {v(t1)}, {v(t2)}, 4, {v(t1)}
          s_lshl_b32 s46, s33, 19
          s_lshl_b32 s49, s2, 11
          s_add_u32 s46, s46, s49
          s_lshl_b32 s49, s34, 10
          s_add_u32 s46, s46, s49
          s_add_u32 s46, s46, {OFF_V1}
          s_add_u32 s47, s46, 65536""")
    for x in fold(3): a(x)
    st()
    for r in range(4):
        for par in range(2):
            o = AF + 4 * (2 * r + par)
            for cs_ in range(2):
                for th in range(2):
                    a(f"v_cvt_pk_bf16_f32 {v(o+2*cs_+th)}, {v(A(2*th,2*par+cs_)+r)}, {v(A(2*th+1,2*par+cs_)+r)}")
            a(f"buffer_store_dwordx4 {v(o,4)}, {v(t1)}, s[16:19], s{46+(r>>1)} offen offset:{(r&1)*512 + par*256} sc1")
    st()
    a(f"""v_and_b32 {v(t2)}, 31, v1
          s_lshl_b32 s49, s33, 5
          v_add_u32 {v(t2)}, s49, {v(t2)}
          v_cvt_f32_u32 {v(t3)}, {v(t2)}
          v_add_f32 {v(t3)}, 0.5, {v(t3)}
          v_mul_f32 {v(t3)}, {lit(1/448)}, {v(t3)}
          v_lshrrev_b32 {v(t1)}, 5, v1
          s_sub_u32 s49, 2, s34
          v_lshl_add_u32 {v(t4)}, {v(t1)}, 3, s49
          v_cmp_eq_u32 vcc, 10, {v(t4)}
          v_cvt_f32_u32 {v(t4)}, {v(t4)}
          v_mul_f32 {v(t4)}, {v(t4)}, {v(t3)}
          v_cndmask_b32 {v(mi)}, 1.0, 0.5, vcc""")
    def half(ks, an, cv):
        if ks == 6: a(f"v_mul_f32 {v(an+7)}, {v(an+7)}, {v(mi)}")
    tabgen(IT, lambda ks, i: 32 * ks + 16 * (i >> 2) + 2 * (i & 3), t3, t4, AC, half)
    fa = mi + 1; wr = mi + 2; ga = mi + 3; gr = mi + 4; vo = mi + 5; tb = mi + 6; pv = mi + 7
    a(f"""v_and_b32 {v(t3)}, 31, v1
          v_mul_u32_u24 {v(fa)}, {VS}, {v(t3)}
          v_lshl_add_u32 {v(fa)}, {v(t1)}, 5, {v(fa)}
          s_lshl_b32 s49, s34, 8
          v_add_u32 {v(fa)}, s49, {v(fa)}
          v_lshlrev_b32 {v(vo)}, 2, {v(t2)}
          s_lshl_b32 s49, s34, 1
          s_sub_u32 s49, {WB + 2}, s49
          v_lshl_add_u32 {v(wr)}, {v(t1)}, 13, s49
          v_add_u32 {v(wr)}, {v(wr)}, {v(vo)}
          v_lshl_add_u32 {v(vo)}, {v(t1)}, 18, {v(vo)}
          s_lshl_b32 s49, s34, 15
          v_add_u32 {v(gr)}, s49, v2
          s_lshl_b32 s49, s33, 11
          v_add_u32 {v(ga)}, s49, {v(gr)}
          v_add_u32 {v(tb)}, {TB}, v2
          v_lshl_add_u32 {v(t3)}, {v(t3)}, 2, 64
          v_add_u32 {v(t3)}, 64, {v(t3)}
          v_lshlrev_b32 {v(t4)}, 11, v1
          s_lshl_b32 s50, s3, 13
          s_add_u32 s50, s50, {OFF_FL}
          s_lshl_b32 s51, s2, 16
          s_lshl_b32 s49, s3, 13
          s_add_u32 s51, s51, s49
          s_add_u32 s51, s51, {OFF_V1}
          s_mul_i32 s52, s3, {4*VS}
          s_lshl_b32 s53, s2, 11
          s_lshl_b32 s49, s34, 10
          s_add_u32 s53, s53, s49
          s_add_u32 s53, s53, {OFF_V2}""")
    for k in range(8): a(f"ds_read_b128 {v(TF+4*k,4)}, {v(tb)} offset:{k*1024}")
    st()
    a.wait(vm=0)
    a("s_barrier")
    wave0(a, ["s_mov_b64 exec, 1", f"buffer_store_dword {v(t0)}, off, s[16:19], s37 sc1", "s_mov_b64 exec, -1"])
    st()
    spin(a, pv, t3, 's[28:31]', '0', '0xffffffff')
    spin(a, pv, t4, 's[16:19]', 's50', '0xf')
    st()
    for hh in range(2):
        for i in range(4):
            a(f"s_add_u32 m0, s52, {(hh*32+i)*VS}")
            a(f"s_add_u32 s49, s51, {i*2048 + hh*1024}")
            a(f"buffer_load_dwordx4 v2, s[16:19], s49 offen sc1 lds", tag=('v', hh))
    def f1r(ks):
        hh, q = (0, ks) if ks < 4 else (1, ks - 4)
        return [f"ds_read_b64 {v(AF+16*(ks&1)+4*(2*d+c)+2*u,2)}, {v(fa)} offset:{hh*32*VS + c*512 + (4*q+u)*16 + 8*d}"
                for d in range(2) for c in range(2) for u in range(2)]
    a.wait_tag(('v', 0))
    a("s_barrier")
    st()
    for x in f1r(0): a(x)
    for ks in range(7):
        mains = [m32(AC + 16 * i, AF + 16 * (ks & 1) + 4 * i, FT + 8 * ks + 4 * (i >> 1), '0' if ks == 0 else None) for i in range(4)]
        fills = f1r(ks + 1) if ks < 6 else []
        if ks == 3:
            def sy():
                a.wait_tag(('v', 1)); a("s_barrier")
            fills = [sy] + fills
        weave(a, mains, fills, span=3)
    def wrd(r):
        return [f"ds_read_u16_d16_hi {v(FT+4*(r%14)+2*pm+mat)}, {v(wr)} offset:{(8*(r>>2)+(r&3))*2048 + mat*1024 + pm*512}"
                for pm in range(2) for mat in range(2)]
    BF = lambda i: AF + 8 * ((i + 2) & 3)
    Tf = lambda T, s: TF + 8 * T + 4 * s
    cvt = lambda i: [f"v_cvt_pk_bf16_f32 {v(BF(i)+k)}, {v(AC+16*i+2*k)}, {v(AC+16*i+2*k+1)}" for k in range(8)]
    for x in cvt(0) + cvt(1): a(x)
    def f2(i0):
        o0, o1 = AC + 16 * i0, AC + 16 * i0 + 16
        C, S = BF(i0), BF(i0 + 1)
        return [m32(o0, Tf(0, 0), C, '0'), m32(o1, Tf(3, 0), C, '0'), m32(o0, Tf(0, 1), C + 4), m32(o1, Tf(3, 1), C + 4),
                m32(o0, Tf(1, 0), S), m32(o1, Tf(2, 0), S), m32(o0, Tf(1, 1), S + 4), m32(o1, Tf(2, 1), S + 4)]
    wl = [x for r in range(14) for x in wrd(r)]
    weave(a, f2(0), cvt(2) + cvt(3) + wl[:16])
    weave(a, f2(2), wl[16:])
    st()
    for k in range(8): a(f"ds_read_b128 {v(TF+4*k,4)}, {v(tb)} offset:{8192 + k*1024}")
    a("s_barrier")
    al, de, gm, be = AC, AC + 16, AC + 32, AC + 48
    for r in range(16):
        Pr, Pi, Mr, Mi = [FT + 4 * (r % 14) + k for k in range(4)]
        a1, b1 = (t1, t2) if r & 1 else (t3, t4)
        A_, D_, G_, B_ = al + r, de + r, gm + r, be + r
        if r == 0:
            for k, x in enumerate((A_, D_, G_, B_)): a(f"v_mov_b32 {v(AF+k)}, {v(x)}")
        a(f"""v_sub_f32 {v(a1)}, {v(A_)}, {v(B_)}
              v_add_f32 {v(b1)}, {v(G_)}, {v(D_)}
              v_add_f32 {v(A_)}, {v(A_)}, {v(B_)}
              v_sub_f32 {v(G_)}, {v(G_)}, {v(D_)}
              v_mul_f32 {v(B_)}, {v(a1)}, {v(Pr)}
              v_mul_f32 {v(D_)}, {v(a1)}, {v(Pi)}
              v_fmac_f32 {v(B_)}, {v(b1)}, {v(Pi)}
              v_fma_f32 {v(D_)}, -{v(b1)}, {v(Pr)}, {v(D_)}
              v_fma_f32 {v(a1)}, {v(A_)}, {v(Mr)}, {v(B_)}
              v_fma_f32 {v(b1)}, {v(A_)}, {v(Mi)}, {v(D_)}
              v_fma_f32 {v(A_)}, {v(G_)}, {v(Mi)}, {v(a1)}
              v_fma_f32 {v(G_)}, -{v(G_)}, {v(Mr)}, {v(b1)}
              v_fma_f32 {v(B_)}, {v(B_)}, 2.0, -{v(A_)}
              v_fma_f32 {v(D_)}, {v(D_)}, -2.0, {v(G_)}""")
        if r == 0:
            a("s_cmp_lg_u32 s2, 0")
            a("s_cbranch_scc1 NOFIX")
            a("s_mov_b32 exec_hi, 0")
            a(f"""v_mul_f32 {v(A_)}, {v(AF)}, {v(Pr)}
                  v_mul_f32 {v(G_)}, {v(AF)}, {v(Pi)}
                  v_mul_f32 {v(D_)}, {v(AF+1)}, {v(Mr)}
                  v_mul_f32 {v(B_)}, {v(AF+1)}, {v(Mi)}
                  v_fmac_f32 {v(A_)}, {v(AF+2)}, {v(Pi)}
                  v_fma_f32 {v(G_)}, -{v(AF+2)}, {v(Pr)}, {v(G_)}
                  v_fmac_f32 {v(D_)}, {v(AF+3)}, {v(Mi)}
                  v_fma_f32 {v(B_)}, -{v(AF+3)}, {v(Mr)}, {v(B_)}""")
            a("s_mov_b32 exec_hi, -1")
            a.raw("NOFIX:")
        if r < 2:
            for x in wrd(r + 14): a(x)
        if r & 1:
            for i in range(4): a(f"v_cvt_pk_bf16_f32 {v(AF+8*i+(r>>1))}, {v(AC+16*i+r-1)}, {v(AC+16*i+r)}")
    st()
    def i2(i0):
        o0, o1 = AC + 16 * i0, AC + 16 * i0 + 16
        S, D = AF + 8 * i0, AF + 8 * i0 + 8
        return [m32(o0, S, Tf(0, 0), '0'), m32(o0, S + 4, Tf(0, 1)), m32(o0, D, Tf(3, 0)), m32(o0, D + 4, Tf(3, 1)),
                m32(o1, S, Tf(1, 0), '0'), m32(o1, S + 4, Tf(1, 1)), m32(o1, D, Tf(2, 0)), m32(o1, D + 4, Tf(2, 1))]
    def gout(i):
        out = []
        for s_ in range(2):
            o = FT + 8 * i + 4 * s_
            out += [f"v_cvt_pk_bf16_f32 {v(o+k)}, {v(AC+16*i+8*s_+2*k)}, {v(AC+16*i+8*s_+2*k+1)}" for k in range(4)]
            out.append(f"ds_write_b128 {v(ga)}, {v(o,4)} offset:{i*8192 + s_*1024}")
        return out
    mm = i2(0) + i2(2)
    for x in mm[:6]: a(x)
    weave(a, mm[6:], gout(0) + gout(1) + gout(2)[:5])
    for x in gout(2)[5:] + gout(3): a(x)
    a.wait(lg=0)
    a("s_barrier")
    st()
    ring = [AF, AF + 16, TF]
    def i1r(ks):
        return [f"ds_read_b128 {v(ring[ks%3]+4*i,4)}, {v(gr)} offset:{i*8192 + ks*1024}" for i in range(4)]
    for x in i1r(0) + i1r(1): a(x)
    for ks in range(7):
        mains = [m32(AC + 16 * i, ring[ks % 3] + 4 * i, IT + 8 * ks + 4 * (i >> 1), '0' if ks == 0 else None) for i in range(4)]
        weave(a, mains, i1r(ks + 2) if ks < 5 else [])
    st()
    for r in range(16):
        x0, x1 = (t1, t2) if r & 1 else (t3, t4)
        a(f"""v_sub_f32 {v(x0)}, {v(AC+r)}, {v(AC+32+r)}
              v_sub_f32 {v(x1)}, {v(AC+16+r)}, {v(AC+48+r)}
              v_add_f32 {v(AC+r)}, {v(AC+r)}, {v(AC+32+r)}
              v_add_f32 {v(AC+16+r)}, {v(AC+16+r)}, {v(AC+48+r)}
              v_cvt_pk_bf16_f32 {v(AC+32+r)}, {v(x0)}, {v(x1)}
              v_cvt_pk_bf16_f32 {v(AC+48+r)}, {v(AC+r)}, {v(AC+16+r)}
              s_add_u32 s49, s53, {(8*(r>>2)+(r&3))*65536}
              buffer_store_dword {v(AC+32+r)}, {v(vo)}, s[16:19], s49 offen sc1
              buffer_store_dword {v(AC+48+r)}, {v(vo)}, s[16:19], s49 offen offset:512 sc1""")
    st()
    a(f"v_lshlrev_b32 {v(t1)}, 7, v1")
    a.wait(vm=0)
    a("s_barrier")
    wave0(a, ["s_mov_b64 exec, 0xff", f"buffer_store_dword {v(t0)}, {v(t1)}, s[16:19], s37 offen offset:128 sc1", "s_mov_b64 exec, -1"])
    st.dump(t1)
    return R.maxv

def kern(a):
    st = Stamp(a)
    a("s_cmp_ge_u32 s2, 0x100")
    a("s_cbranch_scc1 KEND")
    st()
    a("""s_load_dwordx2 s[4:5], s[0:1], 0
         s_load_dwordx2 s[16:17], s[0:1], 72
         s_load_dwordx2 s[28:29], s[0:1], 64""")
    a("""v_lshrrev_b32 v2, 6, v0
         v_and_b32 v1, 63, v0
         v_readfirstlane_b32 s3, v2
         v_lshlrev_b32 v2, 4, v1
         s_mov_b32 s6, 1835008
         s_mov_b32 s7, 0x00020000
         s_mov_b32 s11, 0x00020000
         s_mov_b32 s15, 0x00020000
         s_mov_b32 s18, 0x10000000
         s_mov_b32 s19, 0x00020000
         s_mov_b32 s30, 256
         s_mov_b32 s31, 0x00020000""")
    a("s_cmp_lt_u32 s2, 32")
    a("s_cbranch_scc1 SPEC")
    n0 = st.n
    m1 = ffn(a, st)
    a.raw(".p2align 6")
    a.label("SPEC")
    a.reset_state()
    st.n = n0
    m2 = spec(a, st)
    a.label("KEND")
    a("s_endpgm")
    return max(m1, m2)

def build():
    label = NAME + "_kernel"
    a = Asm()
    a.raw(f"; @launch grid=(256,1,1) block=(512,1,1) lds=163840")
    a.raw('.amdgcn_target "amdgcn-amd-amdhsa--gfx950"\n.text')
    a.raw(f".globl {label}\n.p2align 8\n.type {label},@function\n{label}:")
    nv = kern(a)
    print("vgprs", nv, "instrs", a.nins, file=sys.stderr)
    nv = (nv + 7) // 8 * 8
    a.raw(f""".section .rodata,"a"
.p2align 6
.amdhsa_kernel {label}
  .amdhsa_next_free_vgpr {nv}
  .amdhsa_next_free_sgpr 102
  .amdhsa_accum_offset {nv}
  .amdhsa_group_segment_fixed_size 0
  .amdhsa_kernarg_size 80
  .amdhsa_user_sgpr_count 2
  .amdhsa_user_sgpr_kernarg_segment_ptr 1
  .amdhsa_system_sgpr_workgroup_id_x 1
.end_amdhsa_kernel""")
    return a.text()

if __name__ == "__main__":
    open(sys.argv[1], "w").write(build())
```

```python
import re

TRANS = ('v_exp_f32','v_log_f32','v_rcp_f32','v_rsq_f32','v_sqrt_f32','v_sin_f32','v_cos_f32')
RMW = ('v_fmac_f32','v_dot2c_f32_bf16')

def regs_of(tok):
    tok = tok.strip()
    tok = tok.lstrip('-')
    if tok.startswith('abs('): tok = tok[4:-1]
    if tok.startswith('|'): tok = tok.strip('|')
    m = re.fullmatch(r'([vsa])(\d+)', tok)
    if m: return {(m.group(1), int(m.group(2)))}
    m = re.fullmatch(r'([vsa])\[(\d+):(\d+)\]', tok)
    if m: return {(m.group(1), i) for i in range(int(m.group(2)), int(m.group(3))+1)}
    if tok in ('vcc', 'vcc_lo', 'vcc_hi'): return {('s', 'vcc')}
    if tok in ('exec', 'exec_lo', 'exec_hi'): return {('s', 'exec')}
    if tok == 'm0': return {('s', 'm0')}
    return set()

class Ins:
    def __init__(self, text):
        self.text = text
        t = text.split(';')[0].strip()
        parts = t.split(None, 1)
        self.op = parts[0]
        rest = parts[1] if len(parts) > 1 else ''
        bm = re.findall(r'\s\w+:\[[^\]]*\]', rest)
        rest = re.sub(r'\s\w+:\[[^\]]*\]', '', rest)
        ops = [o.strip() for o in rest.split(',')] if rest else []
        self.mods = ''
        if ops:
            sp = ops[-1].split(None, 1)
            ops[-1] = sp[0]
            self.mods = sp[1] if len(sp) > 1 else ''
        self.mods += ' ' + ' '.join(bm)
        self.ops = ops
        op = self.op
        self.w = set(); self.r = set(); self.srcc = set(); self.ab = set()
        R = [regs_of(o) for o in ops]
        self.kind = 'other'
        if op.startswith('v_mfma'):
            self.kind = 'mfma'
            self.passes = 8 if ('32x32x16' in op or '16x16x4_' in op) else 4
            self.w = R[0]; self.ab = R[1] | R[2]; self.srcc = R[3]; self.r = self.ab | self.srcc
        elif op.startswith('v_'):
            self.kind = 'valu'
            if op.startswith('v_permlane') and 'swap' in op:
                self.w = R[0] | R[1]; self.r = R[0] | R[1]
            elif op.startswith('v_cmpx'):
                self.w = R[0] | {('s','exec')}; self.r = set().union(*R[1:])
            elif '_co_' in op:
                self.w = R[0] | R[1]; self.r = set().union(*R[2:])
            else:
                self.w = R[0]; self.r = set().union(*R[1:]) if len(R) > 1 else set()
                if op in RMW or 'dpp' in op or 'quad_perm' in self.mods or 'row_' in self.mods: self.r |= R[0]
        elif op.startswith('ds_'):
            self.kind = 'ds'
            if op.startswith('ds_read') or op.startswith('ds_bperm') or op.startswith('ds_swizzle'):
                self.w = R[0]; self.r = set().union(*R[1:])
            else:
                self.r = set().union(*R)
        elif op.startswith('buffer_') or op.startswith('global_'):
            self.kind = 'vmem'
            self.lds = bool(re.search(r'\blds\b', self.mods))
            if 'load' in op and not self.lds:
                self.w = R[0]; self.r = set().union(*R[1:])
                if 'd16' in op: self.r |= R[0]
            elif 'atomic' in op and 'sc0' in self.mods:
                self.w = R[0]; self.r = set().union(*R)
            else:
                self.r = set().union(*R) if R else set()
                if self.lds: self.r |= {('s','m0')}
            self.wide_store = ('store' in op) and ('x4' in op or 'x3' in op)
            if self.wide_store:
                self.sdata = R[0] if op.startswith('buffer_') else R[1]
        elif op.startswith('s_load') or op.startswith('s_memtime') or op.startswith('s_memrealtime'):
            self.kind = 'smem'; self.w = R[0]; self.r = set().union(*R[1:]) if len(R) > 1 else set()
        elif op.startswith('s_'):
            self.kind = 'salu'
            if op.startswith('s_cmp') or op.startswith('s_cbranch') or op in ('s_waitcnt','s_barrier','s_nop','s_branch','s_endpgm','s_setprio','s_sleep'):
                self.r = set().union(*R) if R else set()
            else:
                self.w = R[0] if R else set(); self.r = set().union(*R[1:]) if len(R) > 1 else set()
        self.trans = op in TRANS

class Asm:
    def __init__(self):
        self.lines = []
        self.hist = []
        self.vmq = []
        self.lgq = []
        self.smem = False
        self.nins = 0
        self.nvm = 0
    def raw(self, s):
        self.lines.append(s)
    def label(self, name):
        self.lines.append(name + ':')
    def flush_hist(self):
        self.hist = []
    def reset_state(self):
        self.hist = []; self.vmq = []; self.lgq = []; self.smem = False
    def _need(self, ins):
        need = 0; dist = 0
        for p, st in reversed(self.hist):
            req = 0
            pw = p.w
            vw = {x for x in pw if x[0] in 'va'}
            sw = pw - vw
            if p.kind == 'valu':
                if ins.kind == 'mfma' and (vw & ins.r): req = max(req, 2)
                if p.trans and ins.kind == 'valu' and not ins.trans and (vw & ins.r): req = max(req, 1)
                if p.trans and ins.kind == 'valu' and ins.trans and (vw & ins.r): req = max(req, 1)
                if ins.op.startswith('v_readfirstlane') or ins.op.startswith('v_readlane'):
                    if vw & ins.r: req = max(req, 1)
                if ins.op.startswith('v_permlane') and (vw & ins.r): req = max(req, 2)
                if ins.kind == 'valu' and ('quad_perm' in ins.mods or 'row_' in ins.mods or 'dpp' in ins.op) and (vw & ins.r): req = max(req, 2)
                if sw:
                    if ins.kind == 'vmem' and (sw & ins.r): req = max(req, 5)
                    if ins.kind == 'valu' and (sw & ins.r): req = max(req, 2)
                    if ins.kind == 'salu' and (sw & ins.r): req = max(req, 1)
                    if ('s','exec') in sw:
                        if ins.kind == 'mfma': req = max(req, 4)
                        if ins.op.startswith('v_read') or ins.op.startswith('v_permlane'): req = max(req, 4)
                if p.op.startswith('v_dot') and (vw & (ins.r | ins.w)) and ins.op != p.op: req = max(req, 3)
                if 'op_sel' in p.mods or 'sdwa' in p.op or 'dst_sel' in p.mods:
                    if ins.kind == 'valu' and (vw & (ins.r | ins.w)): req = max(req, 1)
            elif p.kind == 'mfma':
                big = 12 if p.passes == 8 else 8
                if ins.kind == 'mfma':
                    if vw & ins.ab: req = max(req, big)
                    if vw & ins.srcc:
                        if not (vw == ins.srcc and p.passes == ins.passes): req = max(req, big - 2)
                    elif vw & ins.w: req = max(req, big)
                elif ins.kind in ('valu', 'vmem', 'ds'):
                    if vw & (ins.r | ins.w): req = max(req, big)
                if ins.kind == 'valu' and (p.srcc & ins.w): req = max(req, 7 if p.passes == 8 else 3)
            elif p.kind == 'salu':
                if ('s','m0') in pw and ins.kind == 'vmem' and ins.lds: req = max(req, 1)
            elif p.kind == 'vmem' and p.wide_store:
                if p.sdata & ins.w: req = max(req, 2)
            need = max(need, req - dist)
            dist += st
            if dist >= 20: break
        return need
    def _autowait(self, ins):
        touch = ins.r | ins.w
        vm = None; lg = None
        for i, o in enumerate(self.vmq):
            if o['w'] & touch: vm = len(self.vmq) - 1 - i
        for i, o in enumerate(self.lgq):
            if o['w'] & touch:
                if ins.kind == 'ds' and not (o['w'] & ins.r): continue
                lg = len(self.lgq) - 1 - i
        if vm is not None and ins.kind == 'vmem' and not any(o['w'] & ins.r for o in self.vmq):
            vm = None
        if vm is not None and ins.kind == 'vmem' and 'd16' in ins.op:
            other = ins.r - ins.w
            vm = None
            for i, o in enumerate(self.vmq):
                if o['w'] & other: vm = len(self.vmq) - 1 - i
        self.wait(vm, lg)
    def wait(self, vm=None, lg=None):
        parts = []
        if vm is not None and vm < len(self.vmq):
            assert vm <= 63
            parts.append(f"vmcnt({vm})"); self.vmq = self.vmq[len(self.vmq)-vm:] if vm else []
        if lg is not None and lg < len(self.lgq):
            lg = min(lg, 15)
            parts.append(f"lgkmcnt({lg})"); self.lgq = self.lgq[len(self.lgq)-lg:] if lg else []
        if parts: self._emit(Ins("s_waitcnt " + " ".join(parts)))
    def wait_tag(self, tag):
        vm = None
        for i, o in enumerate(self.vmq):
            if o['tag'] == tag: vm = len(self.vmq) - 1 - i
        self.wait(vm, None)
    def wait_lg_tag(self, tag):
        lg = None
        for i, o in enumerate(self.lgq):
            if o['tag'] == tag: lg = len(self.lgq) - 1 - i
        self.wait(None, lg)
    def wait_smem(self):
        self._emit(Ins("s_waitcnt lgkmcnt(0)")); self.lgq = []
    def _emit(self, ins):
        n = self._need(ins)
        if n > 0:
            assert n <= 16
            self.lines.append(f"    s_nop {n-1}"); self.hist.append((Ins(f"s_nop {n-1}"), n)); self.nins += 1
        self.lines.append("    " + ins.text); self.nins += 1
        st = 1
        if ins.op == 's_nop': st = int(ins.ops[0]) + 1
        self.hist.append((ins, st))
        if len(self.hist) > 40: self.hist = self.hist[-30:]
    def __call__(self, text, tag=None):
        for t in text.split('\n'):
            t = t.strip()
            if not t: continue
            ins = Ins(t)
            self._autowait(ins)
            self._emit(ins)
            if ins.kind == 'vmem':
                self.vmq.append(dict(w=ins.w, tag=tag)); self.nvm += 1
                assert len(self.vmq) <= 63, "vmcnt overflow"
            elif ins.kind == 'ds':
                self.lgq.append(dict(w=ins.w, tag=tag))
    def text(self):
        return "\n".join(self.lines) + "\n"

class RegAlloc:
    def __init__(self, start=1, limit=256):
        self.next = start; self.limit = limit; self.maxv = start
    def get(self, n=1, align=1):
        if n >= 2: align = max(align, 2)
        b = (self.next + align - 1) // align * align
        self.next = b + n
        assert self.next <= self.limit, f"out of regs {self.next}"
        self.maxv = max(self.maxv, self.next)
        return b

def v(b, n=1):
    return f"v{b}" if n == 1 else f"v[{b}:{b+n-1}]"
def s(b, n=1):
    return f"s{b}" if n == 1 else f"s[{b}:{b+n-1}]"
```

```python
import sys, struct, math
sys.path.insert(0, 'work')
from asmlib import *

NAME = "recurrent_scan__spectral_gfnet__swiglu_ffn__prompt"
OFF_H = 0
OFF_V1 = 0x800000
OFF_V2 = 0xA00000
OFF_ST = 0xC00000
OFF_FL = 0xC10000
OFF_DIAG = 0x2000000
OPT = sys.argv[2:]
DIAG = 'diag' in OPT
STAMP_OP = 's_memtime' if 'cyc' in OPT else 's_memrealtime'
LIMIT = 0x20000
PRIO = 'noprio' not in OPT

def lit(x):
    return "0x%08x" % struct.unpack('<I', struct.pack('<f', x))[0]
def m32(d, a, b, c=None):
    return f"v_mfma_f32_32x32x16_bf16 {v(d,16)}, {v(a,4)}, {v(b,4)}, {v(d,16) if c is None else c}"
def m16(d, a, b, c=None):
    return f"v_mfma_f32_16x16x32_bf16 {v(d,4)}, {v(a,4)}, {v(b,4)}, {v(d,4) if c is None else c}"

def bc(r):
    return v(r & ~1, 2), r & 1
def pk(op, d, *srcs, neg=None):
    ops = []; lo = []; hi = []
    for x in srcs:
        if isinstance(x, tuple):
            p, b = bc(x[1]); ops.append(p); lo.append(b); hi.append(b)
        else:
            assert x % 2 == 0
            ops.append(v(x, 2)); lo.append(0); hi.append(1)
    assert d % 2 == 0
    t = f"v_pk_{op}_f32 {v(d,2)}, " + ", ".join(ops)
    if any(lo): t += f" op_sel:[{','.join(map(str, lo))}]"
    if not all(hi): t += f" op_sel_hi:[{','.join(map(str, hi))}]"
    if neg:
        m = ','.join('1' if i in neg else '0' for i in range(len(srcs)))
        t += f" neg_lo:[{m}] neg_hi:[{m}]"
    return t

def em(a, x):
    if callable(x): x()
    elif isinstance(x, tuple): a(x[0], tag=x[1])
    else: a(x)
def weave(a, mains, fills, span=None):
    n = len(mains) if span is None else min(span, len(mains)); k = len(fills); done = 0
    for i, m in enumerate(mains):
        em(a, m)
        upto = min(k, (k * (i + 1) + n - 1) // n)
        while done < upto:
            em(a, fills[done]); done += 1
def merge(*lists):
    items = []
    for li, l in enumerate(lists):
        for i, x in enumerate(l):
            items.append(((i + 0.5) / len(l), li, i, x))
    items.sort(key=lambda t: (t[0], t[1], t[2]))
    return [t[3] for t in items]

NLAB = [0]
class Stamp:
    def __init__(self, a):
        self.a = a; self.n = 0
    def __call__(self, last=False):
        if not DIAG: return
        if self.n >= 22 and not last: return
        self.a.raw(f"    {STAMP_OP} s[96:97]")
        self.a.raw("    s_waitcnt lgkmcnt(0)")
        self.a.raw(f"    s_mov_b32 s{66+self.n}, s96")
        self.a.lgq = []
        self.n += 1
        assert self.n <= 23
    def dump(self, vt):
        if not DIAG: return
        a = self.a
        self(True)
        if 'probe' in OPT:
            NLAB[0] += 1; L = f"PR{NLAB[0]}"
            wgp = int(OPT[OPT.index('probe')+1]); ip = int(OPT[OPT.index('probe')+2])
            if ip < 0: ip += self.n
            a(f"s_lshl_b32 s98, s2, 3\ns_add_u32 s98, s98, s3")
            a(f"s_cmp_lg_u32 s98, {8*wgp+7}")
            a(f"s_cbranch_scc1 {L}")
            a(f"s_sub_u32 s98, s{66+min(ip, self.n-1)}, s66")
            a(f"s_add_u32 s98, s98, {int(OPT[OPT.index('probe')+3])}")
            a(f"s_mov_b32 s99, 0")
            a.raw(f"{L}_L:")
            a.raw(f"    s_memrealtime s[96:97]\n    s_add_u32 s99, s99, 1\n    s_waitcnt lgkmcnt(0)\n    s_sub_u32 s96, s96, s66\n    s_cmp_ge_u32 s96, s98\n    s_cbranch_scc1 {L}\n    s_cmp_lt_u32 s99, 100000\n    s_cbranch_scc1 {L}_L")
            a.raw(f"{L}:")
            return
        if 'dbgdiag' in OPT:
            NLAB[0] += 1; L = f"DD{NLAB[0]}"
            a(f"s_lshl_b32 s98, s2, 3\ns_add_u32 s98, s98, s3")
            a(f"s_cmp_lg_u32 s98, {8*int(OPT[OPT.index('dbgdiag')+1])+7}")
            a(f"s_cbranch_scc1 {L}")
            for i in range(1, min(17, self.n)):
                a(f"s_sub_u32 s98, s{66+i}, s66")
                a(f"v_mov_b32 {v(vt)}, s98")
                a(f"buffer_store_dword {v(vt)}, off, s[28:31], 0 offset:{4*i-4}")
                a.wait(vm=0)
            a.raw(f"{L}:")
            return
        a(f"s_lshl_b32 s98, s2, 3\ns_add_u32 s98, s98, s3\ns_lshl_b32 s98, s98, 7")
        a(f"s_add_u32 s98, s98, {OFF_DIAG}")
        for i in range(self.n):
            a(f"v_mov_b32 {v(vt)}, s{66+i}")
            a(f"buffer_store_dword {v(vt)}, off, s[16:19], s98 offset:{4*i}")
            a.wait(vm=0)

def spin(a, vdst, vaddr, srd, soff, mask, first=True, val='1'):
    NLAB[0] += 1; L = f"SP{NLAB[0]}"
    a("s_mov_b32 s99, 0")
    if not first:
        a(f"v_cmp_ne_u32 vcc, {val}, {v(vdst)}")
        a(f"s_and_b64 vcc, vcc, {mask}")
        a(f"s_cbranch_scc0 {L}_D")
    a(f"s_mov_b64 exec, {mask}")
    a.raw(f"{L}:")
    a.raw(f"    buffer_load_dword {v(vdst)}, {v(vaddr)}, {srd}, {soff} offen sc1")
    a.raw("    s_add_u32 s99, s99, 1")
    a.raw("    s_waitcnt vmcnt(0)")
    a.raw(f"    v_cmp_ne_u32 vcc, {val}, {v(vdst)}")
    a.raw("    s_nop 1")
    a.raw("    s_cmp_eq_u64 vcc, 0")
    a.raw(f"    s_cbranch_scc1 {L}_E")
    a.raw(f"    s_cmp_lt_u32 s99, {LIMIT}")
    a.raw(f"    s_cbranch_scc1 {L}")
    a.raw(f"{L}_E:")
    a.raw("    s_mov_b64 exec, -1")
    a.raw(f"{L}_D:")
    if first: a.vmq = []

def wave0(a, lines):
    NLAB[0] += 1; L = f"W0_{NLAB[0]}"
    a("s_cmp_lg_u32 s3, 0")
    a(f"s_cbranch_scc1 {L}")
    for l in lines: a.raw("    " + l)
    a.raw(f"{L}:")

def ffn(a, st):
    XB = 16384; WB = 114688
    X = lambda s: XB + 32768 * s
    W = lambda s: WB + 16384 * s
    USLOT = [1024 * k for k in (0, 0, 48, 64, 128, 144, 96, 80, 112, 128, 16, 32, 48, 64)]
    UBASE = [1024 * k for k in (0, 0, 0, 64, 96, 96, 96, 80, 80, 80, 16, 16, 16, 16)]
    RB = 81920
    a("""s_load_dwordx2 s[8:9], s[0:1], 32
         s_load_dwordx2 s[12:13], s[0:1], 40
         s_load_dwordx2 s[20:21], s[0:1], 48
         s_load_dwordx2 s[24:25], s[0:1], 56""")
    a("""s_mov_b32 s10, 1605632
         s_mov_b32 s14, 1605632
         s_mov_b32 s22, 1605632
         s_mov_b32 s23, 0x00020000
         s_mov_b32 s26, 1835008
         s_mov_b32 s27, 0x00020000""")
    R = RegAlloc(start=3, limit=256)
    t0 = R.get(); t1 = R.get(); t2 = R.get()
    vx = [R.get(), R.get()]; vw = R.get(); vd = R.get()
    xa = [[R.get(), R.get()] for _ in range(2)]
    wa = [[R.get(), R.get()] for _ in range(2)]
    da = [R.get() for _ in range(4)]
    big = R.get(144, 2)
    acc = [[[big + 32 * mat + 16 * F + 4 * nt for nt in range(4)] for F in range(2)] for mat in range(2)]
    wf = [[big + 64 + 16 * b + 4 * i for i in range(4)] for b in range(2)]
    xf = [[big + 96 + 16 * b + 4 * i for i in range(4)] for b in range(2)]
    cs = [big + 128, big + 132]; ones = big + 136; stv = big + 140
    wd = [R.get(16, 2) for _ in range(5)]
    sp = R.get(8, 2)
    a("""s_and_b32 s33, s2, 7
         s_lshr_b32 s47, s2, 3
         s_sub_u32 s47, s47, 4
         s_mul_i32 s34, s47, 37
         s_lshr_b32 s34, s34, 8
         s_mul_i32 s35, s34, 7
         s_sub_u32 s35, s47, s35
         s_and_b32 s36, s33, 4
         s_add_u32 s36, s36, s34
         s_and_b32 s37, s33, 3
         s_mul_i32 s37, s37, 7
         s_add_u32 s37, s37, s35
         s_and_b32 s38, s3, 3
         s_lshr_b32 s39, s3, 2
         s_lshl_b32 s89, s34, 1
         s_add_u32 s89, s89, s35
         s_sub_u32 s90, s89, 7
         s_min_u32 s89, s89, s90
         s_lshl_b32 s89, s89, 7""")
    if 'norot' in OPT: a("s_mov_b32 s89, 0")
    a(f"""v_lshrrev_b32 {v(t0)}, 3, v1
          v_and_b32 {v(t1)}, 7, v1
          v_lshrrev_b32 {v(t2)}, 4, v1
          v_xor_b32 {v(vx[1])}, {v(t1)}, {v(t2)}
          v_lshlrev_b32 {v(vx[1])}, 4, {v(vx[1])}
          v_mul_u32_u24 {v(vx[0])}, 28672, {v(t0)}
          v_add_u32 {v(vx[0])}, {v(vx[0])}, {v(vx[1])}
          v_xor_b32 {v(vx[1])}, 64, {v(vx[0])}""")
    a(f"""s_lshl_b32 s48, s36, 2
          s_add_u32 s48, s48, s38
          s_mul_i32 s40, s48, 896
          s_mul_i32 s49, s39, {32*28672}
          s_add_u32 s40, s40, s49""")
    for i in range(1, 4): a(f"s_add_u32 s{40+i}, s40, {i*(8*28672-1024)}")
    a(f"""s_lshl_b32 s44, s38, 13
          s_lshl_b32 s49, s39, 12
          s_add_u32 s44, s44, s49""")
    def xdma(c):
        out = []
        for i in range(4):
            def f(i=i):
                a(f"s_add_u32 m0, s44, {X(c%3)}")
                a(f"s_add_u32 s49, s{40+i}, s{89+c}")
                a(f"buffer_load_dwordx4 {v(vx[i&1])}, s[4:7], s49 offen offset:{i*1024} lds", tag=('x', c))
            out.append(f)
        return out
    def wdma(c):
        out = []
        for mat in range(2):
            def f(mat=mat):
                a(f"s_mul_i32 s49, s{89+c}, 1792")
                a(f"s_add_u32 m0, s46, {W(c%3) + mat*1024}")
                a(f"s_add_u32 s49, s49, s45")
                a(f"buffer_load_dwordx4 {v(vw)}, s[{8+4*mat}:{11+4*mat}], s49 offen lds", tag=('x', c))
            out.append(f)
        return out
    a(f"""v_and_b32 {v(vw)}, 1, {v(t2)}
          s_and_b32 s49, s3, 1
          s_lshl_b32 s49, s49, 1
          v_or_b32 {v(vw)}, s49, {v(vw)}
          v_lshlrev_b32 {v(vw)}, 1, {v(vw)}
          v_xor_b32 {v(vw)}, {v(vw)}, {v(t1)}
          v_lshlrev_b32 {v(vw)}, 4, {v(vw)}
          v_mul_u32_u24 {v(vd)}, 3584, {v(t0)}
          v_add_u32 {v(vw)}, {v(vw)}, {v(vd)}
          s_mul_i32 s45, s3, {8*3584}
          s_lshl_b32 s49, s37, 7
          s_add_u32 s45, s45, s49
          s_lshl_b32 s46, s3, 11""")
    a.wait_smem()
    st()
    for f in wdma(0) + xdma(0): f()
    for i in range(1, 7):
        a(f"s_add_u32 s{89+i}, s{88+i}, 128\ns_cmp_eq_u32 s{89+i}, 896\ns_cselect_b32 s{89+i}, 0, s{89+i}")
    a(f"""s_lshl_b32 s49, s47, 3
          s_add_u32 s49, s49, s3
          s_lshl_b32 s49, s49, 7
          s_min_u32 s49, s49, KEND-PCREF-64
          s_add_u32 s100, s100, s49
          s_addc_u32 s101, s101, 0""")
    if 'notouch' not in OPT:
        a("s_load_dword s98, s[100:101], 0")
        a("s_load_dword s99, s[100:101], 64")
    if 'fs' in OPT: st()
    a(f"""v_lshlrev_b32 {v(vd)}, 1, {v(t2)}
          v_xor_b32 {v(vd)}, {v(vd)}, {v(t1)}
          v_lshlrev_b32 {v(vd)}, 4, {v(vd)}
          v_mul_u32_u24 {v(t0)}, 896, {v(t0)}
          v_add_u32 {v(vd)}, {v(vd)}, {v(t0)}""")
    a(f"""s_lshl_b32 s50, s33, 2
          s_add_u32 s50, s50, s34
          s_mul_i32 s51, s38, {448*896}
          s_mul_i32 s49, s39, {16*896}
          s_add_u32 s51, s51, s49
          s_lshl_b32 s49, s35, 7
          s_add_u32 s51, s51, s49
          s_add_u32 s52, s51, {8*896-1024}
          s_xor_b32 s49, s39, s50
          s_and_b32 s49, s49, 1
          s_lshl_b32 s49, s49, 11
          s_lshl_b32 s53, s38, 12
          s_add_u32 s53, s53, s49""")
    def ddma(u):
        out = []
        for i in range(2):
            def f(i=i):
                a(f"s_mul_i32 s49, s{89+u%7}, 448")
                if u == 7: a(f"s_add_u32 s{51+i}, s{51+i}, 28672")
                a(f"s_add_u32 m0, s53, {USLOT[u]}")
                a(f"s_add_u32 s49, s49, s{51+i}")
                a(f"buffer_load_dwordx4 {v(vd)}, s[20:23], s49 offen offset:{i*1024} lds", tag=('d', u))
            out.append(f)
        return out
    a(f"""v_and_b32 {v(t0)}, 15, v1
          v_bfe_u32 {v(t1)}, v1, 1, 3
          v_xor_b32 {v(t1)}, {v(t1)}, {v(t2)}
          s_and_b32 s49, s38, 2
          s_lshl_b32 s49, s49, 1
          v_xor_b32 {v(t1)}, s49, {v(t1)}
          v_lshlrev_b32 {v(t1)}, 4, {v(t1)}
          v_lshl_add_u32 {v(t1)}, {v(t0)}, 7, {v(t1)}
          s_lshl_b32 s49, s38, 13
          s_add_u32 s49, s49, {XB}
          v_add_u32 {v(xa[0][0])}, s49, {v(t1)}
          v_xor_b32 {v(xa[1][0])}, 64, {v(xa[0][0])}
          v_add_u32 {v(xa[0][1])}, 0x10000, {v(xa[0][0])}
          v_add_u32 {v(xa[1][1])}, 0x10000, {v(xa[1][0])}""")
    a(f"""v_bfe_u32 {v(t0)}, v1, 3, 2
          s_lshl_b32 s49, s39, 1
          s_and_b32 s54, s38, 1
          s_or_b32 s49, s49, s54
          v_xor_b32 {v(t0)}, s49, {v(t0)}
          v_lshlrev_b32 {v(t0)}, 5, {v(t0)}
          v_bfe_u32 {v(t1)}, v1, 2, 2
          v_lshl_add_u32 {v(t0)}, {v(t1)}, 7, {v(t0)}
          v_and_b32 {v(t1)}, 3, v1
          v_lshl_add_u32 {v(t0)}, {v(t1)}, 3, {v(t0)}
          v_lshl_add_u32 {v(t0)}, {v(t2)}, 11, {v(t0)}
          s_and_b32 s49, s38, 2
          s_lshl_b32 s49, s49, 12
          s_add_u32 s49, s49, {WB}
          v_add_u32 {v(wa[0][0])}, s49, {v(t0)}
          v_xor_b32 {v(wa[0][1])}, 32, {v(wa[0][0])}
          v_xor_b32 {v(wa[1][0])}, 0x2000, {v(wa[0][0])}
          v_xor_b32 {v(wa[1][1])}, 0x2000, {v(wa[0][1])}""")
    a(f"""v_bfe_u32 {v(t0)}, v1, 3, 2
          s_and_b32 s49, s38, 2
          v_xor_b32 {v(t0)}, s49, {v(t0)}
          v_lshlrev_b32 {v(t0)}, 5, {v(t0)}
          v_lshl_add_u32 {v(t0)}, {v(t1)}, 3, {v(t0)}
          v_lshrrev_b32 {v(t1)}, 2, v1
          v_lshl_add_u32 {v(t0)}, {v(t1)}, 7, {v(t0)}
          s_lshl_b32 s49, s38, 12
          v_add_u32 {v(da[0])}, s49, {v(t0)}""")
    for i in range(1, 4): a(f"v_xor_b32 {v(da[i])}, {32*i}, {v(da[0])}")
    for i in range(4): a(f"v_mov_b32 {v(ones+i)}, 0x3f803f80")
    dbase = [USLOT[0]]
    def dreads(u):
        out = []
        if UBASE[u] != dbase[0]:
            off = UBASE[u] - dbase[0]
            for i in range(4): out.append(f"v_add_u32 {v(da[i])}, {off & 0xffffffff:#x}, {v(da[i])}")
            dbase[0] = UBASE[u]
        off = USLOT[u] - dbase[0]
        for i in range(4):
            for h in range(2):
                out.append(f"ds_read_b64_tr_b16 {v(wd[u%5]+4*i+2*h,2)}, {v(da[i])} offset:{off + h*2048}")
        return out
    tch = sp; dbg = sp + 1; pv = sp + 2; sta = sp + 3
    a(f"""v_and_b32 {v(tch)}, 3, v1
          v_lshrrev_b32 {v(dbg)}, 2, v1
          v_min_u32 {v(dbg)}, 6, {v(dbg)}
          v_lshl_add_u32 {v(tch)}, {v(dbg)}, 6, {v(tch)}
          v_mul_u32_u24 {v(tch)}, 896, {v(tch)}
          s_mul_i32 s55, s34, {448*896}
          s_mul_i32 s49, s3, {4*896}
          s_add_u32 s55, s55, s49
          s_lshl_b32 s49, s35, 7
          s_add_u32 s55, s55, s49
          s_add_u32 s55, s55, 28672
          v_and_b32 {v(dbg)}, 31, v1
          v_lshlrev_b32 {v(dbg)}, 3, {v(dbg)}
          v_and_b32 {v(sta)}, 15, v1
          v_lshlrev_b32 {v(sta)}, 4, {v(sta)}
          s_lshl_b32 s56, s48, 8
          s_add_u32 s56, s56, {OFF_ST}""")
    a(f"""s_mul_i32 s57, s48, 56
          s_lshl_b32 s49, s37, 1
          s_add_u32 s57, s57, s49
          s_add_u32 s57, s57, s39
          s_lshl_b32 s57, s57, 12
          s_and_b32 s54, s38, 1
          s_lshl_b32 s58, s39, 1
          s_add_u32 s58, s58, s54
          s_mul_i32 s59, s50, 56
          s_mul_i32 s49, s38, 14
          s_add_u32 s59, s59, s49
          s_lshl_b32 s59, s59, 12
          s_lshl_b32 s49, s39, 11
          s_add_u32 s59, s59, s49
          s_lshl_b32 s60, s48, 2
          s_and_b32 s49, s33, 3
          s_add_u32 s60, s60, s49
          s_lshl_b32 s60, s60, 1
          s_add_u32 s60, s60, s39
          s_lshl_b32 s60, s60, 3
          s_add_u32 s60, s60, s35
          s_lshl_b32 s60, s60, 7
          s_add_u32 s60, s60, {OFF_FL}
          s_lshl_b32 s61, s50, 2
          s_add_u32 s61, s61, s38
          s_lshl_b32 s61, s61, 11
          s_add_u32 s61, s61, {OFF_FL}
          s_lshl_b32 s62, s3, 15
          s_lshl_b32 s49, s33, 10
          s_add_u32 s62, s62, s49
          s_add_u32 s62, s62, {OFF_FL + 900}
          s_lshl_b32 s63, s58, 9
          s_add_u32 s63, s63, s50
          s_mul_i32 s63, s63, 896
          s_lshl_b32 s49, s35, 7
          s_add_u32 s63, s63, s49
          s_and_b32 s49, s38, 2
          s_lshl_b32 s49, s49, 5
          s_add_u32 s63, s63, s49
          s_lshl_b32 s32, s50, 16
          s_lshl_b32 s49, s3, 13
          s_add_u32 s32, s32, s49
          s_add_u32 s32, s32, {OFF_V2}
          s_add_u32 s47, s32, 3072""")
    def wreads(S):
        c, e = divmod(S, 2)
        return [f"ds_read_b64_tr_b16 {v(wf[S&1][2*mat+F]+2*u,2)}, {v(wa[e][F])} offset:{(c%3)*16384 + mat*1024 + u*512}"
                for F in range(2) for mat in range(2) for u in range(2)]
    def xreads(S):
        c, e = divmod(S, 2); s = c % 3
        return [f"ds_read_b128 {v(xf[S&1][nt],4)}, {v(xa[e][s>>1])} offset:{(s&1)*32768 + nt*2048}" for nt in range(4)]
    def reads(S):
        w = wreads(S); x = xreads(S)
        return [x[0]] + w[0:4] + [x[1]] + w[4:8] + [x[2], x[3]]
    NPRE = int(OPT[OPT.index('npre') + 1]) if 'npre' in OPT else 6
    c1 = wdma(1) + xdma(1)
    if 'fs' in OPT: st()
    a("s_barrier")
    if 'fs' in OPT: st()
    for f in c1[:NPRE]: f()
    a.wait_smem()
    if 'fs' in OPT: st()
    a.wait_tag(('x', 0))
    if 'fs' in OPT: st()
    a("s_barrier")
    st()
    for x in reads(0): a(x)
    for S in range(14):
        c, e = divmod(S, 2)
        mains = []
        for nt in range(4):
            for F in range(2):
                for mat in range(2):
                    mains.append(m16(acc[mat][F][nt], wf[S & 1][2 * mat + F], xf[S & 1][nt], '0' if S == 0 else None))
        if e == 0:
            for mat in range(2):
                mains.insert(2 + mat, m16(cs[mat], wf[S & 1][2 * mat], ones, '0' if S == 0 else None))
        pre = []; rd = []; dm = []; ex = []
        if e == 1:
            def sync(c=c):
                if 'fine' in OPT: st()
                if c < 6: a.wait_tag(('x', c + 1))
                if c == 1: a.wait_tag(('d', 0))
                if c == 4: a.wait_tag(('d', 1))
                if c == 5: a.wait_tag(('d', 4))
                a.wait(lg=0)
                a("s_barrier")
                if 'fine' in OPT: st()
            pre = [sync]
        ch = lambda c: xdma(c) + wdma(c)
        tou = [] if 'nowt' in OPT else [f"buffer_load_dword {v(sp+4)}, {v(tch)}, s[20:23], s55 offen"]
        dm = {0: lambda: c1[NPRE:] + ch(2) + ddma(0), 1: lambda: ch(3)[:3], 2: lambda: ch(3)[3:], 3: lambda: ch(4)[:3], 4: lambda: ch(4)[3:],
              5: lambda: ch(5), 6: lambda: ddma(1) + tou, 7: lambda: ch(6)[:2], 8: lambda: ch(6)[2:], 9: lambda: ddma(2) + ddma(3),
              10: lambda: ddma(4), 11: lambda: ddma(5) + ddma(6), 12: lambda: ddma(7), 13: lambda: ddma(8) + ddma(9) + ddma(10)}[S]()
        if S < 13: rd = reads(S + 1)
        if S == 8: dm = dm + [f"buffer_load_dword {v(pv)}, {v(dbg)}, s[28:31], 0 offen sc1"]
        if S == 10:
            def chk():
                spin(a, pv, dbg, 's[28:31]', '0', '-1', first=False)
                a(f"buffer_load_dwordx4 {v(stv,4)}, {v(sta)}, s[16:19], s56 offen sc1")
            dm = dm + [chk]
        if S == 4: ex = dreads(0)
        if S == 10: ex = dreads(1)
        if S == 11:
            ex = dreads(2); d3 = dreads(3); ex += d3[:8]
        if S == 12:
            ex = d3[8:] + dreads(4)
            ex += [f"s_lshl_b32 s49, s3, 11", f"v_add_u32 {v(t0)}, s49, v2",
                   f"ds_write_b128 {v(t0)}, {v(cs[0],4)}", f"ds_write_b128 {v(t0)}, {v(cs[1],4)} offset:1024"]
        if S == 13:
            r0 = wf[0][0]
            ex = [f"s_and_b32 s49, s3, 5", f"s_lshl_b32 s49, s49, 11", f"v_add_u32 {v(t0)}, s49, v2", f"v_xor_b32 {v(t1)}, 0x800, {v(t0)}"]
            for F in range(2):
                for mat in range(2):
                    for hp in range(2):
                        dst = (wf[0][0] if hp == 0 else xf[0][0]) + 8 * mat + 4 * F
                        ex.append(f"ds_read_b128 {v(dst,4)}, {v(t1 if F else t0)} offset:{hp*4096 + mat*1024}")
        fills = pre + merge(*[l for l in (rd, dm) if l]) + ex if (rd or dm) else pre + ex
        weave(a, mains, fills)
    st()
    cv = wf[0][0]
    nm = wf[1][0]; c1 = nm + 4; d2 = nm + 8
    for i in range(4):
        a(f"v_lshlrev_b32 {v(d2+i)}, 16, {v(stv+i)}")
        a(f"v_and_b32 {v(nm+i)}, 0xffff0000, {v(stv+i)}")
        a(f"v_rcp_f32 {v(c1+i)}, {v(d2+i)}")
    for i in range(0, 16, 2): a(pk('add', cv + i, cv + i, xf[0][0] + i))
    for i in range(4):
        a(f"v_mul_f32 {v(d2+i)}, {v(d2+i)}, {v(d2+i)}")
        a(f"v_mul_f32 {v(c1+i)}, {lit(-math.log2(math.e))}, {v(c1+i)}")
    late = ddma(11) + ddma(12) + ddma(13)
    for nt in range(4):
        e = xf[0][0] + 8 * (nt & 1); hp = xf[1][nt]
        idx = [(F, r) for F in range(2) for r in range(4)]
        G = lambda F, r: acc[0][F][nt] + r
        U = lambda F, r: acc[1][F][nt] + r
        pi = [(F, r) for F in range(2) for r in (0, 2)]
        for F, r in pi: a(pk('fma', G(F,r), cv+4*F+r, ('b', nm+nt), G(F,r)))
        for F, r in pi: a(pk('mul', e+4*F+r, G(F,r), ('b', c1+nt)))
        if nt < 3: late[2 * nt]()
        for F, r in pi: a(pk('fma', U(F,r), cv+8+4*F+r, ('b', nm+nt), U(F,r)))
        for F, r in idx: a(f"v_exp_f32 {v(e+4*F+r)}, {v(e+4*F+r)}")
        for F, r in pi: a(pk('mul', U(F,r), U(F,r), G(F,r)))
        for F, r in pi: a(pk('fma', e+4*F+r, e+4*F+r, ('b', d2+nt), ('b', d2+nt)))
        if nt < 3: late[2 * nt + 1]()
        for F, r in idx: a(f"v_rcp_f32 {v(e+4*F+r)}, {v(e+4*F+r)}")
        for F, r in pi: a(pk('mul', U(F,r), U(F,r), e+4*F+r))
        for i in range(4): a(f"v_cvt_pk_bf16_f32 {v(hp+i)}, {v(U(i>>1,2*(i&1)))}, {v(U(i>>1,2*(i&1)+1))}")
        a(f"buffer_store_dwordx4 {v(hp,4)}, v2, s[16:19], s57 offen offset:{nt*1024} sc1")
    st()
    T2 = sp
    vh = vx; pa = vw; pv = xa[0][0]; vo = xa[0][1]; v2a = xa[1][0]; one = xa[1][1]
    xv = wa[0][0]
    assert xv % 2 == 0 and wa[1][1] == xv + 3
    hf = [[big + 8 * s + 4 * N for N in range(2)] for s in range(14)]
    ab = [[big + 112 + 16 * N + 4 * i for i in range(4)] for N in range(2)]
    tmp = ab[0][0]
    a(f"""v_lshlrev_b32 {v(pa)}, 3, {v(sta)}
          buffer_load_dword {v(pv)}, {v(pa)}, s[16:19], s61 offen sc1
          s_and_b32 s49, s38, 1
          s_lshl_b32 s49, s49, 10
          v_add_u32 {v(vh[0])}, s49, v2
          v_xor_b32 {v(vh[1])}, 0x400, {v(vh[0])}
          v_mov_b32 {v(one)}, 1""")
    a.wait(vm=1)
    a("s_mov_b64 exec, 1")
    a(f"buffer_store_dword {v(one)}, off, s[16:19], s60 sc1")
    a("s_mov_b64 exec, -1")
    st()
    spin(a, pv, pa, 's[16:19]', 's61', '0x7f', first=False)
    st()
    def hloads(u0, u1):
        for u in range(u0, u1):
            a(f"s_lshl_b32 s49, s{89+u%7}, 6")
            if u == 7: a(f"s_add_u32 s59, s59, 4096")
            a(f"s_add_u32 s49, s49, s59")
            for N in range(2):
                a(f"buffer_load_dwordx4 {v(hf[u][N],4)}, {v(vh[N])}, s[16:19], s49 offen sc1")
    hloads(0, 7)
    a(f"""v_and_b32 {v(t0)}, 15, v1
          v_mul_u32_u24 {v(vo)}, 28672, {v(t0)}
          v_lshl_add_u32 {v(vo)}, {v(t2)}, 3, {v(vo)}""")
    for cl in range(2):
        a(f"buffer_load_dwordx2 {v(xv+2*cl,2)}, {v(vo)}, s[4:7], s63 offen offset:{cl*32}")
    a(f"""s_lshl_b32 s49, s58, 4
          v_add_u32 {v(t0)}, s49, {v(t0)}
          v_cvt_f32_u32 {v(t0)}, {v(t0)}
          v_mul_f32 {v(t0)}, {lit(1/64)}, {v(t0)}
          v_cvt_f32_u32 {v(t1)}, {v(t2)}
          v_mul_f32 {v(t1)}, 4.0, {v(t1)}
          v_mul_f32 {v(tmp)}, {v(t1)}, {v(t0)}""")
    for k in range(1, 8): a(f"v_fmamk_f32 {v(tmp+k)}, {v(t0)}, {lit(float(16*(k>>2)+(k&3)))}, {v(tmp)}")
    for k in range(8): a(f"v_cos_f32 {v(tmp+8+k)}, {v(tmp+k)}")
    for k in range(8): a(f"v_sin_f32 {v(tmp+k)}, {v(tmp+k)}")
    a(f"""v_lshlrev_b32 {v(t1)}, 31, v1
          v_or_b32 {v(t1)}, 1.0, {v(t1)}
          v_cmp_gt_u32 vcc, 16, v1
          v_cndmask_b32 {v(tmp)}, {v(tmp)}, {v(t1)}, vcc""")
    for k in range(8): a(f"v_cvt_pk_bf16_f32 {v(T2+k)}, {v(tmp+8+k)}, {v(tmp+k)}")
    a(f"""v_bfe_u32 {v(t0)}, v1, 2, 2
          s_and_b32 s49, s3, 1
          v_xor_b32 {v(t0)}, s49, {v(t0)}
          s_lshl_b32 s49, s35, 2
          v_add_u32 {v(t0)}, s49, {v(t0)}
          v_subrev_u32 {v(t1)}, 14, {v(t0)}
          v_min_u32 {v(t0)}, {v(t0)}, {v(t1)}
          v_lshlrev_b32 {v(t0)}, 6, {v(t0)}
          v_sub_u32 {v(t1)}, 1344, {v(t0)}
          v_cmp_gt_u32 vcc, 448, {v(t0)}
          v_cndmask_b32 {v(t0)}, {v(t1)}, {v(t0)}, vcc
          v_lshl_add_u32 {v(t0)}, {v(t2)}, 10, {v(t0)}
          v_and_b32 {v(t1)}, 3, v1
          v_lshl_add_u32 {v(v2a)}, {v(t1)}, 4, {v(t0)}""")
    def cbar(grp):
        NLAB[0] += 1; L = f"CB{NLAB[0]}"
        a(f"s_cmp_lg_u32 s39, {grp}")
        a(f"s_cbranch_scc1 {L}")
        a("s_barrier")
        a.raw(f"{L}:")
    cbar(1)
    def v2dma():
        a("s_lshl_b32 m0, s3, 11")
        a.wait(vm=None)
        a.raw("    s_nop 0")
        a.raw(f"    buffer_load_dwordx4 {v(v2a)}, s[16:19], s32 offen sc1 lds")
        a.raw(f"    buffer_load_dwordx4 {v(v2a)}, s[16:19], s47 offen offset:1024 sc1 lds")
    for s in range(14):
        mains = [m16(ab[N][i], wd[s % 5] + 4 * i, hf[s][N], '0' if s == 0 else None) for N in range(2) for i in range(4)]
        for m in mains: a(m)
        if s == 0: st()
        if s == 1:
            a(f"buffer_load_dword {v(pv)}, {v(pa)}, s[16:19], s61 offen sc1")
            cbar(0)
            for x in dreads(5): a(x)
        if s == 4:
            spin(a, pv, pa, 's[16:19]', 's61', '0x7f00', first=False)
            hloads(7, 14)
            a(f"v_and_b32 {v(pa)}, 3, v1")
            a(f"v_lshlrev_b32 {v(pa)}, 13, {v(pa)}")
            st()
        if s == 6:
            a.wait(lg=0)
            a("s_barrier")
        if s == 9:
            a(f"buffer_load_dword {v(pv)}, {v(pa)}, s[16:19], s62 offen sc1")
        if 1 <= s < 9:
            for x in dreads(s + 5): a(x)
    a(f"v_cmp_ne_u32 vcc, 1, {v(pv)}")
    a(f"s_and_b32 s98, vcc_lo, 15")
    a(f"s_cbranch_scc1 V2LATE")
    v2dma()
    a.raw("V2LATE:")
    st()
    for k in range(1, 4):
        C, N = k >> 1, k & 1
        a(f"s_xor_b32 s49, s3, {k}")
        a(f"s_mul_i32 s49, s49, 6144")
        a(f"s_add_u32 s49, s49, {RB}")
        a(f"v_add_u32 {v(t0)}, s49, v2")
        for cl in range(2):
            a(f"ds_write_b128 {v(t0)}, {v(ab[N][2*C+cl],4)} offset:{(k-1)*2048 + cl*1024}")
    a(f"s_mul_i32 s49, s3, 6144")
    a(f"s_add_u32 s49, s49, {RB}")
    a(f"v_add_u32 {v(t0)}, s49, v2")
    va = [da[0], da[1]]
    for cl in range(2):
        a(f"""s_and_b32 s49, s38, 2
              s_add_u32 s49, s49, {cl}
              s_lshl_b32 s54, s35, 2
              s_add_u32 s54, s54, s49
              s_cmp_ge_u32 s54, 14
              s_cselect_b32 s64, 14, 0
              s_cselect_b32 s65, 0x80008000, 0
              s_sub_u32 s54, s54, s64
              s_cmp_ge_u32 s54, 7
              s_cselect_b32 s64, 15, 0
              s_cselect_b32 s54, 0x80008000, 0
              s_xor_b32 s65, s65, s54
              v_and_b32 {v(t1)}, 1, {v(t2)}
              v_xor_b32 {v(t1)}, s49, {v(t1)}
              v_lshlrev_b32 {v(t1)}, 6, {v(t1)}
              v_lshl_add_u32 {v(t1)}, {v(t2)}, 11, {v(t1)}
              v_and_b32 {v(va[cl])}, 15, v1
              v_xor_b32 {v(va[cl])}, s64, {v(va[cl])}
              v_lshl_add_u32 {v(va[cl])}, {v(va[cl])}, 2, {v(t1)}""")
        for k in range(8): a(f"v_xor_b32 {v(wd[0]+8*cl+k)}, s65, {v(T2+k)}")
    a.wait(lg=0)
    a("s_barrier")
    pr = big
    for k in range(3):
        for cl in range(2):
            a(f"ds_read_b128 {v(pr+8*k+4*cl,4)}, {v(t0)} offset:{k*2048 + cl*1024}")
    y = ab[0][0]; e = big + 32; xs = big + 40
    for i in range(8): a(f"v_add_f32 {v(y+i)}, {v(y+i)}, {v(pr+i)}")
    for i in range(8): a(f"v_add_f32 {v(pr+8+i)}, {v(pr+8+i)}, {v(pr+16+i)}")
    for i in range(8): a(f"v_add_f32 {v(y+i)}, {v(y+i)}, {v(pr+8+i)}")
    for i in range(8): a(f"v_mul_f32 {v(e+i)}, {lit(-math.log2(math.e))}, {v(y+i)}")
    for i in range(8): a(f"v_exp_f32 {v(e+i)}, {v(e+i)}")
    a(f"v_mov_b32 {v(t1)}, {lit(2048*448/2)}")
    for i in range(8): a(f"v_fma_f32 {v(e+i)}, {v(e+i)}, {v(t1)}, {v(t1)}")
    for i in range(8): a(f"v_rcp_f32 {v(e+i)}, {v(e+i)}")
    for i in range(4):
        a(f"v_lshlrev_b32 {v(xs+2*i)}, 16, {v(xv+i)}")
        a(f"v_and_b32 {v(xs+2*i+1)}, 0xffff0000, {v(xv+i)}")
    for i in range(8): a(f"v_mul_f32 {v(y+i)}, {v(y+i)}, {v(e+i)}")
    st()
    a("s_cmp_eq_u32 s98, 0")
    a("s_cbranch_scc1 V2OK")
    spin(a, pv, pa, 's[16:19]', 's62', '0xf')
    v2dma()
    a.raw("V2OK:")
    st()
    a.raw("    s_waitcnt vmcnt(0)")
    a.wait(vm=0)
    a("s_barrier")
    st()
    vf = big + 48; so = big + 80
    n = 0
    for cl in range(2):
        for par in range(2):
            for kk in range(2):
                for hh in range(2):
                    o = (16 * kk + 2 * hh) * 2 + par
                    a(f"ds_read2st64_b32 {v(vf+4*n+2*hh,2)}, {v(va[cl])} offset0:{o} offset1:{o+2}")
                n += 1
    n = 0
    for cl in range(2):
        for par in range(2):
            for kk in range(2):
                b = (T2 if par == 0 else wd[0] + 8 * cl) + 4 * kk
                a(m16(so + 4 * cl, vf + 4 * n, b, '0' if (par == 0 and kk == 0) else None)); n += 1
    for cl in range(2):
        for i in range(4): a(f"v_fmac_f32 {v(xs+4*cl+i)}, {v(so+4*cl+i)}, {v(y+4*cl+i)}")
        for i in range(2): a(f"v_cvt_pk_bf16_f32 {v(xv+2*cl+i)}, {v(xs+4*cl+2*i)}, {v(xs+4*cl+2*i+1)}")
        a(f"buffer_store_dwordx2 {v(xv+2*cl,2)}, {v(vo)}, s[24:27], s63 offen offset:{cl*32}")
    st.dump(t0)
    a("s_endpgm")
    return R.maxv

def spec(a, st):
    XS = 928; VS = 1032
    WB = 66560; TB = WB + 65536; SB = TB + 16384
    a("""s_load_dwordx2 s[8:9], s[0:1], 8
         s_load_dwordx2 s[12:13], s[0:1], 16
         s_mov_b32 s10, 921600
         s_mov_b32 s14, 921600""")
    R = RegAlloc(start=3, limit=256)
    t0 = R.get(); t1 = R.get(); t2 = R.get(); t3 = R.get(); t4 = R.get()
    mi = R.get(8, 2)
    IT = R.get(56, 2); FT = R.get(56, 2); AC = R.get(64, 2); AF = R.get(32, 2); TF = R.get(32, 2)
    a(f"""s_and_b32 s33, s2, 7
          s_lshl_b32 s33, s33, 2
          s_lshr_b32 s2, s2, 3
          s_add_u32 s2, s2, s33
          s_and_b32 s33, s3, 3
          s_lshr_b32 s34, s3, 2
          s_lshr_b32 s44, s33, 1
          s_and_b32 s45, s3, 1
          s_mul_i32 s35, s2, 896
          s_mul_i32 s49, s3, {8*28672}
          s_add_u32 s35, s35, s49
          s_mul_i32 s36, s3, {8*XS}
          """)
    a.wait_smem()
    st()
    a("s_mov_b32 exec_hi, 0x00ffffff")
    for i in range(8):
        a(f"s_add_u32 m0, s36, {i*XS}")
        a(f"s_add_u32 s49, s35, {i*28672}")
        a(f"buffer_load_dwordx4 v2, s[4:7], s49 offen lds", tag='x')
    a("s_mov_b32 exec_hi, -1")
    a(f"""s_lshl_b32 s37, s2, 13
          s_add_u32 s37, s37, {OFF_FL}
          v_lshlrev_b32 {v(t0)}, 7, v1""")
    for i in range(4): a(f"v_mov_b32 {v(AF+i)}, 0")
    wave0(a, [f"buffer_store_dwordx2 {v(AF,2)}, {v(t0)}, s[16:19], s37 offen sc1"])
    a(f"""v_and_b32 {v(t0)}, 15, v1
          s_lshl_b32 s49, s33, 4
          v_add_u32 {v(t0)}, s49, {v(t0)}
          v_cmp_eq_u32 vcc, 1, {v(t0)}
          v_cndmask_b32 {v(t0)}, {v(t0)}, 64, vcc
          v_and_b32 {v(t1)}, 1, {v(t0)}
          v_cvt_f32_u32 {v(t1)}, {v(t1)}
          v_mul_f32 {v(t1)}, {lit(-0.25)}, {v(t1)}
          v_lshrrev_b32 {v(t0)}, 1, {v(t0)}
          v_cvt_f32_u32 {v(t0)}, {v(t0)}
          v_mul_f32 {v(t0)}, {lit(1/64)}, {v(t0)}
          v_lshrrev_b32 {v(t4)}, 4, v1
          v_lshlrev_b32 {v(t2)}, 2, {v(t4)}
          v_cvt_f32_u32 {v(t2)}, {v(t2)}
          v_fma_f32 {v(TF)}, {v(t2)}, {v(t0)}, {v(t1)}""")
    for k in range(1, 16): a(f"v_fmamk_f32 {v(TF+k)}, {v(t0)}, {lit(float(16*(k>>2)+(k&3)))}, {v(TF)}")
    for k in range(16): a(f"v_cos_f32 {v(TF+k)}, {v(TF+k)}")
    a(f"""v_lshrrev_b32 {v(t0)}, 2, v1
          v_mul_u32_u24 {v(t0)}, {XS}, {v(t0)}
          v_and_b32 {v(t1)}, 3, v1
          v_lshlrev_b32 {v(t1)}, 3, {v(t1)}
          v_add_u32 {v(t2)}, {v(t0)}, {v(t1)}
          v_sub_u32 {v(t3)}, {v(t0)}, {v(t1)}
          s_lshl_b32 s42, s34, 7
          s_lshl_b32 s49, s34, 3
          s_sub_u32 s43, 32, s49""")
    for t in range(4):
        if t: a("s_add_u32 s42, s42, s43")
        a(f"v_add_u32 {v(mi+t)}, s42, {v(t2)}")
        a(f"s_sub_u32 s49, 440, s42")
        a(f"v_add_u32 {v(mi+4+t)}, s49, {v(t3)}")
    a(f"""v_lshrrev_b32 {v(t0)}, 3, v1
          v_mul_u32_u24 {v(t1)}, {XS}, {v(t0)}
          v_and_b32 {v(t2)}, 7, v1
          v_lshl_add_u32 {v(t1)}, {v(t2)}, 4, {v(t1)}
          v_add_u32 {v(t1)}, s36, {v(t1)}""")
    s1 = [AF, AF + 1]; s2 = [AF + 2, AF + 3]
    a(f"""s_lshl_b32 s49, s3, 5
          s_add_u32 s49, s49, {SB}
          v_lshl_add_u32 {v(t2)}, {v(t0)}, 2, s49
          s_lshl_b32 s49, s34, 6
          s_lshl_b32 s46, s45, 5
          s_add_u32 s49, s49, s46
          s_lshl_b32 s46, s44, 3
          s_add_u32 s49, s49, s46
          s_add_u32 s49, s49, {SB + 256}
          v_lshrrev_b32 {v(t3)}, 5, v1
          v_lshl_add_u32 {v(t3)}, {v(t3)}, 4, s49
          v_and_b32 {v(AF+4)}, 3, {v(t0)}
          v_lshl_add_u32 {v(t3)}, {v(AF+4)}, 1, {v(t3)}
          s_lshl_b32 s46, s45, 7
          s_lshr_b32 s49, s3, 1
          s_lshl_b32 s49, s49, 2
          s_add_u32 s46, s46, s49
          s_add_u32 s46, s46, {SB + 512}
          v_lshl_add_u32 {v(AF+4)}, {v(t0)}, 4, s46
          v_lshlrev_b32 {v(t0)}, 2, v1
          v_add_u32 {v(AF+20)}, {SB + 512}, {v(t0)}
          s_lshl_b32 s46, s2, 8
          s_add_u32 s46, s46, {OFF_ST}
          v_lshlrev_b32 {v(t4)}, 4, {v(t4)}
          v_add_u32 {v(t4)}, {SB}, {v(t4)}""")
    tv = AC + 32; u0, u1, u2, u3 = AC + 48, AC + 49, AC + 50, AC + 51
    a(f"""v_and_b32 {v(u0)}, 31, v1
          v_lshrrev_b32 {v(u1)}, 5, v1
          v_lshlrev_b32 {v(u1)}, 2, {v(u1)}
          s_lshl_b32 s49, s44, 4
          v_add_u32 {v(u1)}, s49, {v(u1)}
          s_cmp_eq_u32 s34, 0
          s_cselect_b64 vcc, -1, 0
          v_cndmask_b32 {v(u2)}, {v(u1)}, {v(u0)}, vcc
          v_cndmask_b32 {v(u3)}, {v(u0)}, {v(u1)}, vcc""")
    a(f"""v_cmp_le_u32 s[62:63], 16, {v(u2)}
          v_cmp_eq_u32 s[50:51], 0, {v(u2)}
          s_cmp_eq_u32 s2, 0
          s_cselect_b64 s[52:53], -1, 0
          s_and_b64 s[54:55], s[62:63], s[52:53]
          s_and_b64 s[50:51], s[50:51], s[52:53]
          s_cmp_eq_u32 s45, 1
          s_cselect_b64 s[50:51], s[50:51], 0
          s_and_b64 s[56:57], s[50:51], vcc
          v_lshlrev_b32 {v(u2)}, 6, {v(u2)}
          v_add_u32 {v(u2)}, s2, {v(u2)}
          v_subrev_u32 {v(u0)}, 992, {v(u2)}
          v_cndmask_b32 {v(u2)}, {v(u2)}, {v(u0)}, s[54:55]
          v_mov_b32 {v(u0)}, 1024
          v_cndmask_b32 {v(u2)}, {v(u2)}, {v(u0)}, s[56:57]
          v_cvt_f32_u32 {v(u2)}, {v(u2)}
          v_cvt_f32_u32 {v(u3)}, {v(u3)}
          v_mul_f32 {v(u2)}, {lit(1/2048)}, {v(u2)}
          v_mul_f32 {v(u0)}, {lit(1/32)}, {v(u3)}
          v_cndmask_b32 {v(u0)}, {v(u0)}, {v(u2)}, vcc
          s_cmp_eq_u32 s45, 1
          s_cselect_b32 s49, {lit(-0.25)}, 0
          v_mov_b32 {v(u1)}, s49
          v_cndmask_b32 {v(u1)}, {v(u1)}, 0, s[56:57]
          v_fma_f32 {v(tv)}, {v(u2)}, {v(u3)}, {v(u1)}""")
    for i in range(1, 8): a(f"v_fmamk_f32 {v(tv+i)}, {v(u0)}, {lit(float(8*(i>>2)+(i&3)))}, {v(tv)}")
    a(f"v_mul_f32 {v(u3)}, 0.5, {v(u3)}")
    a(f"v_cndmask_b32 {v(tv)}, {v(tv)}, {v(u3)}, s[50:51]")
    for i in range(8): a(f"v_cos_f32 {v(tv+i)}, {v(tv+i)}")
    for i in range(4): a(f"v_cvt_pk_bf16_f32 {v(tv+8+i)}, {v(tv+2*i)}, {v(tv+2*i+1)}")
    a(f"""s_andn2_b64 s[58:59], s[52:53], s[62:63]
          s_cmp_lg_u32 s2, 0
          s_cselect_b32 s49, s45, 0
          s_mul_i32 s49, s49, 0x80008000""")
    for i in range(4): a(f"v_xor_b32 {v(tv+12+i)}, s49, {v(tv+8+i)}")
    for i in range(4): a(f"v_cndmask_b32 {v(tv+12+i)}, {v(tv+12+i)}, 0, s[58:59]")
    for i in range(4): a(f"v_cndmask_b32 {v(tv+8+i)}, {v(tv+8+i)}, 0, s[54:55]")
    a(f"""s_lshl_b32 s60, s34, 3
          s_add_u32 s60, s60, s44
          s_lshl_b32 s60, s60, 10
          s_add_u32 s60, s60, {TB}
          s_mul_i32 s49, s45, 6144
          s_add_u32 s49, s49, s60
          v_add_u32 {v(u0)}, s49, v2
          s_cmp_eq_u32 s2, 0
          s_cselect_b32 s49, 0, 1
          s_xor_b32 s49, s49, s45
          s_lshl_b32 s49, s49, 11
          s_add_u32 s49, s49, s60
          v_add_u32 {v(u1)}, s49, v2""")
    a(f"ds_write_b128 {v(u0)}, {v(tv+8,4)}")
    a(f"ds_write_b128 {v(u1)}, {v(tv+12,4)} offset:2048")
    w0, w1, w2, w3 = FT + 52, FT + 53, FT + 54, FT + 55
    a(f"""s_lshl_b32 s38, s3, 8
          s_add_u32 s38, s38, s2
          s_mul_i32 s49, s34, 992
          s_cmp_eq_u32 s2, 0
          s_cselect_b32 s49, s49, 0
          s_sub_u32 s38, s38, s49
          s_sub_u32 s39, 2048, s38
          s_cmp_eq_u32 s38, 0
          s_cselect_b32 s40, 1024, s39
          v_and_b32 {v(w0)}, 31, v1
          v_lshlrev_b32 {v(w0)}, 4, {v(w0)}
          v_add_u32 {v(w0)}, 2, {v(w0)}
          v_cmp_gt_u32 vcc, 32, v1
          v_mov_b32 {v(w1)}, s38
          v_mov_b32 {v(w2)}, s39
          v_mov_b32 {v(w3)}, s40
          v_cndmask_b32 {v(w2)}, {v(w2)}, {v(w1)}, vcc
          v_cndmask_b32 {v(w3)}, {v(w3)}, {v(w1)}, vcc
          v_mov_b32 {v(w1)}, 450
          v_mad_u32_u24 {v(w2)}, {v(w2)}, {v(w1)}, {v(w0)}
          v_mad_u32_u24 {v(w3)}, {v(w3)}, {v(w1)}, {v(w0)}
          v_mov_b32 {v(w0)}, {(-28800) & 0xffffffff:#x}
          v_mov_b32 {v(w1)}, 28800
          v_cndmask_b32 {v(w0)}, {v(w0)}, {v(w1)}, vcc
          s_lshl_b32 s41, s3, 13""")
    wdm = []
    for i in range(4):
        for mat in range(2):
            wdm.append((f"v_add_u32 {v(w2)}, {v(w2)}, {v(w0)}\n" if i and not mat else "") +
                       f"s_add_u32 m0, s41, {WB + i*2048 + mat*1024}\n" +
                       f"buffer_load_dwordx4 {v(w2 if i else w3)}, s[{8+4*mat}:{11+4*mat}], 0 offen lds")
    st()
    if PRIO: a("s_setprio 3")
    a.wait_tag('x')
    st()
    for i in range(7): a(f"ds_read_b128 {v(AC+4*i,4)}, {v(t1)} offset:{i*128}")
    for x in wdm[:4]: a(x)
    for i in range(28):
        a(f"v_dot2c_f32_bf16 {v(s1[i&1])}, 0x3f803f80, {v(AC+i)}")
        a(f"v_dot2c_f32_bf16 {v(s2[i&1])}, {v(AC+i)}, {v(AC+i)}")
    mean = s1[0]; var = s2[0]
    a(f"v_add_f32 {v(mean)}, {v(s1[0])}, {v(s1[1])}")
    a(f"v_add_f32 {v(var)}, {v(s2[0])}, {v(s2[1])}")
    for m in ("quad_perm:[1,0,3,2]", "quad_perm:[2,3,0,1]", "row_half_mirror"):
        for r in (mean, var): a(f"v_add_f32_dpp {v(r)}, {v(r)}, {v(r)} {m} row_mask:0xf bank_mask:0xf")
    nm = s1[1]; rs = s2[1]
    a(f"""v_mul_f32 {v(mean)}, {lit(1/448)}, {v(mean)}
          v_mul_f32 {v(var)}, {lit(1/448)}, {v(var)}
          v_fma_f32 {v(var)}, -{v(mean)}, {v(mean)}, {v(var)}
          v_max_f32 {v(var)}, 0, {v(var)}
          v_cvt_pk_bf16_f32 {v(var)}, {v(var)}, {v(var)}
          v_lshlrev_b32 {v(var)}, 16, {v(var)}
          v_add_f32 {v(var)}, {lit(1e-5)}, {v(var)}
          v_cvt_pk_bf16_f32 {v(var)}, {v(var)}, {v(var)}
          v_lshlrev_b32 {v(var)}, 16, {v(var)}
          v_sqrt_f32 {v(var)}, {v(var)}
          v_cvt_pk_bf16_f32 {v(nm)}, {v(var)}, -{v(mean)}
          v_lshlrev_b32 {v(var)}, 16, {v(nm)}
          v_rcp_f32 {v(rs)}, {v(var)}""")
    a("s_mov_b32 exec_lo, 0x01010101\ns_mov_b32 exec_hi, 0x01010101")
    a(f"ds_write_b16_d16_hi {v(t3)}, {v(nm)}")
    a(f"ds_write_b32 {v(t2)}, {v(rs)}")
    a(f"ds_write_b32 {v(AF+4)}, {v(nm)}")
    a("s_mov_b64 exec, -1")
    a.wait(lg=0)
    a("s_barrier")
    st()
    rsv = TF + 16; nmf = AF; Tp = AF + 8; cin = AF + 16
    a(f"ds_read_b32 {v(t2)}, {v(AF+20)}")
    for k in range(4): a(f"ds_read_b128 {v(rsv+4*k,4)}, {v(t4)} offset:{64*k}")
    for ks in range(2): a(f"ds_read_b128 {v(nmf+4*ks,4)}, {v(t4)} offset:{256 + 64*ks}")
    seq = [(t, arr, ks) for t in range(4) for arr in range(4) for ks in range(2)]
    def xr(n):
        t, arr, ks = seq[n]
        return [f"ds_read_b64_tr_b16 {v(IT+4*(n%14)+2*u,2)}, {v(mi+4*(arr>>1)+t)} offset:{(32*ks+16*u)*XS + 448*(arr&1)}" for u in range(2)]
    for n in range(4):
        for x in xr(n): a(x)
    for k in range(0, 16, 2): a(pk('mul', TF+k, TF+k, rsv+k))
    wave0(a, [f"buffer_store_dword {v(t2)}, {v(t0)}, s[16:19], s46 offen sc1"])
    nv0 = a.nvm
    for n in range(4, 10):
        for x in xr(n): a(x)
    for k in range(8): a(f"v_cvt_pk_bf16_f32 {v(Tp+k)}, {v(TF+2*k)}, {v(TF+2*k+1)}")
    a(m16(cin, Tp, nmf, '0')); a(m16(cin, Tp + 4, nmf + 4))
    for n in range(10, 14):
        for x in xr(n): a(x)
    A = lambda t, arr: AC + 16 * t + 4 * arr
    def fold(t):
        out = []
        d1 = TF + 8 * (t & 1); d2 = d1 + 4
        for r in (0, 2):
            out += [pk('add', d1+r, A(t,0)+r, A(t,1)+r, neg=[1]), pk('add', A(t,0)+r, A(t,0)+r, A(t,1)+r)]
        for r in (0, 2):
            out += [pk('add', d2+r, A(t,2)+r, A(t,3)+r, neg=[1]), pk('add', A(t,2)+r, A(t,2)+r, A(t,3)+r)]
        q = "quad_perm:[3,2,1,0] row_mask:0xf bank_mask:0xf"
        for r in range(4):
            out += [f"v_subrev_f32_dpp {v(A(t,1)+r)}, {v(A(t,2)+r)}, {v(A(t,0)+r)} {q}",
                    f"v_add_f32_dpp {v(A(t,0)+r)}, {v(A(t,2)+r)}, {v(A(t,0)+r)} {q}"]
        for r in range(4):
            out += [f"v_subrev_f32_dpp {v(A(t,2)+r)}, {v(d2+r)}, {v(d1+r)} {q}",
                    f"v_add_f32_dpp {v(A(t,3)+r)}, {v(d2+r)}, {v(d1+r)} {q}"]
        return out
    for t in range(4):
        mains = []; fills = []
        for n in range(8 * t, 8 * t + 8):
            _, arr, ks = seq[n]
            mains.append(m16(A(t, arr), Tp + 4 * ks, IT + 4 * (n % 14), v(cin, 4) if ks == 0 else None))
        fl = fold(t - 1) if t else []
        for i, m in enumerate(mains):
            a(m)
            n = 8 * t + i + 14
            if n < 32:
                for x in xr(n): a(x)
            if t < 2 and i in (1, 5): a(wdm[4 + 2 * t + (i >> 2)])
            if i >= 2:
                for x in fl[(i - 2) * 4:(i - 1) * 4]: a(x)
    a(f"v_mov_b32 {v(t0)}, 1")
    a(f"s_lshl_b32 s49, s2, 3")
    wave0(a, [f"s_waitcnt vmcnt({a.nvm - nv0})", "s_mov_b64 exec, 1", f"buffer_store_dword {v(t0)}, off, s[28:31], s49 sc1", "s_mov_b64 exec, -1"])
    a(f"""v_lshrrev_b32 {v(t1)}, 4, v1
          v_lshlrev_b32 {v(t1)}, 17, {v(t1)}
          v_and_b32 {v(t2)}, 15, v1
          v_lshl_add_u32 {v(t1)}, {v(t2)}, 4, {v(t1)}
          s_lshl_b32 s46, s33, 19
          s_lshl_b32 s49, s2, 11
          s_add_u32 s46, s46, s49
          s_lshl_b32 s49, s34, 10
          s_add_u32 s46, s46, s49
          s_add_u32 s46, s46, {OFF_V1}
          s_add_u32 s47, s46, 65536""")
    for x in fold(3): a(x)
    st()
    for r in range(4):
        for par in range(2):
            o = AF + 4 * (2 * r + par)
            for cs_ in range(2):
                for th in range(2):
                    a(f"v_cvt_pk_bf16_f32 {v(o+2*cs_+th)}, {v(A(2*th,2*par+cs_)+r)}, {v(A(2*th+1,2*par+cs_)+r)}")
            a(f"buffer_store_dwordx4 {v(o,4)}, {v(t1)}, s[16:19], s{46+(r>>1)} offen offset:{(r&1)*512 + par*256} sc1", tag='v1s')
    st()
    fa = mi + 1; wr = mi + 2; ga = mi + 3; gr = mi + 4; vo = mi + 5; tb = mi + 6; pv = mi + 7
    a(f"v_and_b32 {v(t4)}, 31, v1")
    a(f"v_lshlrev_b32 {v(t4)}, 3, {v(t4)}")
    a(f"buffer_load_dword {v(pv)}, {v(t4)}, s[28:31], 0 offen sc1", tag='dp')
    if PRIO: a("s_setprio 0")
    K = mi
    a(f"""v_and_b32 {v(t2)}, 31, v1
          s_lshl_b32 s49, s33, 6
          s_add_u32 s49, s49, 2
          s_sub_u32 s49, s49, s34
          v_lshl_add_u32 {v(t2)}, {v(t2)}, 1, s49
          v_cvt_f32_u32 {v(t2)}, {v(t2)}
          v_mul_f32 {v(t2)}, {lit(1/448)}, {v(t2)}
          v_lshrrev_b32 {v(t1)}, 5, v1
          v_cvt_f32_u32 {v(t3)}, {v(t1)}
          v_mul_f32 {v(K)}, 4.0, {v(t2)}
          v_fma_f32 {v(t3)}, {v(t3)}, 2.0, 0.5
          v_cos_f32 {v(K)}, {v(K)}
          v_mul_f32 {v(t3)}, {v(t3)}, {v(t2)}
          v_add_f32 {v(K)}, {v(K)}, {v(K)}""")
    def f1chain(P0, n, d, ks0):
        out = []
        sl = lambda P: AC + 4 * (P % 8)
        for P in range(P0, P0 + n):
            if P < P0 + 2:
                for u in range(2):
                    k = 4 * P + u
                    out.append(f"v_fmamk_f32 {v(sl(P)+2+u)}, {v(t2)}, {lit(float(k))}, {v(t3)}" if k else f"v_mov_b32 {v(sl(P)+2+u)}, {v(t3)}")
                for u in range(2): out.append(f"v_cos_f32 {v(sl(P)+u)}, {v(sl(P)+2+u)}")
                for u in range(2): out.append(f"v_sin_f32 {v(sl(P)+2+u)}, {v(sl(P)+2+u)}")
            else:
                for c in (0, 2): out.append(pk('fma', sl(P)+c, sl(P-1)+c, ('b', K), sl(P-2)+c, neg=[2]))
            Pc = P - 1
            for Pc in ([P - 1, P] if P == P0 + n - 1 else [P - 1]):
                t, q = divmod(Pc - P0, d)
                if Pc >= P0 and t & 1:
                    for c in range(2):
                        for u in range(2):
                            out.append(f"v_cvt_pk_bf16_f32 {v(FT+8*(ks0+q)+4*c+2*u+(t>>1))}, {v(sl(Pc-d)+2*c+u)}, {v(sl(Pc)+2*c+u)}")
        return out
    for x in f1chain(0, 16, 4, 0): a(x)
    a(f"""s_lshl_b32 s49, s3, 10
          s_add_u32 s49, s49, s37
          v_and_b32 {v(tb)}, 3, v1
          v_lshlrev_b32 {v(tb)}, 13, {v(tb)}
          v_and_b32 {v(vo)}, 4, v1
          v_lshl_add_u32 {v(tb)}, {v(vo)}, 10, {v(tb)}
          s_lshl_b32 s50, s3, 15
          s_lshr_b32 s51, s2, 3
          s_lshl_b32 s51, s51, 10
          s_add_u32 s50, s50, s51
          s_add_u32 s50, s50, {OFF_FL + 896}""")
    if PRIO: a("s_setprio 3")
    st()
    a.wait_tag('v1s')
    a(f"s_mov_b64 exec, 1\nbuffer_store_dword {v(t0)}, off, s[16:19], s49 offset:896 sc1\ns_mov_b64 exec, -1")
    st()
    spin(a, pv, t4, 's[28:31]', '0', '-1', first=False)
    a(f"buffer_load_dword {v(pv)}, {v(tb)}, s[16:19], s50 offen sc1")
    if PRIO: a("s_setprio 0")
    for x in f1chain(16, 12, 3, 4): a(x)
    a(f"""s_lshl_b32 s51, s2, 16
          s_lshl_b32 s49, s3, 13
          s_add_u32 s51, s51, s49
          s_add_u32 s51, s51, {OFF_V1}
          s_mul_i32 s52, s3, {4*VS}""")
    if PRIO: a("s_setprio 3")
    st()
    spin(a, pv, tb, 's[16:19]', 's50', '0xff', first=False)
    a("s_barrier")
    st()
    for hh in range(2):
        for i in range(4):
            a(f"s_add_u32 m0, s52, {(hh*32+i)*VS}")
            a(f"s_add_u32 s49, s51, {i*2048 + hh*1024}")
            a(f"buffer_load_dwordx4 v2, s[16:19], s49 offen sc1 lds", tag=('v', hh))
    if PRIO: a("s_setprio 0")
    a(f"""v_and_b32 {v(t2)}, 31, v1
          s_lshl_b32 s49, s33, 5
          v_add_u32 {v(t2)}, s49, {v(t2)}
          v_cvt_f32_u32 {v(t3)}, {v(t2)}
          v_add_f32 {v(t3)}, 0.5, {v(t3)}
          v_mul_f32 {v(t3)}, {lit(1/448)}, {v(t3)}
          s_sub_u32 s49, 2, s34
          v_lshl_add_u32 {v(t4)}, {v(t1)}, 3, s49
          v_mul_f32 {v(K)}, {lit(16.0)}, {v(t3)}
          v_cmp_eq_u32 vcc, 10, {v(t4)}
          v_cvt_f32_u32 {v(t4)}, {v(t4)}
          v_cos_f32 {v(K)}, {v(K)}
          v_mul_f32 {v(t4)}, {v(t4)}, {v(t3)}
          v_cndmask_b32 {v(pv)}, 1.0, 0.5, vcc
          v_add_f32 {v(K)}, {v(K)}, {v(K)}""")
    sl = lambda Q: AC + 8 * (Q % 4)
    def i1cvt(Q):
        for c in range(2):
            for h in range(2):
                a(f"v_cvt_pk_bf16_f32 {v(IT+8*(Q>>1)+4*c+2*(Q&1)+h)}, {v(sl(Q)+4*c+2*h)}, {v(sl(Q)+4*c+2*h+1)}")
    for Q in range(14):
        if Q < 2:
            for r in range(4):
                k = 16 * Q + 2 * r
                a(f"v_fmamk_f32 {v(sl(Q)+4+r)}, {v(t3)}, {lit(float(k))}, {v(t4)}" if k else f"v_mov_b32 {v(sl(Q)+4+r)}, {v(t4)}")
            for r in range(4): a(f"v_cos_f32 {v(sl(Q)+r)}, {v(sl(Q)+4+r)}")
            for r in range(4): a(f"v_sin_f32 {v(sl(Q)+4+r)}, {v(sl(Q)+4+r)}")
        else:
            for c in range(0, 8, 2): a(pk('fma', sl(Q)+c, sl(Q-1)+c, ('b', K), sl(Q-2)+c, neg=[2]))
        if Q: i1cvt(Q - 1)
    a(f"v_mul_f32 {v(sl(13)+7)}, {v(sl(13)+7)}, {v(pv)}")
    a(f"""v_and_b32 {v(t3)}, 31, v1
          v_mul_u32_u24 {v(fa)}, {VS}, {v(t3)}
          v_lshl_add_u32 {v(fa)}, {v(t1)}, 5, {v(fa)}
          s_lshl_b32 s49, s34, 8
          v_add_u32 {v(fa)}, s49, {v(fa)}
          v_lshlrev_b32 {v(vo)}, 2, {v(t2)}
          s_lshl_b32 s49, s34, 1
          s_sub_u32 s49, {WB + 2}, s49
          v_lshl_add_u32 {v(wr)}, {v(t1)}, 13, s49
          v_add_u32 {v(wr)}, {v(wr)}, {v(vo)}
          v_lshl_add_u32 {v(vo)}, {v(t1)}, 18, {v(vo)}
          s_lshl_b32 s49, s34, 15
          v_add_u32 {v(gr)}, s49, v2
          s_lshl_b32 s49, s33, 11
          v_add_u32 {v(ga)}, s49, {v(gr)}
          v_add_u32 {v(tb)}, {TB}, v2
          s_lshl_b32 s53, s2, 11
          s_lshl_b32 s49, s34, 10
          s_add_u32 s53, s53, s49
          s_add_u32 s53, s53, {OFF_V2}""")
    i1cvt(13)
    for k in range(8): a(f"ds_read_b128 {v(TF+4*k,4)}, {v(tb)} offset:{k*1024}")
    st()
    def f1r(ks):
        hh, q = (0, ks) if ks < 4 else (1, ks - 4)
        return [f"ds_read_b64 {v(AF+16*(ks&1)+4*(2*d+c)+2*u,2)}, {v(fa)} offset:{hh*32*VS + c*512 + (4*q+u)*16 + 8*d}"
                for d in range(2) for c in range(2) for u in range(2)]
    a.wait_tag(('v', 0))
    a("s_barrier")
    st()
    for x in f1r(0): a(x)
    for ks in range(7):
        mains = [m32(AC + 16 * i, AF + 16 * (ks & 1) + 4 * i, FT + 8 * ks + 4 * (i >> 1), '0' if ks == 0 else None) for i in range(4)]
        fills = f1r(ks + 1) if ks < 6 else []
        if ks == 3:
            def sy():
                a.wait_tag(('v', 1)); a("s_barrier")
            fills = [sy] + fills
        weave(a, mains, fills, span=3)
    def wrd(r):
        return [f"ds_read_u16_d16_hi {v(FT+4*(r%14)+2*pm+mat)}, {v(wr)} offset:{(8*(r>>2)+(r&3))*2048 + mat*1024 + pm*512}"
                for pm in range(2) for mat in range(2)]
    BF = lambda i: AF + 8 * ((i + 2) & 3)
    Tf = lambda T, s: TF + 8 * T + 4 * s
    cvt = lambda i: [f"v_cvt_pk_bf16_f32 {v(BF(i)+k)}, {v(AC+16*i+2*k)}, {v(AC+16*i+2*k+1)}" for k in range(8)]
    for x in cvt(0) + cvt(1): a(x)
    def f2(i0):
        o0, o1 = AC + 16 * i0, AC + 16 * i0 + 16
        C, S = BF(i0), BF(i0 + 1)
        return [m32(o0, Tf(0, 0), C, '0'), m32(o1, Tf(3, 0), C, '0'), m32(o0, Tf(0, 1), C + 4), m32(o1, Tf(3, 1), C + 4),
                m32(o0, Tf(1, 0), S), m32(o1, Tf(2, 0), S), m32(o0, Tf(1, 1), S + 4), m32(o1, Tf(2, 1), S + 4)]
    wl = [x for r in range(14) for x in wrd(r)]
    weave(a, f2(0), cvt(2) + cvt(3) + wl[:16])
    weave(a, f2(2), wl[16:])
    st()
    for k in range(8): a(f"ds_read_b128 {v(TF+4*k,4)}, {v(tb)} offset:{8192 + k*1024}")
    a("s_barrier")
    al, de, gm, be = AC, AC + 16, AC + 32, AC + 48
    for r in range(16):
        Pr, Pi, Mr, Mi = [FT + 4 * (r % 14) + k for k in range(4)]
        a1, b1 = (t1, t2) if r & 1 else (t3, t4)
        A_, D_, G_, B_ = al + r, de + r, gm + r, be + r
        if r == 0:
            for k, x in enumerate((A_, D_, G_, B_)): a(f"v_mov_b32 {v(AF+k)}, {v(x)}")
        a(f"""v_sub_f32 {v(a1)}, {v(A_)}, {v(B_)}
              v_add_f32 {v(b1)}, {v(G_)}, {v(D_)}
              v_add_f32 {v(A_)}, {v(A_)}, {v(B_)}
              v_sub_f32 {v(G_)}, {v(G_)}, {v(D_)}
              v_mul_f32 {v(B_)}, {v(a1)}, {v(Pr)}
              v_mul_f32 {v(D_)}, {v(a1)}, {v(Pi)}
              v_fmac_f32 {v(B_)}, {v(b1)}, {v(Pi)}
              v_fma_f32 {v(D_)}, -{v(b1)}, {v(Pr)}, {v(D_)}
              v_fma_f32 {v(a1)}, {v(A_)}, {v(Mr)}, {v(B_)}
              v_fma_f32 {v(b1)}, {v(A_)}, {v(Mi)}, {v(D_)}
              v_fma_f32 {v(A_)}, {v(G_)}, {v(Mi)}, {v(a1)}
              v_fma_f32 {v(G_)}, -{v(G_)}, {v(Mr)}, {v(b1)}
              v_fma_f32 {v(B_)}, {v(B_)}, 2.0, -{v(A_)}
              v_fma_f32 {v(D_)}, {v(D_)}, -2.0, {v(G_)}""")
        if r == 0:
            a("s_cmp_lg_u32 s2, 0")
            a("s_cbranch_scc1 NOFIX")
            a("s_mov_b32 exec_hi, 0")
            a(f"""v_mul_f32 {v(A_)}, {v(AF)}, {v(Pr)}
                  v_mul_f32 {v(G_)}, {v(AF)}, {v(Pi)}
                  v_mul_f32 {v(D_)}, {v(AF+1)}, {v(Mr)}
                  v_mul_f32 {v(B_)}, {v(AF+1)}, {v(Mi)}
                  v_fmac_f32 {v(A_)}, {v(AF+2)}, {v(Pi)}
                  v_fma_f32 {v(G_)}, -{v(AF+2)}, {v(Pr)}, {v(G_)}
                  v_fmac_f32 {v(D_)}, {v(AF+3)}, {v(Mi)}
                  v_fma_f32 {v(B_)}, -{v(AF+3)}, {v(Mr)}, {v(B_)}""")
            a("s_mov_b32 exec_hi, -1")
            a.raw("NOFIX:")
        if r < 2:
            for x in wrd(r + 14): a(x)
        if r & 1:
            for i in range(4): a(f"v_cvt_pk_bf16_f32 {v(AF+8*i+(r>>1))}, {v(AC+16*i+r-1)}, {v(AC+16*i+r)}")
    st()
    def i2(i0):
        o0, o1 = AC + 16 * i0, AC + 16 * i0 + 16
        S, D = AF + 8 * i0, AF + 8 * i0 + 8
        return [m32(o0, S, Tf(0, 0), '0'), m32(o0, S + 4, Tf(0, 1)), m32(o0, D, Tf(3, 0)), m32(o0, D + 4, Tf(3, 1)),
                m32(o1, S, Tf(1, 0), '0'), m32(o1, S + 4, Tf(1, 1)), m32(o1, D, Tf(2, 0)), m32(o1, D + 4, Tf(2, 1))]
    def gout(i):
        out = []
        for s_ in range(2):
            o = FT + 8 * i + 4 * s_
            out += [f"v_cvt_pk_bf16_f32 {v(o+k)}, {v(AC+16*i+8*s_+2*k)}, {v(AC+16*i+8*s_+2*k+1)}" for k in range(4)]
            out.append(f"ds_write_b128 {v(ga)}, {v(o,4)} offset:{i*8192 + s_*1024}")
        return out
    mm = i2(0) + i2(2)
    for x in mm[:6]: a(x)
    weave(a, mm[6:], gout(0) + gout(1) + gout(2)[:5])
    for x in gout(2)[5:] + gout(3): a(x)
    a.wait(lg=0)
    a("s_barrier")
    st()
    ring = [AF, AF + 16, TF]
    def i1r(ks):
        return [f"ds_read_b128 {v(ring[ks%3]+4*i,4)}, {v(gr)} offset:{i*8192 + ks*1024}" for i in range(4)]
    for x in i1r(0) + i1r(1): a(x)
    for ks in range(7):
        mains = [m32(AC + 16 * i, ring[ks % 3] + 4 * i, IT + 8 * ks + 4 * (i >> 1), '0' if ks == 0 else None) for i in range(4)]
        weave(a, mains, i1r(ks + 2) if ks < 5 else [])
    st()
    for r in range(16):
        x0, x1 = (t1, t2) if r & 1 else (t3, t4)
        a(f"""v_sub_f32 {v(x0)}, {v(AC+r)}, {v(AC+32+r)}
              v_sub_f32 {v(x1)}, {v(AC+16+r)}, {v(AC+48+r)}
              v_add_f32 {v(AC+r)}, {v(AC+r)}, {v(AC+32+r)}
              v_add_f32 {v(AC+16+r)}, {v(AC+16+r)}, {v(AC+48+r)}
              v_cvt_pk_bf16_f32 {v(AC+32+r)}, {v(x0)}, {v(x1)}
              v_cvt_pk_bf16_f32 {v(AC+48+r)}, {v(AC+r)}, {v(AC+16+r)}
              s_add_u32 s49, s53, {(8*(r>>2)+(r&3))*65536}
              buffer_store_dword {v(AC+32+r)}, {v(vo)}, s[16:19], s49 offen sc1
              buffer_store_dword {v(AC+48+r)}, {v(vo)}, s[16:19], s49 offen offset:512 sc1""")
    st()
    a(f"v_lshlrev_b32 {v(t1)}, 10, v1")
    a.wait(vm=0)
    a("s_barrier")
    wave0(a, ["s_mov_b64 exec, 0xff", f"buffer_store_dword {v(t0)}, {v(t1)}, s[16:19], s37 offen offset:900 sc1", "s_mov_b64 exec, -1"])
    st.dump(t1)
    return R.maxv

def kern(a):
    st = Stamp(a)
    a("s_cmp_ge_u32 s2, 0x100")
    a("s_cbranch_scc1 KEND")
    st()
    a("""s_load_dwordx2 s[4:5], s[0:1], 0
         s_load_dwordx2 s[16:17], s[0:1], 72
         s_load_dwordx2 s[28:29], s[0:1], 64""")
    a("""v_lshrrev_b32 v2, 6, v0
         v_and_b32 v1, 63, v0
         v_readfirstlane_b32 s3, v2
         v_lshlrev_b32 v2, 4, v1
         s_mov_b32 s6, 1835008
         s_mov_b32 s7, 0x00020000
         s_mov_b32 s11, 0x00020000
         s_mov_b32 s15, 0x00020000
         s_mov_b32 s18, 0x10000000
         s_mov_b32 s19, 0x00020000
         s_mov_b32 s30, 256
         s_mov_b32 s31, 0x00020000""")
    a("s_getpc_b64 s[100:101]")
    a.raw("PCREF:")
    a("s_cmp_lt_u32 s2, 32")
    a("s_cbranch_scc1 SPEC")
    n0 = st.n
    m1 = ffn(a, st)
    a.raw(".p2align 6")
    a.label("SPEC")
    a.reset_state()
    st.n = n0
    m2 = spec(a, st)
    a.label("KEND")
    a("s_endpgm")
    return max(m1, m2)

def build():
    label = NAME + "_kernel"
    a = Asm()
    a.raw(f"; @launch grid=(256,1,1) block=(512,1,1) lds=163840")
    a.raw('.amdgcn_target "amdgcn-amd-amdhsa--gfx950"\n.text')
    a.raw(f".globl {label}\n.p2align 8\n.type {label},@function\n{label}:")
    nv = kern(a)
    print("vgprs", nv, "instrs", a.nins, file=sys.stderr)
    nv = (nv + 7) // 8 * 8
    a.raw(f""".section .rodata,"a"
.p2align 6
.amdhsa_kernel {label}
  .amdhsa_next_free_vgpr {nv}
  .amdhsa_next_free_sgpr 102
  .amdhsa_accum_offset {nv}
  .amdhsa_group_segment_fixed_size 0
  .amdhsa_kernarg_size 80
  .amdhsa_user_sgpr_count 2
  .amdhsa_user_sgpr_kernarg_segment_ptr 1
  .amdhsa_system_sgpr_workgroup_id_x 1
.end_amdhsa_kernel""")
    return a.text()

if __name__ == "__main__":
    open(sys.argv[1], "w").write(build())
```

```python
import sys, struct, math
sys.path.insert(0, 'work')
from asmlib import *

NAME = "recurrent_scan__spectral_gfnet__swiglu_ffn__prompt"
OFF_H = 0
OFF_V1 = 0x800000
OFF_V2 = 0xA00000
OFF_ST = 0xC00000
OFF_FL = 0xC10000
OFF_F2 = 0xC60000
OFF_DIAG = 0x2000000
NFAST = 24
OPT = sys.argv[2:]
DIAG = 'diag' in OPT
STAMP_OP = 's_memtime' if 'cyc' in OPT else 's_memrealtime'
LIMIT = 0x20000
PRIO = 'noprio' not in OPT

def lit(x):
    return "0x%08x" % struct.unpack('<I', struct.pack('<f', x))[0]
def m32(d, a, b, c=None):
    return f"v_mfma_f32_32x32x16_bf16 {v(d,16)}, {v(a,4)}, {v(b,4)}, {v(d,16) if c is None else c}"
def m16(d, a, b, c=None):
    return f"v_mfma_f32_16x16x32_bf16 {v(d,4)}, {v(a,4)}, {v(b,4)}, {v(d,4) if c is None else c}"

def bc(r):
    return v(r & ~1, 2), r & 1
def pk(op, d, *srcs, neg=None):
    ops = []; lo = []; hi = []
    for x in srcs:
        if isinstance(x, tuple):
            p, b = bc(x[1]); ops.append(p); lo.append(b); hi.append(b)
        else:
            assert x % 2 == 0
            ops.append(v(x, 2)); lo.append(0); hi.append(1)
    assert d % 2 == 0
    t = f"v_pk_{op}_f32 {v(d,2)}, " + ", ".join(ops)
    if any(lo): t += f" op_sel:[{','.join(map(str, lo))}]"
    if not all(hi): t += f" op_sel_hi:[{','.join(map(str, hi))}]"
    if neg:
        m = ','.join('1' if i in neg else '0' for i in range(len(srcs)))
        t += f" neg_lo:[{m}] neg_hi:[{m}]"
    return t

def em(a, x):
    if callable(x): x()
    elif isinstance(x, tuple): a(x[0], tag=x[1])
    else: a(x)
def weave(a, mains, fills, span=None):
    n = len(mains) if span is None else min(span, len(mains)); k = len(fills); done = 0
    for i, m in enumerate(mains):
        em(a, m)
        upto = min(k, (k * (i + 1) + n - 1) // n)
        while done < upto:
            em(a, fills[done]); done += 1
def merge(*lists):
    items = []
    for li, l in enumerate(lists):
        for i, x in enumerate(l):
            items.append(((i + 0.5) / len(l), li, i, x))
    items.sort(key=lambda t: (t[0], t[1], t[2]))
    return [t[3] for t in items]

NLAB = [0]
class Stamp:
    def __init__(self, a):
        self.a = a; self.n = 0
    def __call__(self, last=False):
        if not DIAG: return
        if self.n >= 22 and not last: return
        self.a.raw(f"    {STAMP_OP} s[96:97]")
        self.a.raw("    s_waitcnt lgkmcnt(0)")
        self.a.raw(f"    s_mov_b32 s{66+self.n}, s96")
        self.a.lgq = []
        self.n += 1
        assert self.n <= 23
    def dump(self, vt):
        if not DIAG: return
        a = self.a
        self(True)
        if 'probe' in OPT:
            NLAB[0] += 1; L = f"PR{NLAB[0]}"
            wgp = int(OPT[OPT.index('probe')+1]); ip = int(OPT[OPT.index('probe')+2])
            if ip < 0: ip += self.n
            a(f"s_lshl_b32 s98, s2, 3\ns_add_u32 s98, s98, s3")
            a(f"s_cmp_lg_u32 s98, {8*wgp+7}")
            a(f"s_cbranch_scc1 {L}")
            a(f"s_sub_u32 s98, s{66+min(ip, self.n-1)}, s66")
            a(f"s_add_u32 s98, s98, {int(OPT[OPT.index('probe')+3])}")
            a(f"s_mov_b32 s99, 0")
            a.raw(f"{L}_L:")
            a.raw(f"    s_memrealtime s[96:97]\n    s_add_u32 s99, s99, 1\n    s_waitcnt lgkmcnt(0)\n    s_sub_u32 s96, s96, s66\n    s_cmp_ge_u32 s96, s98\n    s_cbranch_scc1 {L}\n    s_cmp_lt_u32 s99, 100000\n    s_cbranch_scc1 {L}_L")
            a.raw(f"{L}:")
            return
        if 'dbgdiag' in OPT:
            NLAB[0] += 1; L = f"DD{NLAB[0]}"
            a(f"s_lshl_b32 s98, s2, 3\ns_add_u32 s98, s98, s3")
            a(f"s_cmp_lg_u32 s98, {8*int(OPT[OPT.index('dbgdiag')+1])+7}")
            a(f"s_cbranch_scc1 {L}")
            for i in range(1, min(17, self.n)):
                a(f"s_sub_u32 s98, s{66+i}, s66")
                a(f"v_mov_b32 {v(vt)}, s98")
                a(f"buffer_store_dword {v(vt)}, off, s[28:31], 0 offset:{4*i-4}")
                a.wait(vm=0)
            a.raw(f"{L}:")
            return
        a(f"s_lshl_b32 s98, s2, 3\ns_add_u32 s98, s98, s3\ns_lshl_b32 s98, s98, 7")
        a(f"s_add_u32 s98, s98, {OFF_DIAG}")
        for i in range(self.n):
            a(f"v_mov_b32 {v(vt)}, s{66+i}")
            a(f"buffer_store_dword {v(vt)}, off, s[16:19], s98 offset:{4*i}")
            a.wait(vm=0)

def spin(a, vdst, vaddr, srd, soff, mask, first=True, val='1'):
    NLAB[0] += 1; L = f"SP{NLAB[0]}"
    a("s_mov_b32 s99, 0")
    if not first:
        a(f"v_cmp_ne_u32 vcc, {val}, {v(vdst)}")
        a(f"s_and_b64 vcc, vcc, {mask}")
        a(f"s_cbranch_scc0 {L}_D")
    a(f"s_mov_b64 exec, {mask}")
    a.raw(f"{L}:")
    a.raw(f"    buffer_load_dword {v(vdst)}, {v(vaddr)}, {srd}, {soff} offen sc1")
    a.raw("    s_add_u32 s99, s99, 1")
    a.raw("    s_waitcnt vmcnt(0)")
    a.raw(f"    v_cmp_ne_u32 vcc, {val}, {v(vdst)}")
    a.raw("    s_nop 1")
    a.raw("    s_cmp_eq_u64 vcc, 0")
    a.raw(f"    s_cbranch_scc1 {L}_E")
    a.raw(f"    s_cmp_lt_u32 s99, {LIMIT}")
    a.raw(f"    s_cbranch_scc1 {L}")
    a.raw(f"{L}_E:")
    a.raw("    s_mov_b64 exec, -1")
    a.raw(f"{L}_D:")
    if first: a.vmq = []

def wave0(a, lines):
    NLAB[0] += 1; L = f"W0_{NLAB[0]}"
    a("s_cmp_lg_u32 s3, 0")
    a(f"s_cbranch_scc1 {L}")
    for l in lines: a.raw("    " + l)
    a.raw(f"{L}:")

def opt(name, dflt):
    return OPT[OPT.index(name) + 1] if name in OPT else dflt
def L(text):
    return [t.strip() for t in text.split('\n') if t.strip()]

def spinh(a, vdst, vaddr, off, mask, slow=None):
    NLAB[0] += 1; Lb = f"SP{NLAB[0]}"
    a(f"v_cmp_eq_u32 vcc, 1, {v(vdst)}")
    a(f"s_andn2_b32 s54, {mask}, vcc_lo")
    a(f"s_cbranch_scc0 {Lb}_D")
    r = lambda t: a.raw("    " + t)
    r("s_mov_b32 s99, 0")
    r("s_mov_b32 exec_hi, 0")
    a.raw(f"{Lb}:")
    r(f"buffer_load_dword {v(vdst)}, {v(vaddr)}, s[16:19], s61 offen offset:{off} sc1")
    r("s_add_u32 s99, s99, 1")
    r("s_waitcnt vmcnt(0)")
    r(f"v_cmp_eq_u32 vcc, 1, {v(vdst)}")
    r("s_nop 1")
    r("s_or_b32 s54, vcc_lo, vcc_hi")
    r(f"s_andn2_b32 s54, {mask}, s54")
    r(f"s_cbranch_scc0 {Lb}_E")
    r(f"s_cmp_lg_u32 s99, {NFAST}")
    r(f"s_cbranch_scc1 {Lb}_C")
    if slow:
        r("s_mov_b32 exec_lo, 1")
        r(slow)
    r("s_mov_b64 exec, -1")
    a.raw(f"{Lb}_C:")
    r(f"s_cmp_lt_u32 s99, {LIMIT}")
    r(f"s_cbranch_scc1 {Lb}")
    a.raw(f"{Lb}_E:")
    r("s_mov_b64 exec, -1")
    a.raw(f"{Lb}_D:")

def ffn(a, st):
    XB = 16384; WB = 114688
    X = lambda s: XB + 32768 * s
    W = lambda s: WB + 16384 * s
    USLOT = [1024 * k for k in (0, 0, 48, 64, 128, 144, 96, 80, 112, 128, 16, 32, 48, 64)]
    UBASE = [1024 * k for k in (0, 0, 0, 64, 96, 96, 96, 80, 80, 80, 16, 16, 16, 16)]
    RB = 81920
    a("""s_load_dwordx2 s[20:21], s[0:1], 48
         s_load_dwordx2 s[24:25], s[0:1], 56""")
    R = RegAlloc(start=3, limit=256)
    t0 = R.get(); t1 = R.get(); t2 = R.get()
    vx = [R.get(), R.get()]; vw = R.get(); vd = R.get()
    xa = [[R.get(), R.get()] for _ in range(2)]
    wa = [[R.get(), R.get()] for _ in range(2)]
    da = [R.get() for _ in range(4)]
    big = R.get(144, 2)
    acc = [[[big + 32 * mat + 16 * F + 4 * nt for nt in range(4)] for F in range(2)] for mat in range(2)]
    wf = [[big + 64 + 16 * b + 4 * i for i in range(4)] for b in range(2)]
    xf = [[big + 96 + 16 * b + 4 * i for i in range(4)] for b in range(2)]
    cs = [big + 128, big + 132]; ones = big + 136; stv = big + 140
    wd = [R.get(16, 2) for _ in range(5)]
    sp = R.get(8, 2)
    a(f"""s_sub_u32 s37, s47, 4
         v_lshrrev_b32 {v(t0)}, 3, v1
         s_mul_i32 s34, s37, 37
         v_and_b32 {v(t1)}, 7, v1
         s_lshr_b32 s34, s34, 8
         v_lshrrev_b32 {v(t2)}, 4, v1
         s_and_b32 s38, s3, 3
         v_and_b32 {v(vw)}, 1, {v(t2)}
         s_lshr_b32 s39, s3, 2
         s_lshl_b32 s89, s34, 1
         s_add_u32 s89, s89, s37
         s_add_u32 s89, s89, s33
         s_and_b32 s49, s3, 1
         s_lshl_b32 s49, s49, 1
         v_or_b32 {v(vw)}, s49, {v(vw)}
         s_mul_i32 s90, s89, 37
         v_lshlrev_b32 {v(vw)}, 1, {v(vw)}
         s_lshr_b32 s90, s90, 8
         v_xor_b32 {v(vw)}, {v(vw)}, {v(t1)}
         s_mul_i32 s90, s90, 7
         v_lshlrev_b32 {v(vw)}, 4, {v(vw)}
         s_sub_u32 s89, s89, s90
         v_mul_u32_u24 {v(vd)}, 3584, {v(t0)}
         s_lshl_b32 s89, s89, 7
         v_add_u32 {v(vw)}, {v(vw)}, {v(vd)}
         s_mul_i32 s45, s3, {8*3584}
         v_xor_b32 {v(vx[1])}, {v(t1)}, {v(t2)}
         s_lshl_b32 s49, s37, 7
         v_lshlrev_b32 {v(vx[1])}, 4, {v(vx[1])}
         s_add_u32 s45, s45, s49
         v_mul_u32_u24 {v(vx[0])}, 28672, {v(t0)}
         s_lshl_b32 s46, s3, 11
         v_add_u32 {v(vx[0])}, {v(vx[0])}, {v(vx[1])}
         s_mov_b32 s10, 1605632
         v_xor_b32 {v(vx[1])}, 64, {v(vx[0])}
         s_mov_b32 s14, 1605632
         s_lshl_b32 s48, s33, 2
         s_add_u32 s48, s48, s38
         s_mul_i32 s40, s48, 896
         s_mul_i32 s49, s39, {32*28672}
         s_add_u32 s40, s40, s49
         s_lshl_b32 s44, s38, 13
         s_lshl_b32 s49, s39, 12
         s_add_u32 s44, s44, s49
         s_and_b32 s54, s34, 1
         s_lshl_b32 s64, s54, 11
         s_add_u32 s64, s64, s44
         s_mul_i32 s65, s54, {16*28672}
         s_add_u32 s65, s65, s89
         s_add_u32 s65, s65, s40""")
    def xdma(c):
        out = []
        for i in range(4):
            def f(i=i):
                a(f"s_add_u32 m0, s44, {X(c%3)}")
                a(f"s_add_u32 s49, s{40+i}, s{89+c}")
                a(f"buffer_load_dwordx4 {v(vx[i&1])}, s[4:7], s49 offen offset:{i*1024} lds", tag=('x', c))
            out.append(f)
        return out
    def wdma(c):
        out = []
        for mat in range(2):
            def f(mat=mat):
                a(f"s_mul_i32 s49, s{89+c}, 1792")
                a(f"s_add_u32 m0, s46, {W(c%3) + mat*1024}")
                a(f"s_add_u32 s49, s49, s45")
                a(f"buffer_load_dwordx4 {v(vw)}, s[{8+4*mat}:{11+4*mat}], s49 offen lds", tag=('x', c))
            out.append(f)
        return out
    a(f"""s_mul_i32 s49, s89, 1792
          s_add_u32 m0, s46, {W(0)}
          s_add_u32 s49, s49, s45""")
    a.wait_smem()
    st()
    def x0pair():
        a(f"s_add_u32 m0, s64, {X(0)}")
        a(f"s_add_u32 s49, s65, {8*28672-1024}")
        a(f"buffer_load_dwordx4 {v(vx[0])}, s[4:7], s65 offen lds", tag=('x', 0))
        a(f"buffer_load_dwordx4 {v(vx[1])}, s[4:7], s49 offen offset:1024 lds", tag=('x', 0))
    a(f"buffer_load_dwordx4 {v(vw)}, s[8:11], s49 offen lds", tag=('x', 0))
    a(f"s_add_u32 m0, s46, {W(0) + 1024}")
    a(f"s_xor_b32 s54, s54, 1")
    a(f"buffer_load_dwordx4 {v(vw)}, s[12:15], s49 offen lds", tag=('x', 0))
    x0pair()
    a(f"""s_xor_b32 s64, s64, 2048
          s_mul_i32 s65, s54, {16*28672}
          s_add_u32 s65, s65, s89
          s_add_u32 s65, s65, s40""")
    if 'nob0' not in OPT: a("s_barrier")
    x0pair()
    if 'fs' in OPT: st()
    for i in range(1, 4): a(f"s_add_u32 s{40+i}, s40, {i*(8*28672-1024)}")
    rot = lambda i: L(f"s_add_u32 s{89+i}, s{88+i}, 128\ns_cmp_eq_u32 s{89+i}, 896\ns_cselect_b32 s{89+i}, 0, s{89+i}")
    for i in range(1, 3):
        for x in rot(i): a(x)
    a(f"""v_lshlrev_b32 {v(vd)}, 1, {v(t2)}
          v_xor_b32 {v(vd)}, {v(vd)}, {v(t1)}
          v_lshlrev_b32 {v(vd)}, 4, {v(vd)}
          v_mul_u32_u24 {v(t0)}, 896, {v(t0)}
          v_add_u32 {v(vd)}, {v(vd)}, {v(t0)}""")
    a(f"""v_and_b32 {v(t0)}, 15, v1
          v_bfe_u32 {v(t1)}, v1, 1, 3
          v_xor_b32 {v(t1)}, {v(t1)}, {v(t2)}
          s_and_b32 s49, s38, 2
          s_lshl_b32 s49, s49, 1
          v_xor_b32 {v(t1)}, s49, {v(t1)}
          v_lshlrev_b32 {v(t1)}, 4, {v(t1)}
          v_lshl_add_u32 {v(t1)}, {v(t0)}, 7, {v(t1)}
          s_lshl_b32 s49, s38, 13
          s_add_u32 s49, s49, {XB}
          v_add_u32 {v(xa[0][0])}, s49, {v(t1)}
          v_xor_b32 {v(xa[1][0])}, 64, {v(xa[0][0])}""")
    a(f"""v_bfe_u32 {v(t0)}, v1, 3, 2
          s_lshl_b32 s49, s39, 1
          s_and_b32 s54, s38, 1
          s_or_b32 s58, s49, s54
          v_xor_b32 {v(t0)}, s58, {v(t0)}
          v_lshlrev_b32 {v(t0)}, 5, {v(t0)}
          v_bfe_u32 {v(t1)}, v1, 2, 2
          v_lshl_add_u32 {v(t0)}, {v(t1)}, 7, {v(t0)}
          v_and_b32 {v(t1)}, 3, v1
          v_lshl_add_u32 {v(t0)}, {v(t1)}, 3, {v(t0)}
          v_lshl_add_u32 {v(t0)}, {v(t2)}, 11, {v(t0)}
          s_and_b32 s49, s38, 2
          s_lshl_b32 s49, s49, 12
          s_add_u32 s49, s49, {WB}
          v_add_u32 {v(wa[0][0])}, s49, {v(t0)}
          v_xor_b32 {v(wa[0][1])}, 32, {v(wa[0][0])}
          v_xor_b32 {v(wa[1][0])}, 0x2000, {v(wa[0][0])}
          v_xor_b32 {v(wa[1][1])}, 0x2000, {v(wa[0][1])}""")
    for i in range(4): a(f"v_mov_b32 {v(ones+i)}, 0x3f803f80")
    a(f"""v_min_u32 {v(sp+5)}, 6, v1
          v_lshlrev_b32 {v(sp+5)}, 7, {v(sp+5)}
          s_lshl_b32 s49, s2, 3
          s_add_u32 s49, s49, s3
          s_sub_u32 s49, s49, 256
          s_mul_i32 s55, s49, 896
          s_mov_b32 s22, 1605632
          s_mov_b32 s23, 0x00020000""")
    if 'fs' in OPT: st()
    for f in wdma(1) + xdma(1): f()
    if 'fs' in OPT: st()
    FIL = {}
    FIL[0] = rot(3) + rot(4) + L(f"""v_add_u32 {v(xa[0][1])}, 0x10000, {v(xa[0][0])}
          v_add_u32 {v(xa[1][1])}, 0x10000, {v(xa[1][0])}""")
    FIL[1] = L(f"""s_mul_i32 s35, s34, 7
          s_sub_u32 s35, s37, s35
          s_lshl_b32 s50, s33, 2
          s_add_u32 s50, s50, s34
          s_mul_i32 s51, s38, {448*896}
          s_mul_i32 s54, s39, {16*896}
          s_add_u32 s51, s51, s54
          s_lshl_b32 s54, s35, 7
          s_add_u32 s51, s51, s54
          s_add_u32 s52, s51, {8*896-1024}
          s_xor_b32 s54, s39, s50
          s_and_b32 s54, s54, 1
          s_lshl_b32 s54, s54, 11
          s_lshl_b32 s53, s38, 12
          s_add_u32 s53, s53, s54""")
    def ddma(u):
        out = []
        for i in range(2):
            def f(i=i):
                a(f"s_mul_i32 s49, s{89+u%7}, 448")
                if u == 7: a(f"s_add_u32 s{51+i}, s{51+i}, 28672")
                a(f"s_add_u32 m0, s53, {USLOT[u]}")
                a(f"s_add_u32 s49, s49, s{51+i}")
                a(f"buffer_load_dwordx4 {v(vd)}, s[20:23], s49 offen offset:{i*1024} lds", tag=('d', u))
            out.append(f)
        return out
    FIL[2] = ["\n".join(rot(5)), "\n".join(rot(6))] + L(f"""v_bfe_u32 {v(t0)}, v1, 3, 2
          s_and_b32 s54, s38, 2
          v_xor_b32 {v(t0)}, s54, {v(t0)}
          v_lshlrev_b32 {v(t0)}, 5, {v(t0)}
          v_lshl_add_u32 {v(t0)}, {v(t1)}, 3, {v(t0)}
          v_lshrrev_b32 {v(t1)}, 2, v1
          v_lshl_add_u32 {v(t0)}, {v(t1)}, 7, {v(t0)}
          s_lshl_b32 s54, s38, 12
          v_add_u32 {v(da[0])}, s54, {v(t0)}""") + [f"v_xor_b32 {v(da[i])}, {32*i}, {v(da[0])}" for i in range(1, 4)]
    FIL[0] = ["\n".join(FIL[0][0:3]), "\n".join(FIL[0][3:6])] + FIL[0][6:]
    dbase = [USLOT[0]]
    def dreads(u):
        out = []
        if UBASE[u] != dbase[0]:
            off = UBASE[u] - dbase[0]
            for i in range(4): out.append(f"v_add_u32 {v(da[i])}, {off & 0xffffffff:#x}, {v(da[i])}")
            dbase[0] = UBASE[u]
        off = USLOT[u] - dbase[0]
        for i in range(4):
            for h in range(2):
                out.append(f"ds_read_b64_tr_b16 {v(wd[u%5]+4*i+2*h,2)}, {v(da[i])} offset:{off + h*2048}")
        return out
    dbg = sp + 1; pv = sp + 2; sta = sp + 3
    FIL[3] = L(f"""v_and_b32 {v(dbg)}, 31, v1
          v_lshlrev_b32 {v(dbg)}, 3, {v(dbg)}
          v_and_b32 {v(sta)}, 15, v1
          v_lshlrev_b32 {v(sta)}, 4, {v(sta)}
          s_lshl_b32 s56, s48, 8
          s_add_u32 s56, s56, {OFF_ST}
          s_mul_i32 s57, s48, 56
          s_lshl_b32 s54, s37, 1
          s_add_u32 s57, s57, s54
          s_add_u32 s57, s57, s39
          s_lshl_b32 s57, s57, 12
          s_mov_b32 s26, 1835008
          s_mov_b32 s27, 0x00020000""")
    FIL[4] = L(f"""s_mul_i32 s59, s50, 56
          s_mul_i32 s54, s38, 14
          s_add_u32 s59, s59, s54
          s_lshl_b32 s59, s59, 12
          s_lshl_b32 s54, s39, 11
          s_add_u32 s59, s59, s54
          s_lshl_b32 s60, s48, 7
          s_add_u32 s60, s60, s37
          s_lshl_b32 s60, s60, 2
          s_add_u32 s60, s60, {OFF_F2}
          s_lshl_b32 s61, s50, 9
          s_add_u32 s61, s61, {OFF_F2}""")
    FIL[5] = L(f"""s_mul_i32 s36, s38, 7
          s_lshl_b32 s36, 0x7f, s36
          s_lshl_b32 s62, s3, 15
          s_lshl_b32 s54, s33, 10
          s_add_u32 s62, s62, s54
          s_add_u32 s62, s62, {OFF_FL + 900}
          s_lshl_b32 s63, s58, 9
          s_add_u32 s63, s63, s50
          s_mul_i32 s63, s63, 896
          s_lshl_b32 s54, s35, 7
          s_add_u32 s63, s63, s54
          s_and_b32 s54, s38, 2
          s_lshl_b32 s54, s54, 5
          s_add_u32 s63, s63, s54""")
    FIL[7] = L(f"""s_lshl_b32 s32, s50, 16
          s_lshl_b32 s54, s3, 13
          s_add_u32 s32, s32, s54
          s_add_u32 s32, s32, {OFF_V2}
          s_add_u32 s47, s32, 3072
          v_lshlrev_b32 {v(sp)}, 4, {v(sta)}
          v_and_b32 {v(sp)}, 256, {v(sp)}""")
    def wreads(S):
        c, e = divmod(S, 2)
        return [f"ds_read_b64_tr_b16 {v(wf[S&1][2*mat+F]+2*u,2)}, {v(wa[e][F])} offset:{(c%3)*16384 + mat*1024 + u*512}"
                for F in range(2) for mat in range(2) for u in range(2)]
    def xreads(S):
        c, e = divmod(S, 2); s = c % 3
        return [f"ds_read_b128 {v(xf[S&1][nt],4)}, {v(xa[e][s>>1])} offset:{(s&1)*32768 + nt*2048}" for nt in range(4)]
    def reads(S):
        w = wreads(S); x = xreads(S)
        return [x[0]] + w[0:4] + [x[1]] + w[4:8] + [x[2], x[3]]
    a.wait_tag(('x', 0))
    if 'fs' in OPT: st()
    a("s_barrier")
    st()
    for x in reads(0): a(x)
    ch = lambda c: wdma(c) + xdma(c)
    tou = [] if 'nomall' in OPT else [f"buffer_load_dword {v(sp+4)}, {v(sp+5)}, s[20:23], s55 offen"]
    CH = {c: ch(c) for c in range(2, 7)}
    SCH = opt('sch', 'T24,2232,34,U,44,53,53,V,64').split(',')
    def sched(S):
        out = []; t = SCH[S]; i = 0
        while i < len(t):
            if t[i] == 'T': out += tou; i += 1
            elif t[i] == 'U': out += ddma(0) + [CH[4].pop(0), CH[4].pop(0)]; i += 1
            elif t[i] == 'V': out += ddma(1) + [CH[6].pop(0), CH[6].pop(0)]; i += 1
            else:
                c = int(t[i]); assert S >= 2 * (c - 3) + 1 and S < 2 * c - 1
                for _ in range(int(t[i + 1])): out.append(CH[c].pop(0))
                i += 2
        return out
    for S in range(14):
        c, e = divmod(S, 2)
        mains = []
        for nt in range(4):
            for F in range(2):
                for mat in range(2):
                    mains.append(m16(acc[mat][F][nt], wf[S & 1][2 * mat + F], xf[S & 1][nt], '0' if S == 0 else None))
        if e == 0:
            for mat in range(2):
                mains.insert(2 + mat, m16(cs[mat], wf[S & 1][2 * mat], ones, '0' if S == 0 else None))
        pre = []; rd = []; dm = []; ex = []
        if e == 1:
            def sync(c=c):
                if 'fine' in OPT: st()
                if c < 6: a.wait_tag(('x', c + 1))
                if c == 2: a.wait_tag(('d', 0))
                if c == 4: a.wait_tag(('d', 1))
                if c == 5: a.wait_tag(('d', 4))
                a.wait(lg=0)
                a("s_barrier")
                if 'fine' in OPT: st()
                if c == 6 and PRIO:
                    a("s_cmp_lg_u32 s39, 0\ns_cbranch_scc1 NOPR\ns_setprio 2")
                    a.raw("NOPR:")
            pre = [sync]
        if S < 9: dm = sched(S)
        else: dm = {9: lambda: ddma(2) + ddma(3), 10: lambda: ddma(4), 11: lambda: ddma(5) + ddma(6), 12: lambda: ddma(7),
                    13: lambda: ddma(8) + ddma(9) + ddma(10)}[S]()
        if S < 13: rd = reads(S + 1)
        if S == 8: dm = dm + [f"buffer_load_dword {v(pv)}, {v(dbg)}, s[28:31], 0 offen sc1"]
        if S == 10:
            def chk():
                spin(a, pv, dbg, 's[28:31]', '0', '-1', first=False)
                a(f"buffer_load_dwordx4 {v(stv,4)}, {v(sta)}, s[16:19], s56 offen sc1")
                a(f"buffer_load_dword {v(sp+4)}, {v(sp)}, s[16:19], s61 offen sc1")
            dm = dm + [chk]
        if S == 6: ex = dreads(0)
        if S == 10: ex = dreads(1)
        if S == 11:
            ex = dreads(2); d3 = dreads(3); ex += d3[:8]
        if S == 12:
            ex = d3[8:] + dreads(4)
            ex += [f"s_lshl_b32 s54, s3, 11", f"v_add_u32 {v(t0)}, s54, v2",
                   f"ds_write_b128 {v(t0)}, {v(cs[0],4)}", f"ds_write_b128 {v(t0)}, {v(cs[1],4)} offset:1024"]
        if S == 13:
            ex = [f"s_and_b32 s54, s3, 5", f"s_lshl_b32 s54, s54, 11", f"v_add_u32 {v(t0)}, s54, v2", f"v_xor_b32 {v(t1)}, 0x800, {v(t0)}"]
            for F in range(2):
                for mat in range(2):
                    for hp in range(2):
                        dst = (wf[0][0] if hp == 0 else xf[0][0]) + 8 * mat + 4 * F
                        ex.append(f"ds_read_b128 {v(dst,4)}, {v(t1 if F else t0)} offset:{hp*4096 + mat*1024}")
        ex = ex + FIL.get(S, [])
        fills = pre + merge(*[l for l in (rd, dm) if l]) + ex
        weave(a, mains, fills)
    assert all(not l for l in CH.values())
    st()
    cv = wf[0][0]
    nm = wf[1][0]; c1 = nm + 4; d2 = nm + 8
    for i in range(4):
        a(f"v_lshlrev_b32 {v(d2+i)}, 16, {v(stv+i)}")
        a(f"v_and_b32 {v(nm+i)}, 0xffff0000, {v(stv+i)}")
        a(f"v_rcp_f32 {v(c1+i)}, {v(d2+i)}")
    for i in range(0, 16, 2): a(pk('add', cv + i, cv + i, xf[0][0] + i))
    for i in range(4):
        a(f"v_mul_f32 {v(d2+i)}, {v(d2+i)}, {v(d2+i)}")
        a(f"v_mul_f32 {v(c1+i)}, {lit(-math.log2(math.e))}, {v(c1+i)}")
    late = ddma(11) + ddma(12) + ddma(13)
    for nt in range(4):
        e = xf[0][0] + 8 * (nt & 1); hp = xf[1][nt]
        idx = [(F, r) for F in range(2) for r in range(4)]
        G = lambda F, r: acc[0][F][nt] + r
        U = lambda F, r: acc[1][F][nt] + r
        pi = [(F, r) for F in range(2) for r in (0, 2)]
        for F, r in pi: a(pk('fma', G(F,r), cv+4*F+r, ('b', nm+nt), G(F,r)))
        for F, r in pi: a(pk('mul', e+4*F+r, G(F,r), ('b', c1+nt)))
        if nt < 3: late[2 * nt]()
        for F, r in pi: a(pk('fma', U(F,r), cv+8+4*F+r, ('b', nm+nt), U(F,r)))
        for F, r in idx: a(f"v_exp_f32 {v(e+4*F+r)}, {v(e+4*F+r)}")
        for F, r in pi: a(pk('mul', U(F,r), U(F,r), G(F,r)))
        for F, r in pi: a(pk('fma', e+4*F+r, e+4*F+r, ('b', d2+nt), ('b', d2+nt)))
        if nt < 3: late[2 * nt + 1]()
        for F, r in idx: a(f"v_rcp_f32 {v(e+4*F+r)}, {v(e+4*F+r)}")
        for F, r in pi: a(pk('mul', U(F,r), U(F,r), e+4*F+r))
        for i in range(4): a(f"v_cvt_pk_bf16_f32 {v(hp+i)}, {v(U(i>>1,2*(i&1)))}, {v(U(i>>1,2*(i&1)+1))}")
        a(f"buffer_store_dwordx4 {v(hp,4)}, v2, s[16:19], s57 offen offset:{nt*1024} sc1", tag='hs')
    st()
    T2 = sp
    vh = vx; pa = vw; pv = xa[0][0]; vo = xa[0][1]; v2a = xa[1][0]; one = xa[1][1]
    xv = wa[0][0]
    assert xv % 2 == 0 and wa[1][1] == xv + 3
    hf = [[big + 8 * s + 4 * N for N in range(2)] for s in range(14)]
    ab = [[big + 112 + 16 * N + 4 * i for i in range(4)] for N in range(2)]
    T2o = big + 40
    va = [da[0], da[1]]
    a(f"""s_and_b32 s49, s38, 1
          s_lshl_b32 s49, s49, 10
          v_add_u32 {v(vh[0])}, s49, v2
          v_xor_b32 {v(vh[1])}, 0x400, {v(vh[0])}
          v_mov_b32 {v(one)}, 1""")
    def hloads(u0, u1):
        for u in range(u0, u1):
            a(f"s_lshl_b32 s49, s{89+u%7}, 6")
            if u == 7: a(f"s_add_u32 s59, s59, 4096")
            a(f"s_add_u32 s49, s49, s59")
            for N in range(2):
                a(f"buffer_load_dwordx4 {v(hf[u][N],4)}, {v(vh[N])}, s[16:19], s49 offen sc1")
    tmp = hf[7][0]
    F1 = L(f"""v_and_b32 {v(t0)}, 15, v1
          v_mul_u32_u24 {v(vo)}, 28672, {v(t0)}
          v_lshl_add_u32 {v(vo)}, {v(t2)}, 3, {v(vo)}
          s_lshl_b32 s54, s58, 4
          v_add_u32 {v(t0)}, s54, {v(t0)}
          v_cvt_f32_u32 {v(t0)}, {v(t0)}
          v_mul_f32 {v(t0)}, {lit(1/64)}, {v(t0)}
          v_cvt_f32_u32 {v(t1)}, {v(t2)}
          v_mul_f32 {v(t1)}, 4.0, {v(t1)}
          v_mul_f32 {v(tmp)}, {v(t1)}, {v(t0)}""")
    F1 += [f"v_fmamk_f32 {v(tmp+k)}, {v(t0)}, {lit(float(16*(k>>2)+(k&3)))}, {v(tmp)}" for k in range(1, 8)]
    F1 += [f"v_cos_f32 {v(tmp+8+k)}, {v(tmp+k)}" for k in range(8)]
    F1 += [f"v_sin_f32 {v(tmp+k)}, {v(tmp+k)}" for k in range(8)]
    F1 += L(f"""v_lshlrev_b32 {v(t1)}, 31, v1
          v_or_b32 {v(t1)}, 1.0, {v(t1)}
          v_cmp_gt_u32 vcc, 16, v1
          v_cndmask_b32 {v(tmp)}, {v(tmp)}, {v(t1)}, vcc""")
    F1 += [f"v_cvt_pk_bf16_f32 {v(T2+k)}, {v(tmp+8+k)}, {v(tmp+k)}" for k in range(8)]
    F1 += L(f"""v_bfe_u32 {v(t0)}, v1, 2, 2
          s_and_b32 s54, s3, 1
          v_xor_b32 {v(t0)}, s54, {v(t0)}
          s_lshl_b32 s54, s35, 2
          v_add_u32 {v(t0)}, s54, {v(t0)}
          v_subrev_u32 {v(t1)}, 14, {v(t0)}
          v_min_u32 {v(t0)}, {v(t0)}, {v(t1)}
          v_lshlrev_b32 {v(t0)}, 6, {v(t0)}
          v_sub_u32 {v(t1)}, 1344, {v(t0)}
          v_cmp_gt_u32 vcc, 448, {v(t0)}
          v_cndmask_b32 {v(t0)}, {v(t1)}, {v(t0)}, vcc
          v_lshl_add_u32 {v(t0)}, {v(t2)}, 10, {v(t0)}
          v_and_b32 {v(t1)}, 3, v1
          v_lshl_add_u32 {v(v2a)}, {v(t1)}, 4, {v(t0)}""")
    xld = [f"buffer_load_dwordx2 {v(xv+2*cl,2)}, {v(vo)}, s[4:7], s63 offen offset:{cl*32}" for cl in range(2)]
    F2 = []
    for cl in range(2):
        F2 += [f"""s_and_b32 s0, s38, 2
              s_add_u32 s0, s0, {cl}
              s_lshl_b32 s54, s35, 2
              s_add_u32 s54, s54, s0""", f"""s_cmp_ge_u32 s54, 14
              s_cselect_b32 s64, 14, 0
              s_cselect_b32 s65, 0x80008000, 0
              s_sub_u32 s54, s54, s64""", f"""s_cmp_ge_u32 s54, 7
              s_cselect_b32 s64, 15, 0
              s_cselect_b32 s54, 0x80008000, 0
              s_xor_b32 s65, s65, s54"""] + L(f"""v_and_b32 {v(t1)}, 1, {v(t2)}
              v_xor_b32 {v(t1)}, s0, {v(t1)}
              v_lshlrev_b32 {v(t1)}, 6, {v(t1)}
              v_lshl_add_u32 {v(t1)}, {v(t2)}, 11, {v(t1)}
              v_and_b32 {v(va[cl])}, 15, v1
              v_xor_b32 {v(va[cl])}, s64, {v(va[cl])}
              v_lshl_add_u32 {v(va[cl])}, {v(va[cl])}, 2, {v(t1)}""")
        F2 += [f"v_xor_b32 {v(T2o+8*cl+k)}, s65, {v(T2+k)}" for k in range(8)]
    ra = [da[2], da[3], vd, t0]
    for k in range(1, 5):
        F2 += [f"s_xor_b32 s54, s3, {k&3}\ns_mul_i32 s54, s54, 6144\ns_add_u32 s54, s54, {RB}", f"v_add_u32 {v(ra[k-1])}, s54, v2"]
    step = lambda s: [m16(ab[N][i], wd[s % 5] + 4 * i, hf[s][N], '0' if s == 0 else None) for N in range(2) for i in range(4)]
    flag = lambda off, sc: f"buffer_store_dword {v(one)}, off, s[16:19], s60 offset:{off}{sc}"
    def steps(s0, s1, fl):
        n = s1 - s0
        for s in range(s0, s1):
            k = s - s0
            weave(a, step(s), fl[len(fl) * k // n: len(fl) * (k + 1) // n])
            if s == 0: st()
            if s + 5 < 14 and s != 6:
                for x in dreads(s + 5): a(x)
            yield s
    def half2():
        a(f"v_and_b32 {v(pa)}, 3, v1")
        a(f"v_lshlrev_b32 {v(pa)}, 13, {v(pa)}")
        a(f"buffer_load_dword {v(pv)}, {v(pa)}, s[16:19], s62 offen sc1")
        for s in steps(7, 9, []): pass
        for s in steps(9, 14, F2): pass
    a("s_cmp_lg_u32 s39, 0")
    a("s_cbranch_scc1 BY")
    save = (list(a.vmq), list(a.lgq), list(a.hist), dbase[0], st.n)
    a(f"v_lshlrev_b32 {v(pa)}, 2, v1")
    a(f"s_mov_b32 exec_hi, 0\nbuffer_load_dword {v(pv)}, {v(pa)}, s[16:19], s61 offen sc1\ns_mov_b32 exec_lo, 1")
    a.wait_tag('hs')
    a(flag(0, ''))
    a("s_mov_b64 exec, -1")
    st()
    spinh(a, pv, pa, 0, '0x0fffffff', flag(128, ' sc1'))
    st()
    hloads(0, 7)
    a("s_barrier")
    if PRIO: a("s_setprio 0")
    for x in F1 + xld: a(x)
    PS = int(opt('ps', 4))
    for s in steps(0, 7, []):
        if s == PS: a(f"s_mov_b32 exec_hi, 0\nbuffer_load_dword {v(pv)}, {v(pa)}, s[16:19], s61 offen offset:256 sc1\ns_mov_b32 exec_hi, -1")
    st()
    spinh(a, pv, pa, 256, 's36')
    st()
    hloads(7, 14)
    a.wait(lg=0)
    a("s_barrier")
    for x in dreads(11): a(x)
    half2()
    a.wait(vm=0, lg=0)
    a("s_branch BT")
    a.raw("BY:")
    a.vmq, a.lgq, a.hist, dbase[0], st.n = save
    a.wait_tag(('d', 10))
    a("s_barrier")
    st()
    LAY = int(opt('lay', 7))
    hloads(0, LAY)
    a("s_mov_b64 exec, 1")
    a.wait_tag('hs')
    a(flag(256, ''))
    a("s_mov_b64 exec, -1")
    st()
    hloads(LAY, 7)
    for s in steps(0, 7, F1): pass
    st()
    a(f"v_lshlrev_b32 {v(pa)}, 8, v1")
    a(f"s_mov_b64 exec, 3\nbuffer_store_dword {v(one)}, {v(pa)}, s[16:19], s60 offen offset:128 sc1\ns_mov_b64 exec, -1")
    a.wait(lg=0)
    a("s_barrier")
    st()
    hloads(7, 14)
    for x in xld + dreads(11): a(x)
    half2()
    a.wait(vm=0, lg=0)
    a.raw("BT:")
    def v2dma():
        a("s_lshl_b32 m0, s3, 11")
        a.raw("    s_nop 0")
        a.raw(f"    buffer_load_dwordx4 {v(v2a)}, s[16:19], s32 offen sc1 lds")
        a.raw(f"    buffer_load_dwordx4 {v(v2a)}, s[16:19], s47 offen offset:1024 sc1 lds")
    a(f"v_cmp_ne_u32 vcc, 1, {v(pv)}")
    a(f"s_and_b32 s98, vcc_lo, 15")
    a(f"s_cbranch_scc1 V2LATE")
    v2dma()
    a.raw("V2LATE:")
    st()
    for k in range(1, 4):
        C, N = k >> 1, k & 1
        for cl in range(2):
            a(f"ds_write_b128 {v(ra[k-1])}, {v(ab[N][2*C+cl],4)} offset:{(k-1)*2048 + cl*1024}")
    pr = big; e = big + 24; xs = big + 32
    for i in range(4):
        a(f"v_lshlrev_b32 {v(xs+2*i)}, 16, {v(xv+i)}")
        a(f"v_and_b32 {v(xs+2*i+1)}, 0xffff0000, {v(xv+i)}")
    a(f"v_mov_b32 {v(t1)}, {lit(2048*448/2)}")
    a(f"v_mov_b32 {v(t2)}, {lit(-math.log2(math.e))}")
    a.wait(lg=0)
    a("s_barrier")
    for k in range(3):
        for cl in range(2):
            a(f"ds_read_b128 {v(pr+8*k+4*cl,4)}, {v(t0)} offset:{k*2048 + cl*1024}")
    y = ab[0][0]
    for i in range(0, 8, 2): a(pk('add', y+i, y+i, pr+i))
    for i in range(0, 8, 2): a(pk('add', pr+8+i, pr+8+i, pr+16+i))
    for i in range(0, 8, 2): a(pk('add', y+i, y+i, pr+8+i))
    for i in range(0, 8, 2): a(pk('mul', e+i, y+i, ('b', t2)))
    for i in range(8): a(f"v_exp_f32 {v(e+i)}, {v(e+i)}")
    for i in range(0, 8, 2): a(pk('fma', e+i, e+i, ('b', t1), ('b', t1)))
    for i in range(8): a(f"v_rcp_f32 {v(e+i)}, {v(e+i)}")
    for i in range(0, 8, 2): a(pk('mul', y+i, y+i, e+i))
    st()
    a("s_cmp_eq_u32 s98, 0")
    a("s_cbranch_scc1 V2OK")
    spin(a, pv, pa, 's[16:19]', 's62', '0xf')
    v2dma()
    a.raw("V2OK:")
    st()
    a.raw("    s_waitcnt vmcnt(0)")
    a("s_barrier")
    st()
    vf = big + 56; so = big + 88
    n = 0
    for cl in range(2):
        for par in range(2):
            for kk in range(2):
                for hh in range(2):
                    o = (16 * kk + 2 * hh) * 2 + par
                    a(f"ds_read2st64_b32 {v(vf+4*n+2*hh,2)}, {v(va[cl])} offset0:{o} offset1:{o+2}")
                n += 1
    n = 0
    for cl in range(2):
        for par in range(2):
            for kk in range(2):
                b = (T2 if par == 0 else T2o + 8 * cl) + 4 * kk
                a(m16(so + 4 * cl, vf + 4 * n, b, '0' if (par == 0 and kk == 0) else None)); n += 1
    OST = ' nt' if 'ont' in OPT else ''
    for cl in range(2):
        for i in (0, 2): a(pk('fma', xs+4*cl+i, so+4*cl+i, y+4*cl+i, xs+4*cl+i))
        for i in range(2): a(f"v_cvt_pk_bf16_f32 {v(xv+2*cl+i)}, {v(xs+4*cl+2*i)}, {v(xs+4*cl+2*i+1)}")
        a(f"buffer_store_dwordx2 {v(xv+2*cl,2)}, {v(vo)}, s[24:27], s63 offen offset:{cl*32}{OST}")
    st.dump(t0)
    a("s_endpgm")
    return R.maxv

def spec(a, st):
    XS = 928; VS = 1032
    WB = 66560; TB = WB + 65536; SB = TB + 16384
    a("""s_load_dwordx2 s[20:21], s[0:1], 8
         s_load_dwordx2 s[24:25], s[0:1], 16
         s_mov_b32 s22, 921600
         s_mov_b32 s23, 0x00020000
         s_mov_b32 s26, 921600
         s_mov_b32 s27, 0x00020000""")
    R = RegAlloc(start=3, limit=256)
    t0 = R.get(); t1 = R.get(); t2 = R.get(); t3 = R.get(); t4 = R.get()
    mi = R.get(8, 2)
    IT = R.get(56, 2); FT = R.get(56, 2); AC = R.get(64, 2); AF = R.get(32, 2); TF = R.get(32, 2)
    a.vmq = [dict(w={('v', 255)}, tag=None)] + [dict(w=set(), tag='x') for _ in range(8)]
    st()
    a(f"""s_and_b32 s33, s3, 3
          s_lshr_b32 s34, s3, 2
          s_lshr_b32 s44, s33, 1
          s_and_b32 s45, s3, 1
          s_lshl_b32 s37, s2, 13
          s_add_u32 s37, s37, {OFF_FL}
          s_lshl_b32 s49, s2, 9
          s_add_u32 s49, s49, {OFF_F2}
          v_lshlrev_b32 {v(t0)}, 10, v1""")
    for i in range(4): a(f"v_mov_b32 {v(AF+i)}, 0")
    wave0(a, ["s_mov_b32 exec_hi, 0", f"buffer_store_dwordx4 {v(AF,4)}, v2, s[16:19], s49 offen sc1", "s_mov_b32 exec_lo, 0xff",
              f"buffer_store_dwordx2 {v(AF,2)}, {v(t0)}, s[16:19], s37 offen offset:896 sc1", "s_mov_b64 exec, -1"])
    a(f"""v_and_b32 {v(t0)}, 15, v1
          s_lshl_b32 s49, s33, 4
          v_add_u32 {v(t0)}, s49, {v(t0)}
          v_cmp_eq_u32 vcc, 1, {v(t0)}
          v_cndmask_b32 {v(t0)}, {v(t0)}, 64, vcc
          v_and_b32 {v(t1)}, 1, {v(t0)}
          v_cvt_f32_u32 {v(t1)}, {v(t1)}
          v_mul_f32 {v(t1)}, {lit(-0.25)}, {v(t1)}
          v_lshrrev_b32 {v(t0)}, 1, {v(t0)}
          v_cvt_f32_u32 {v(t0)}, {v(t0)}
          v_mul_f32 {v(t0)}, {lit(1/64)}, {v(t0)}
          v_lshrrev_b32 {v(t4)}, 4, v1
          v_lshlrev_b32 {v(t2)}, 2, {v(t4)}
          v_cvt_f32_u32 {v(t2)}, {v(t2)}
          v_fma_f32 {v(TF)}, {v(t2)}, {v(t0)}, {v(t1)}""")
    for k in range(1, 16): a(f"v_fmamk_f32 {v(TF+k)}, {v(t0)}, {lit(float(16*(k>>2)+(k&3)))}, {v(TF)}")
    for k in range(16): a(f"v_cos_f32 {v(TF+k)}, {v(TF+k)}")
    a(f"""v_lshrrev_b32 {v(t0)}, 2, v1
          v_mul_u32_u24 {v(t0)}, {XS}, {v(t0)}
          v_and_b32 {v(t1)}, 3, v1
          v_lshlrev_b32 {v(t1)}, 3, {v(t1)}
          v_add_u32 {v(t2)}, {v(t0)}, {v(t1)}
          v_sub_u32 {v(t3)}, {v(t0)}, {v(t1)}
          s_lshl_b32 s42, s34, 7
          s_lshl_b32 s49, s34, 3
          s_sub_u32 s43, 32, s49""")
    for t in range(4):
        if t: a("s_add_u32 s42, s42, s43")
        a(f"v_add_u32 {v(mi+t)}, s42, {v(t2)}")
        a(f"s_sub_u32 s49, 440, s42")
        a(f"v_add_u32 {v(mi+4+t)}, s49, {v(t3)}")
    a(f"""v_lshrrev_b32 {v(t0)}, 3, v1
          v_mul_u32_u24 {v(t1)}, {XS}, {v(t0)}
          v_and_b32 {v(t2)}, 7, v1
          v_lshl_add_u32 {v(t1)}, {v(t2)}, 4, {v(t1)}
          v_add_u32 {v(t1)}, s36, {v(t1)}""")
    s1 = [AF, AF + 1]; s2 = [AF + 2, AF + 3]
    a(f"""s_lshl_b32 s49, s3, 5
          s_add_u32 s49, s49, {SB}
          v_lshl_add_u32 {v(t2)}, {v(t0)}, 2, s49
          s_lshl_b32 s49, s34, 6
          s_lshl_b32 s46, s45, 5
          s_add_u32 s49, s49, s46
          s_lshl_b32 s46, s44, 3
          s_add_u32 s49, s49, s46
          s_add_u32 s49, s49, {SB + 256}
          v_lshrrev_b32 {v(t3)}, 5, v1
          v_lshl_add_u32 {v(t3)}, {v(t3)}, 4, s49
          v_and_b32 {v(AF+4)}, 3, {v(t0)}
          v_lshl_add_u32 {v(t3)}, {v(AF+4)}, 1, {v(t3)}
          s_lshl_b32 s46, s45, 7
          s_lshr_b32 s49, s3, 1
          s_lshl_b32 s49, s49, 2
          s_add_u32 s46, s46, s49
          s_add_u32 s46, s46, {SB + 512}
          v_lshl_add_u32 {v(AF+4)}, {v(t0)}, 4, s46
          v_lshlrev_b32 {v(t0)}, 2, v1
          v_add_u32 {v(AF+20)}, {SB + 512}, {v(t0)}
          s_lshl_b32 s46, s2, 8
          s_add_u32 s46, s46, {OFF_ST}
          v_lshlrev_b32 {v(t4)}, 4, {v(t4)}
          v_add_u32 {v(t4)}, {SB}, {v(t4)}""")
    tv = AC + 32; u0, u1, u2, u3 = AC + 48, AC + 49, AC + 50, AC + 51
    a(f"""v_and_b32 {v(u0)}, 31, v1
          v_lshrrev_b32 {v(u1)}, 5, v1
          v_lshlrev_b32 {v(u1)}, 2, {v(u1)}
          s_lshl_b32 s49, s44, 4
          v_add_u32 {v(u1)}, s49, {v(u1)}
          s_cmp_eq_u32 s34, 0
          s_cselect_b64 vcc, -1, 0
          v_cndmask_b32 {v(u2)}, {v(u1)}, {v(u0)}, vcc
          v_cndmask_b32 {v(u3)}, {v(u0)}, {v(u1)}, vcc""")
    a(f"""v_cmp_le_u32 s[62:63], 16, {v(u2)}
          v_cmp_eq_u32 s[50:51], 0, {v(u2)}
          s_cmp_eq_u32 s2, 0
          s_cselect_b64 s[52:53], -1, 0
          s_and_b64 s[54:55], s[62:63], s[52:53]
          s_and_b64 s[50:51], s[50:51], s[52:53]
          s_cmp_eq_u32 s45, 1
          s_cselect_b64 s[50:51], s[50:51], 0
          s_and_b64 s[56:57], s[50:51], vcc
          v_lshlrev_b32 {v(u2)}, 6, {v(u2)}
          v_add_u32 {v(u2)}, s2, {v(u2)}
          v_subrev_u32 {v(u0)}, 992, {v(u2)}
          v_cndmask_b32 {v(u2)}, {v(u2)}, {v(u0)}, s[54:55]
          v_mov_b32 {v(u0)}, 1024
          v_cndmask_b32 {v(u2)}, {v(u2)}, {v(u0)}, s[56:57]
          v_cvt_f32_u32 {v(u2)}, {v(u2)}
          v_cvt_f32_u32 {v(u3)}, {v(u3)}
          v_mul_f32 {v(u2)}, {lit(1/2048)}, {v(u2)}
          v_mul_f32 {v(u0)}, {lit(1/32)}, {v(u3)}
          v_cndmask_b32 {v(u0)}, {v(u0)}, {v(u2)}, vcc
          s_cmp_eq_u32 s45, 1
          s_cselect_b32 s49, {lit(-0.25)}, 0
          v_mov_b32 {v(u1)}, s49
          v_cndmask_b32 {v(u1)}, {v(u1)}, 0, s[56:57]
          v_fma_f32 {v(tv)}, {v(u2)}, {v(u3)}, {v(u1)}""")
    for i in range(1, 8): a(f"v_fmamk_f32 {v(tv+i)}, {v(u0)}, {lit(float(8*(i>>2)+(i&3)))}, {v(tv)}")
    a(f"v_mul_f32 {v(u3)}, 0.5, {v(u3)}")
    a(f"v_cndmask_b32 {v(tv)}, {v(tv)}, {v(u3)}, s[50:51]")
    for i in range(8): a(f"v_cos_f32 {v(tv+i)}, {v(tv+i)}")
    for i in range(4): a(f"v_cvt_pk_bf16_f32 {v(tv+8+i)}, {v(tv+2*i)}, {v(tv+2*i+1)}")
    a(f"""s_andn2_b64 s[58:59], s[52:53], s[62:63]
          s_cmp_lg_u32 s2, 0
          s_cselect_b32 s49, s45, 0
          s_mul_i32 s49, s49, 0x80008000""")
    for i in range(4): a(f"v_xor_b32 {v(tv+12+i)}, s49, {v(tv+8+i)}")
    for i in range(4): a(f"v_cndmask_b32 {v(tv+12+i)}, {v(tv+12+i)}, 0, s[58:59]")
    for i in range(4): a(f"v_cndmask_b32 {v(tv+8+i)}, {v(tv+8+i)}, 0, s[54:55]")
    a(f"""s_lshl_b32 s60, s34, 3
          s_add_u32 s60, s60, s44
          s_lshl_b32 s60, s60, 10
          s_add_u32 s60, s60, {TB}
          s_mul_i32 s49, s45, 6144
          s_add_u32 s49, s49, s60
          v_add_u32 {v(u0)}, s49, v2
          s_cmp_eq_u32 s2, 0
          s_cselect_b32 s49, 0, 1
          s_xor_b32 s49, s49, s45
          s_lshl_b32 s49, s49, 11
          s_add_u32 s49, s49, s60
          v_add_u32 {v(u1)}, s49, v2""")
    a(f"ds_write_b128 {v(u0)}, {v(tv+8,4)}")
    a(f"ds_write_b128 {v(u1)}, {v(tv+12,4)} offset:2048")
    w0, w1, w2, w3 = FT + 52, FT + 53, FT + 54, FT + 55
    a(f"""s_lshl_b32 s38, s3, 8
          s_add_u32 s38, s38, s2
          s_mul_i32 s49, s34, 992
          s_cmp_eq_u32 s2, 0
          s_cselect_b32 s49, s49, 0
          s_sub_u32 s38, s38, s49
          s_sub_u32 s39, 2048, s38
          s_cmp_eq_u32 s38, 0
          s_cselect_b32 s40, 1024, s39
          v_and_b32 {v(w0)}, 31, v1
          v_lshlrev_b32 {v(w0)}, 4, {v(w0)}
          v_cmp_gt_u32 vcc, 32, v1
          v_mov_b32 {v(w1)}, s38
          v_mov_b32 {v(w2)}, s39
          v_mov_b32 {v(w3)}, s40
          v_cndmask_b32 {v(w2)}, {v(w2)}, {v(w1)}, vcc
          v_cndmask_b32 {v(w3)}, {v(w3)}, {v(w1)}, vcc
          v_mul_u32_u24 {v(w2)}, 450, {v(w2)}
          v_mul_u32_u24 {v(w3)}, 450, {v(w3)}
          v_and_b32 {v(w2)}, 0xffffffc0, {v(w2)}
          v_and_b32 {v(w3)}, 0xffffffc0, {v(w3)}
          v_add_u32 {v(w2)}, {v(w2)}, {v(w0)}
          v_add_u32 {v(w3)}, {v(w3)}, {v(w0)}
          v_mov_b32 {v(w0)}, {(-28800) & 0xffffffff:#x}
          v_mov_b32 {v(w1)}, 28800
          v_cndmask_b32 {v(w0)}, {v(w0)}, {v(w1)}, vcc
          s_lshl_b32 s41, s3, 13""")
    wdm = []
    for i in range(4):
        for mat in range(2):
            wdm.append((f"v_add_u32 {v(w2)}, {v(w2)}, {v(w0)}\n" if i and not mat else "") +
                       f"s_add_u32 m0, s41, {WB + i*2048 + mat*1024}\n" +
                       f"buffer_load_dwordx4 {v(w2 if i else w3)}, s[{20+4*mat}:{23+4*mat}], 0 offen lds")
    NW0 = int(OPT[OPT.index('nw0') + 1]) if 'nw0' in OPT else 4
    a.wait_smem()
    if NW0:
        a("s_barrier")
        for x in wdm[:NW0]: a(x)
    wdm = wdm[NW0:]
    st()
    if PRIO: a("s_setprio 3")
    a.wait_tag('x')
    st()
    for i in range(7): a(f"ds_read_b128 {v(AC+4*i,4)}, {v(t1)} offset:{i*128}")
    for i in range(28):
        a(f"v_dot2c_f32_bf16 {v(s1[i&1])}, 0x3f803f80, {v(AC+i)}")
        a(f"v_dot2c_f32_bf16 {v(s2[i&1])}, {v(AC+i)}, {v(AC+i)}")
    mean = s1[0]; var = s2[0]
    a(f"v_add_f32 {v(mean)}, {v(s1[0])}, {v(s1[1])}")
    a(f"v_add_f32 {v(var)}, {v(s2[0])}, {v(s2[1])}")
    for m in ("quad_perm:[1,0,3,2]", "quad_perm:[2,3,0,1]", "row_half_mirror"):
        for r in (mean, var): a(f"v_add_f32_dpp {v(r)}, {v(r)}, {v(r)} {m} row_mask:0xf bank_mask:0xf")
    nm = s1[1]; rs = s2[1]
    a(f"""v_mul_f32 {v(mean)}, {lit(1/448)}, {v(mean)}
          v_mul_f32 {v(var)}, {lit(1/448)}, {v(var)}
          v_fma_f32 {v(var)}, -{v(mean)}, {v(mean)}, {v(var)}
          v_max_f32 {v(var)}, 0, {v(var)}
          v_cvt_pk_bf16_f32 {v(var)}, {v(var)}, {v(var)}
          v_lshlrev_b32 {v(var)}, 16, {v(var)}
          v_add_f32 {v(var)}, {lit(1e-5)}, {v(var)}
          v_cvt_pk_bf16_f32 {v(var)}, {v(var)}, {v(var)}
          v_lshlrev_b32 {v(var)}, 16, {v(var)}
          v_sqrt_f32 {v(var)}, {v(var)}
          v_cvt_pk_bf16_f32 {v(nm)}, {v(var)}, -{v(mean)}
          v_lshlrev_b32 {v(var)}, 16, {v(nm)}
          v_rcp_f32 {v(rs)}, {v(var)}""")
    a("s_mov_b32 exec_lo, 0x01010101\ns_mov_b32 exec_hi, 0x01010101")
    a(f"ds_write_b16_d16_hi {v(t3)}, {v(nm)}")
    a(f"ds_write_b32 {v(t2)}, {v(rs)}")
    a(f"ds_write_b32 {v(AF+4)}, {v(nm)}")
    a("s_mov_b64 exec, -1")
    a.wait(lg=0)
    a("s_barrier")
    st()
    rsv = TF + 16; nmf = AF; Tp = AF + 8; cin = AF + 16
    a(f"ds_read_b32 {v(t2)}, {v(AF+20)}")
    for k in range(4): a(f"ds_read_b128 {v(rsv+4*k,4)}, {v(t4)} offset:{64*k}")
    for ks in range(2): a(f"ds_read_b128 {v(nmf+4*ks,4)}, {v(t4)} offset:{256 + 64*ks}")
    seq = [(t, arr, ks) for t in range(4) for arr in range(4) for ks in range(2)]
    def xr(n):
        t, arr, ks = seq[n]
        return [f"ds_read_b64_tr_b16 {v(IT+4*(n%14)+2*u,2)}, {v(mi+4*(arr>>1)+t)} offset:{(32*ks+16*u)*XS + 448*(arr&1)}" for u in range(2)]
    for n in range(4):
        for x in xr(n): a(x)
    for k in range(0, 16, 2): a(pk('mul', TF+k, TF+k, rsv+k))
    wave0(a, [f"buffer_store_dword {v(t2)}, {v(t0)}, s[16:19], s46 offen sc1"])
    nv0 = a.nvm
    for n in range(4, 10):
        for x in xr(n): a(x)
    for k in range(8): a(f"v_cvt_pk_bf16_f32 {v(Tp+k)}, {v(TF+2*k)}, {v(TF+2*k+1)}")
    a(m16(cin, Tp, nmf, '0')); a(m16(cin, Tp + 4, nmf + 4))
    for n in range(10, 14):
        for x in xr(n): a(x)
    A = lambda t, arr: AC + 16 * t + 4 * arr
    def fold(t):
        out = []
        d1 = TF + 8 * (t & 1); d2 = d1 + 4
        for r in (0, 2):
            out += [pk('add', d1+r, A(t,0)+r, A(t,1)+r, neg=[1]), pk('add', A(t,0)+r, A(t,0)+r, A(t,1)+r)]
        for r in (0, 2):
            out += [pk('add', d2+r, A(t,2)+r, A(t,3)+r, neg=[1]), pk('add', A(t,2)+r, A(t,2)+r, A(t,3)+r)]
        q = "quad_perm:[3,2,1,0] row_mask:0xf bank_mask:0xf"
        for r in range(4):
            out += [f"v_subrev_f32_dpp {v(A(t,1)+r)}, {v(A(t,2)+r)}, {v(A(t,0)+r)} {q}",
                    f"v_add_f32_dpp {v(A(t,0)+r)}, {v(A(t,2)+r)}, {v(A(t,0)+r)} {q}"]
        for r in range(4):
            out += [f"v_subrev_f32_dpp {v(A(t,2)+r)}, {v(d2+r)}, {v(d1+r)} {q}",
                    f"v_add_f32_dpp {v(A(t,3)+r)}, {v(d2+r)}, {v(d1+r)} {q}"]
        return out
    for t in range(4):
        mains = []; fills = []
        for n in range(8 * t, 8 * t + 8):
            _, arr, ks = seq[n]
            mains.append(m16(A(t, arr), Tp + 4 * ks, IT + 4 * (n % 14), v(cin, 4) if ks == 0 else None))
        fl = fold(t - 1) if t else []
        for i, m in enumerate(mains):
            a(m)
            n = 8 * t + i + 14
            if n < 32:
                for x in xr(n): a(x)
            if t < 2 and i & 1 and wdm: a(wdm.pop(0))
            if i >= 2:
                for x in fl[(i - 2) * 4:(i - 1) * 4]: a(x)
    a(f"v_mov_b32 {v(t0)}, 1")
    a(f"s_lshl_b32 s49, s2, 3")
    wave0(a, [f"s_waitcnt vmcnt({a.nvm - nv0})", "s_mov_b64 exec, 1", f"buffer_store_dword {v(t0)}, off, s[28:31], s49 sc1", "s_mov_b64 exec, -1"])
    a(f"""v_lshrrev_b32 {v(t1)}, 4, v1
          v_lshlrev_b32 {v(t1)}, 17, {v(t1)}
          v_and_b32 {v(t2)}, 15, v1
          v_lshl_add_u32 {v(t1)}, {v(t2)}, 4, {v(t1)}
          s_lshl_b32 s46, s33, 19
          s_lshl_b32 s49, s2, 11
          s_add_u32 s46, s46, s49
          s_lshl_b32 s49, s34, 10
          s_add_u32 s46, s46, s49
          s_add_u32 s46, s46, {OFF_V1}
          s_add_u32 s47, s46, 65536""")
    for x in fold(3): a(x)
    st()
    for r in range(4):
        for par in range(2):
            o = AF + 4 * (2 * r + par)
            for cs_ in range(2):
                for th in range(2):
                    a(f"v_cvt_pk_bf16_f32 {v(o+2*cs_+th)}, {v(A(2*th,2*par+cs_)+r)}, {v(A(2*th+1,2*par+cs_)+r)}")
            a(f"buffer_store_dwordx4 {v(o,4)}, {v(t1)}, s[16:19], s{46+(r>>1)} offen offset:{(r&1)*512 + par*256} sc1", tag='v1s')
    st()
    fa = mi + 1; wr = mi + 2; ga = mi + 3; gr = mi + 4; vo = mi + 5; tb = mi + 6; pv = mi + 7
    a(f"v_and_b32 {v(t4)}, 31, v1")
    a(f"v_lshlrev_b32 {v(t4)}, 3, {v(t4)}")
    a(f"buffer_load_dword {v(pv)}, {v(t4)}, s[28:31], 0 offen sc1", tag='dp')
    if PRIO: a("s_setprio 0")
    K = mi
    a(f"""v_and_b32 {v(t2)}, 31, v1
          s_lshl_b32 s49, s33, 6
          s_add_u32 s49, s49, 2
          s_sub_u32 s49, s49, s34
          v_lshl_add_u32 {v(t2)}, {v(t2)}, 1, s49
          v_cvt_f32_u32 {v(t2)}, {v(t2)}
          v_mul_f32 {v(t2)}, {lit(1/448)}, {v(t2)}
          v_lshrrev_b32 {v(t1)}, 5, v1
          v_cvt_f32_u32 {v(t3)}, {v(t1)}
          v_mul_f32 {v(K)}, 4.0, {v(t2)}
          v_fma_f32 {v(t3)}, {v(t3)}, 2.0, 0.5
          v_cos_f32 {v(K)}, {v(K)}
          v_mul_f32 {v(t3)}, {v(t3)}, {v(t2)}
          v_add_f32 {v(K)}, {v(K)}, {v(K)}""")
    def f1chain(P0, n, d, ks0):
        out = []
        sl = lambda P: AC + 4 * (P % 8)
        for P in range(P0, P0 + n):
            if P < P0 + 2:
                for u in range(2):
                    k = 4 * P + u
                    out.append(f"v_fmamk_f32 {v(sl(P)+2+u)}, {v(t2)}, {lit(float(k))}, {v(t3)}" if k else f"v_mov_b32 {v(sl(P)+2+u)}, {v(t3)}")
                for u in range(2): out.append(f"v_cos_f32 {v(sl(P)+u)}, {v(sl(P)+2+u)}")
                for u in range(2): out.append(f"v_sin_f32 {v(sl(P)+2+u)}, {v(sl(P)+2+u)}")
            else:
                for c in (0, 2): out.append(pk('fma', sl(P)+c, sl(P-1)+c, ('b', K), sl(P-2)+c, neg=[2]))
            Pc = P - 1
            for Pc in ([P - 1, P] if P == P0 + n - 1 else [P - 1]):
                t, q = divmod(Pc - P0, d)
                if Pc >= P0 and t & 1:
                    for c in range(2):
                        for u in range(2):
                            out.append(f"v_cvt_pk_bf16_f32 {v(FT+8*(ks0+q)+4*c+2*u+(t>>1))}, {v(sl(Pc-d)+2*c+u)}, {v(sl(Pc)+2*c+u)}")
        return out
    for x in f1chain(0, 16, 4, 0): a(x)
    a(f"""s_lshl_b32 s49, s3, 10
          s_add_u32 s49, s49, s37
          v_and_b32 {v(tb)}, 3, v1
          v_lshlrev_b32 {v(tb)}, 13, {v(tb)}
          v_and_b32 {v(vo)}, 4, v1
          v_lshl_add_u32 {v(tb)}, {v(vo)}, 10, {v(tb)}
          s_lshl_b32 s50, s3, 15
          s_lshr_b32 s51, s2, 3
          s_lshl_b32 s51, s51, 10
          s_add_u32 s50, s50, s51
          s_add_u32 s50, s50, {OFF_FL + 896}""")
    if PRIO: a("s_setprio 3")
    st()
    a.wait_tag('v1s')
    a(f"s_mov_b64 exec, 1\nbuffer_store_dword {v(t0)}, off, s[16:19], s49 offset:896 sc1\ns_mov_b64 exec, -1")
    st()
    spin(a, pv, t4, 's[28:31]', '0', '-1', first=False)
    a(f"buffer_load_dword {v(pv)}, {v(tb)}, s[16:19], s50 offen sc1")
    if PRIO: a("s_setprio 0")
    for x in f1chain(16, 12, 3, 4): a(x)
    a(f"""s_lshl_b32 s51, s2, 16
          s_lshl_b32 s49, s3, 13
          s_add_u32 s51, s51, s49
          s_add_u32 s51, s51, {OFF_V1}
          s_mul_i32 s52, s3, {4*VS}""")
    if PRIO: a("s_setprio 3")
    st()
    spin(a, pv, tb, 's[16:19]', 's50', '0xff', first=False)
    a("s_barrier")
    st()
    for hh in range(2):
        for i in range(4):
            a(f"s_add_u32 m0, s52, {(hh*32+i)*VS}")
            a(f"s_add_u32 s49, s51, {i*2048 + hh*1024}")
            a(f"buffer_load_dwordx4 v2, s[16:19], s49 offen sc1 lds", tag=('v', hh))
    if PRIO: a("s_setprio 0")
    a(f"""v_and_b32 {v(t2)}, 31, v1
          s_lshl_b32 s49, s33, 5
          v_add_u32 {v(t2)}, s49, {v(t2)}
          v_cvt_f32_u32 {v(t3)}, {v(t2)}
          v_add_f32 {v(t3)}, 0.5, {v(t3)}
          v_mul_f32 {v(t3)}, {lit(1/448)}, {v(t3)}
          s_sub_u32 s49, 2, s34
          v_lshl_add_u32 {v(t4)}, {v(t1)}, 3, s49
          v_mul_f32 {v(K)}, {lit(16.0)}, {v(t3)}
          v_cmp_eq_u32 vcc, 10, {v(t4)}
          v_cvt_f32_u32 {v(t4)}, {v(t4)}
          v_cos_f32 {v(K)}, {v(K)}
          v_mul_f32 {v(t4)}, {v(t4)}, {v(t3)}
          v_cndmask_b32 {v(pv)}, 1.0, 0.5, vcc
          v_add_f32 {v(K)}, {v(K)}, {v(K)}""")
    sl = lambda Q: AC + 8 * (Q % 4)
    def i1cvt(Q):
        for c in range(2):
            for h in range(2):
                a(f"v_cvt_pk_bf16_f32 {v(IT+8*(Q>>1)+4*c+2*(Q&1)+h)}, {v(sl(Q)+4*c+2*h)}, {v(sl(Q)+4*c+2*h+1)}")
    for Q in range(14):
        if Q < 2:
            for r in range(4):
                k = 16 * Q + 2 * r
                a(f"v_fmamk_f32 {v(sl(Q)+4+r)}, {v(t3)}, {lit(float(k))}, {v(t4)}" if k else f"v_mov_b32 {v(sl(Q)+4+r)}, {v(t4)}")
            for r in range(4): a(f"v_cos_f32 {v(sl(Q)+r)}, {v(sl(Q)+4+r)}")
            for r in range(4): a(f"v_sin_f32 {v(sl(Q)+4+r)}, {v(sl(Q)+4+r)}")
        else:
            for c in range(0, 8, 2): a(pk('fma', sl(Q)+c, sl(Q-1)+c, ('b', K), sl(Q-2)+c, neg=[2]))
        if Q: i1cvt(Q - 1)
    a(f"v_mul_f32 {v(sl(13)+7)}, {v(sl(13)+7)}, {v(pv)}")
    a(f"""v_and_b32 {v(t3)}, 31, v1
          v_mul_u32_u24 {v(fa)}, {VS}, {v(t3)}
          v_lshl_add_u32 {v(fa)}, {v(t1)}, 5, {v(fa)}
          s_lshl_b32 s49, s34, 8
          v_add_u32 {v(fa)}, s49, {v(fa)}
          v_lshlrev_b32 {v(vo)}, 2, {v(t2)}
          s_lshl_b32 s49, s34, 1
          s_sub_u32 s49, {WB + 4}, s49
          v_lshl_add_u32 {v(wr)}, {v(t1)}, 13, s49
          v_add_u32 {v(wr)}, {v(wr)}, {v(vo)}
          s_lshl_b32 s49, s2, 1
          s_sub_u32 s54, 64, s49
          s_and_b32 s54, s54, 63
          v_add_u32 {v(K)}, s54, {v(wr)}
          v_add_u32 {v(wr)}, s49, {v(wr)}
          v_lshl_add_u32 {v(vo)}, {v(t1)}, 18, {v(vo)}
          s_lshl_b32 s49, s34, 15
          v_add_u32 {v(gr)}, s49, v2
          s_lshl_b32 s49, s33, 11
          v_add_u32 {v(ga)}, s49, {v(gr)}
          v_add_u32 {v(tb)}, {TB}, v2
          s_lshl_b32 s53, s2, 11
          s_lshl_b32 s49, s34, 10
          s_add_u32 s53, s53, s49
          s_add_u32 s53, s53, {OFF_V2}""")
    i1cvt(13)
    for k in range(8): a(f"ds_read_b128 {v(TF+4*k,4)}, {v(tb)} offset:{k*1024}")
    st()
    def f1r(ks):
        hh, q = (0, ks) if ks < 4 else (1, ks - 4)
        return [f"ds_read_b64 {v(AF+16*(ks&1)+4*(2*d+c)+2*u,2)}, {v(fa)} offset:{hh*32*VS + c*512 + (4*q+u)*16 + 8*d}"
                for d in range(2) for c in range(2) for u in range(2)]
    a.wait_tag(('v', 0))
    a("s_barrier")
    st()
    for x in f1r(0): a(x)
    for ks in range(7):
        mains = [m32(AC + 16 * i, AF + 16 * (ks & 1) + 4 * i, FT + 8 * ks + 4 * (i >> 1), '0' if ks == 0 else None) for i in range(4)]
        fills = f1r(ks + 1) if ks < 6 else []
        if ks == 3:
            def sy():
                a.wait_tag(('v', 1)); a("s_barrier")
            fills = [sy] + fills
        weave(a, mains, fills, span=3)
    def wrd(r):
        return [f"ds_read_u16_d16_hi {v(FT+4*(r%14)+2*pm+mat)}, {v(K if pm else wr)} offset:{(8*(r>>2)+(r&3))*2048 + mat*1024 + pm*512}"
                for pm in range(2) for mat in range(2)]
    BF = lambda i: AF + 8 * ((i + 2) & 3)
    Tf = lambda T, s: TF + 8 * T + 4 * s
    cvt = lambda i: [f"v_cvt_pk_bf16_f32 {v(BF(i)+k)}, {v(AC+16*i+2*k)}, {v(AC+16*i+2*k+1)}" for k in range(8)]
    for x in cvt(0) + cvt(1): a(x)
    def f2(i0):
        o0, o1 = AC + 16 * i0, AC + 16 * i0 + 16
        C, S = BF(i0), BF(i0 + 1)
        return [m32(o0, Tf(0, 0), C, '0'), m32(o1, Tf(3, 0), C, '0'), m32(o0, Tf(0, 1), C + 4), m32(o1, Tf(3, 1), C + 4),
                m32(o0, Tf(1, 0), S), m32(o1, Tf(2, 0), S), m32(o0, Tf(1, 1), S + 4), m32(o1, Tf(2, 1), S + 4)]
    wl = [x for r in range(14) for x in wrd(r)]
    weave(a, f2(0), cvt(2) + cvt(3) + wl[:16])
    weave(a, f2(2), wl[16:])
    st()
    for k in range(8): a(f"ds_read_b128 {v(TF+4*k,4)}, {v(tb)} offset:{8192 + k*1024}")
    a("s_barrier")
    al, de, gm, be = AC, AC + 16, AC + 32, AC + 48
    for r in range(16):
        Pr, Pi, Mr, Mi = [FT + 4 * (r % 14) + k for k in range(4)]
        a1, b1 = (t1, t2) if r & 1 else (t3, t4)
        A_, D_, G_, B_ = al + r, de + r, gm + r, be + r
        if r == 0:
            for k, x in enumerate((A_, D_, G_, B_)): a(f"v_mov_b32 {v(AF+k)}, {v(x)}")
        a(f"""v_sub_f32 {v(a1)}, {v(A_)}, {v(B_)}
              v_add_f32 {v(b1)}, {v(G_)}, {v(D_)}
              v_add_f32 {v(A_)}, {v(A_)}, {v(B_)}
              v_sub_f32 {v(G_)}, {v(G_)}, {v(D_)}
              v_mul_f32 {v(B_)}, {v(a1)}, {v(Pr)}
              v_mul_f32 {v(D_)}, {v(a1)}, {v(Pi)}
              v_fmac_f32 {v(B_)}, {v(b1)}, {v(Pi)}
              v_fma_f32 {v(D_)}, -{v(b1)}, {v(Pr)}, {v(D_)}
              v_fma_f32 {v(a1)}, {v(A_)}, {v(Mr)}, {v(B_)}
              v_fma_f32 {v(b1)}, {v(A_)}, {v(Mi)}, {v(D_)}
              v_fma_f32 {v(A_)}, {v(G_)}, {v(Mi)}, {v(a1)}
              v_fma_f32 {v(G_)}, -{v(G_)}, {v(Mr)}, {v(b1)}
              v_fma_f32 {v(B_)}, {v(B_)}, 2.0, -{v(A_)}
              v_fma_f32 {v(D_)}, {v(D_)}, -2.0, {v(G_)}""")
        if r == 0:
            a("s_cmp_lg_u32 s2, 0")
            a("s_cbranch_scc1 NOFIX")
            a("s_mov_b32 exec_hi, 0")
            a(f"""v_mul_f32 {v(A_)}, {v(AF)}, {v(Pr)}
                  v_mul_f32 {v(G_)}, {v(AF)}, {v(Pi)}
                  v_mul_f32 {v(D_)}, {v(AF+1)}, {v(Mr)}
                  v_mul_f32 {v(B_)}, {v(AF+1)}, {v(Mi)}
                  v_fmac_f32 {v(A_)}, {v(AF+2)}, {v(Pi)}
                  v_fma_f32 {v(G_)}, -{v(AF+2)}, {v(Pr)}, {v(G_)}
                  v_fmac_f32 {v(D_)}, {v(AF+3)}, {v(Mi)}
                  v_fma_f32 {v(B_)}, -{v(AF+3)}, {v(Mr)}, {v(B_)}""")
            a("s_mov_b32 exec_hi, -1")
            a.raw("NOFIX:")
        if r < 2:
            for x in wrd(r + 14): a(x)
        if r & 1:
            for i in range(4): a(f"v_cvt_pk_bf16_f32 {v(AF+8*i+(r>>1))}, {v(AC+16*i+r-1)}, {v(AC+16*i+r)}")
    st()
    def i2(i0):
        o0, o1 = AC + 16 * i0, AC + 16 * i0 + 16
        S, D = AF + 8 * i0, AF + 8 * i0 + 8
        return [m32(o0, S, Tf(0, 0), '0'), m32(o0, S + 4, Tf(0, 1)), m32(o0, D, Tf(3, 0)), m32(o0, D + 4, Tf(3, 1)),
                m32(o1, S, Tf(1, 0), '0'), m32(o1, S + 4, Tf(1, 1)), m32(o1, D, Tf(2, 0)), m32(o1, D + 4, Tf(2, 1))]
    def gout(i):
        out = []
        for s_ in range(2):
            o = FT + 8 * i + 4 * s_
            out += [f"v_cvt_pk_bf16_f32 {v(o+k)}, {v(AC+16*i+8*s_+2*k)}, {v(AC+16*i+8*s_+2*k+1)}" for k in range(4)]
            out.append(f"ds_write_b128 {v(ga)}, {v(o,4)} offset:{i*8192 + s_*1024}")
        return out
    mm = i2(0) + i2(2)
    for x in mm[:6]: a(x)
    weave(a, mm[6:], gout(0) + gout(1) + gout(2)[:5])
    for x in gout(2)[5:] + gout(3): a(x)
    a.wait(lg=0)
    a("s_barrier")
    st()
    ring = [AF, AF + 16, TF]
    def i1r(ks):
        return [f"ds_read_b128 {v(ring[ks%3]+4*i,4)}, {v(gr)} offset:{i*8192 + ks*1024}" for i in range(4)]
    for x in i1r(0) + i1r(1): a(x)
    for ks in range(7):
        mains = [m32(AC + 16 * i, ring[ks % 3] + 4 * i, IT + 8 * ks + 4 * (i >> 1), '0' if ks == 0 else None) for i in range(4)]
        weave(a, mains, i1r(ks + 2) if ks < 5 else [])
    st()
    for r in range(16):
        x0, x1 = (t1, t2) if r & 1 else (t3, t4)
        a(f"""v_sub_f32 {v(x0)}, {v(AC+r)}, {v(AC+32+r)}
              v_sub_f32 {v(x1)}, {v(AC+16+r)}, {v(AC+48+r)}
              v_add_f32 {v(AC+r)}, {v(AC+r)}, {v(AC+32+r)}
              v_add_f32 {v(AC+16+r)}, {v(AC+16+r)}, {v(AC+48+r)}
              v_cvt_pk_bf16_f32 {v(AC+32+r)}, {v(x0)}, {v(x1)}
              v_cvt_pk_bf16_f32 {v(AC+48+r)}, {v(AC+r)}, {v(AC+16+r)}
              s_add_u32 s49, s53, {(8*(r>>2)+(r&3))*65536}
              buffer_store_dword {v(AC+32+r)}, {v(vo)}, s[16:19], s49 offen sc1
              buffer_store_dword {v(AC+48+r)}, {v(vo)}, s[16:19], s49 offen offset:512 sc1""")
    st()
    a(f"v_lshlrev_b32 {v(t1)}, 10, v1")
    a.wait(vm=0)
    a("s_barrier")
    wave0(a, ["s_mov_b64 exec, 0xff", f"buffer_store_dword {v(t0)}, {v(t1)}, s[16:19], s37 offen offset:900 sc1", "s_mov_b64 exec, -1"])
    st.dump(t1)
    return R.maxv

def kern(a):
    st = Stamp(a)
    a("s_cmp_ge_u32 s2, 0x100")
    a("s_cbranch_scc1 KEND")
    st()
    a("""s_load_dwordx2 s[4:5], s[0:1], 0
         s_load_dwordx2 s[8:9], s[0:1], 32
         s_load_dwordx2 s[12:13], s[0:1], 40
         s_load_dwordx2 s[16:17], s[0:1], 72
         s_load_dwordx2 s[28:29], s[0:1], 64""")
    a("s_getpc_b64 s[100:101]")
    a.raw("PCREF:")
    a("""v_lshrrev_b32 v2, 6, v0
         s_lshr_b32 s47, s2, 3
         v_lshl_add_u32 v255, s47, 3, v2
         v_readfirstlane_b32 s3, v2
         v_lshlrev_b32 v255, 7, v255
         v_and_b32 v1, 63, v0
         v_min_u32 v255, KEND-PCREF, v255
         v_lshlrev_b32 v2, 4, v1""")
    if 'notouch' not in OPT: a("global_load_dword v255, v255, s[100:101]")
    a("""s_and_b32 s33, s2, 7
         s_mov_b32 s6, 1835008
         s_mov_b32 s7, 0x00020000
         s_mov_b32 s18, 0x10000000
         s_mov_b32 s19, 0x00020000
         s_mov_b32 s30, 256
         s_mov_b32 s31, 0x00020000""")
    a("s_cmp_ge_u32 s2, 32")
    a("s_cbranch_scc1 FFN")
    for t in L(f"""s_lshl_b32 s2, s33, 2
         s_add_u32 s2, s2, s47
         s_mul_i32 s35, s2, 896
         s_mul_i32 s49, s3, {8*28672}
         s_add_u32 s35, s35, s49
         s_mul_i32 s36, s3, {8*928}
         s_mov_b32 m0, s36
         s_add_u32 s49, s36, {8*928}
         s_mov_b32 exec_hi, 0x00ffffff
         s_waitcnt lgkmcnt(0)
         XL:
         buffer_load_dwordx4 v2, s[4:7], s35 offen lds
         s_add_u32 m0, m0, 928
         s_add_u32 s35, s35, 28672
         s_cmp_lt_u32 m0, s49
         s_cbranch_scc1 XL
         s_mov_b32 exec_hi, -1
         s_branch SPEC
         FFN:
         s_mov_b32 s11, 0x00020000
         s_mov_b32 s15, 0x00020000"""): a.raw(t if t.endswith(':') else "    " + t)
    n0 = st.n
    m1 = ffn(a, st)
    a.raw(".p2align 6")
    a.label("SPEC")
    a.reset_state()
    st.n = n0
    m2 = spec(a, st)
    a.label("KEND")
    a("s_endpgm")
    return max(m1, m2)

def build():
    label = NAME + "_kernel"
    a = Asm()
    a.raw(f"; @launch grid=(256,1,1) block=(512,1,1) lds=163840")
    a.raw('.amdgcn_target "amdgcn-amd-amdhsa--gfx950"\n.text')
    a.raw(f".globl {label}\n.p2align 8\n.type {label},@function\n{label}:")
    nv = kern(a)
    print("vgprs", nv, "instrs", a.nins, file=sys.stderr)
    nv = (nv + 7) // 8 * 8
    a.raw(f""".section .rodata,"a"
.p2align 6
.amdhsa_kernel {label}
  .amdhsa_next_free_vgpr {nv}
  .amdhsa_next_free_sgpr 102
  .amdhsa_accum_offset {nv}
  .amdhsa_group_segment_fixed_size 0
  .amdhsa_kernarg_size 80
  .amdhsa_user_sgpr_count 2
  .amdhsa_user_sgpr_kernarg_segment_ptr 1
  .amdhsa_system_sgpr_workgroup_id_x 1
.end_amdhsa_kernel""")
    return a.text()

if __name__ == "__main__":
    open(sys.argv[1], "w").write(build())
```

```python
import sys, struct, math
sys.path.insert(0, 'work')
from asmlib import *

NAME = "recurrent_scan__spectral_gfnet__swiglu_ffn__prompt"
OFF_H = 0
OFF_V1 = 0x800000
OFF_V2 = 0xA00000
OFF_ST = 0xC00000
OFF_FL = 0xC10000
OFF_F2 = 0xC60000
OFF_DIAG = 0x2000000
NFAST = 24
OPT = sys.argv[2:]
DIAG = 'diag' in OPT
STAMP_OP = 's_memtime' if 'cyc' in OPT else 's_memrealtime'
LIMIT = 0x20000
PRIO = 'noprio' not in OPT

def lit(x):
    return "0x%08x" % struct.unpack('<I', struct.pack('<f', x))[0]
def m32(d, a, b, c=None):
    return f"v_mfma_f32_32x32x16_bf16 {v(d,16)}, {v(a,4)}, {v(b,4)}, {v(d,16) if c is None else c}"
def m16(d, a, b, c=None):
    return f"v_mfma_f32_16x16x32_bf16 {v(d,4)}, {v(a,4)}, {v(b,4)}, {v(d,4) if c is None else c}"

def bc(r):
    return v(r & ~1, 2), r & 1
def pk(op, d, *srcs, neg=None):
    ops = []; lo = []; hi = []
    for x in srcs:
        if isinstance(x, tuple):
            p, b = bc(x[1]); ops.append(p); lo.append(b); hi.append(b)
        else:
            assert x % 2 == 0
            ops.append(v(x, 2)); lo.append(0); hi.append(1)
    assert d % 2 == 0
    t = f"v_pk_{op}_f32 {v(d,2)}, " + ", ".join(ops)
    if any(lo): t += f" op_sel:[{','.join(map(str, lo))}]"
    if not all(hi): t += f" op_sel_hi:[{','.join(map(str, hi))}]"
    if neg:
        m = ','.join('1' if i in neg else '0' for i in range(len(srcs)))
        t += f" neg_lo:[{m}] neg_hi:[{m}]"
    return t

def em(a, x):
    if callable(x): x()
    elif isinstance(x, tuple): a(x[0], tag=x[1])
    else: a(x)
def weave(a, mains, fills, span=None):
    n = len(mains) if span is None else min(span, len(mains)); k = len(fills); done = 0
    for i, m in enumerate(mains):
        em(a, m)
        upto = min(k, (k * (i + 1) + n - 1) // n)
        while done < upto:
            em(a, fills[done]); done += 1
def merge(*lists):
    items = []
    for li, l in enumerate(lists):
        for i, x in enumerate(l):
            items.append(((i + 0.5) / len(l), li, i, x))
    items.sort(key=lambda t: (t[0], t[1], t[2]))
    return [t[3] for t in items]

NLAB = [0]
class Stamp:
    def __init__(self, a):
        self.a = a; self.n = 0
    def __call__(self, last=False):
        if not DIAG: return
        if self.n >= 22 and not last: return
        self.a.raw(f"    {STAMP_OP} s[96:97]")
        self.a.raw("    s_waitcnt lgkmcnt(0)")
        self.a.raw(f"    s_mov_b32 s{66+self.n}, s96")
        self.a.lgq = []
        self.n += 1
        assert self.n <= 23
    def dump(self, vt):
        if not DIAG: return
        a = self.a
        self(True)
        if 'probe' in OPT:
            NLAB[0] += 1; L = f"PR{NLAB[0]}"
            wgp = int(OPT[OPT.index('probe')+1]); ip = int(OPT[OPT.index('probe')+2])
            if ip < 0: ip += self.n
            a(f"s_lshl_b32 s98, s2, 3\ns_add_u32 s98, s98, s3")
            a(f"s_cmp_lg_u32 s98, {8*wgp+7}")
            a(f"s_cbranch_scc1 {L}")
            a(f"s_sub_u32 s98, s{66+min(ip, self.n-1)}, s66")
            a(f"s_add_u32 s98, s98, {int(OPT[OPT.index('probe')+3])}")
            a(f"s_mov_b32 s99, 0")
            a.raw(f"{L}_L:")
            a.raw(f"    s_memrealtime s[96:97]\n    s_add_u32 s99, s99, 1\n    s_waitcnt lgkmcnt(0)\n    s_sub_u32 s96, s96, s66\n    s_cmp_ge_u32 s96, s98\n    s_cbranch_scc1 {L}\n    s_cmp_lt_u32 s99, 100000\n    s_cbranch_scc1 {L}_L")
            a.raw(f"{L}:")
            return
        if 'dbgdiag' in OPT:
            NLAB[0] += 1; L = f"DD{NLAB[0]}"
            a(f"s_lshl_b32 s98, s2, 3\ns_add_u32 s98, s98, s3")
            a(f"s_cmp_lg_u32 s98, {8*int(OPT[OPT.index('dbgdiag')+1])+7}")
            a(f"s_cbranch_scc1 {L}")
            for i in range(1, min(17, self.n)):
                a(f"s_sub_u32 s98, s{66+i}, s66")
                a(f"v_mov_b32 {v(vt)}, s98")
                a(f"buffer_store_dword {v(vt)}, off, s[28:31], 0 offset:{4*i-4}")
                a.wait(vm=0)
            a.raw(f"{L}:")
            return
        a(f"s_lshl_b32 s98, s2, 3\ns_add_u32 s98, s98, s3\ns_lshl_b32 s98, s98, 7")
        a(f"s_add_u32 s98, s98, {OFF_DIAG}")
        for i in range(self.n):
            a(f"v_mov_b32 {v(vt)}, s{66+i}")
            a(f"buffer_store_dword {v(vt)}, off, s[16:19], s98 offset:{4*i}")
            a.wait(vm=0)

def spin(a, vdst, vaddr, srd, soff, mask, first=True, val='1'):
    NLAB[0] += 1; L = f"SP{NLAB[0]}"
    a("s_mov_b32 s99, 0")
    if not first:
        a(f"v_cmp_ne_u32 vcc, {val}, {v(vdst)}")
        a(f"s_and_b64 vcc, vcc, {mask}")
        a(f"s_cbranch_scc0 {L}_D")
    a(f"s_mov_b64 exec, {mask}")
    a.raw(f"{L}:")
    a.raw(f"    buffer_load_dword {v(vdst)}, {v(vaddr)}, {srd}, {soff} offen sc1")
    a.raw("    s_add_u32 s99, s99, 1")
    a.raw("    s_waitcnt vmcnt(0)")
    a.raw(f"    v_cmp_ne_u32 vcc, {val}, {v(vdst)}")
    a.raw("    s_nop 1")
    a.raw("    s_cmp_eq_u64 vcc, 0")
    a.raw(f"    s_cbranch_scc1 {L}_E")
    a.raw(f"    s_cmp_lt_u32 s99, {LIMIT}")
    a.raw(f"    s_cbranch_scc1 {L}")
    a.raw(f"{L}_E:")
    a.raw("    s_mov_b64 exec, -1")
    a.raw(f"{L}_D:")
    if first: a.vmq = []

def wave0(a, lines):
    NLAB[0] += 1; L = f"W0_{NLAB[0]}"
    a("s_cmp_lg_u32 s3, 0")
    a(f"s_cbranch_scc1 {L}")
    for l in lines: a.raw("    " + l)
    a.raw(f"{L}:")

def opt(name, dflt):
    return OPT[OPT.index(name) + 1] if name in OPT else dflt
def L(text):
    return [t.strip() for t in text.split('\n') if t.strip()]

def spinh(a, vdst, vaddr, off, mask, slow=None, back=None):
    NLAB[0] += 1; Lb = f"SP{NLAB[0]}"
    a(f"v_cmp_eq_u32 vcc, 1, {v(vdst)}")
    a(f"s_andn2_b32 s54, {mask}, vcc_lo")
    a(f"s_cbranch_scc0 {Lb}_D")
    r = lambda t: a.raw("    " + t)
    r("s_mov_b32 s99, 0")
    r("s_mov_b32 exec_hi, 0")
    if back: r(back)
    a.raw(f"{Lb}:")
    r(f"buffer_load_dword {v(vdst)}, {v(vaddr)}, s[16:19], s61 offen offset:{off} sc1")
    r("s_add_u32 s99, s99, 1")
    r("s_waitcnt vmcnt(0)")
    r(f"v_cmp_eq_u32 vcc, 1, {v(vdst)}")
    r("s_nop 1")
    r("s_or_b32 s54, vcc_lo, vcc_hi")
    r(f"s_andn2_b32 s54, {mask}, s54")
    r(f"s_cbranch_scc0 {Lb}_E")
    r(f"s_cmp_lg_u32 s99, {NFAST}")
    r(f"s_cbranch_scc1 {Lb}_C")
    if slow:
        r("s_mov_b32 exec_lo, 1")
        r(slow)
    r("s_mov_b64 exec, -1")
    a.raw(f"{Lb}_C:")
    r(f"s_cmp_lt_u32 s99, {LIMIT}")
    r(f"s_cbranch_scc1 {Lb}")
    a.raw(f"{Lb}_E:")
    r("s_mov_b64 exec, -1")
    a.raw(f"{Lb}_D:")

def ffn(a, st):
    XB = 16384; WB = 114688
    X = lambda s: XB + 32768 * s
    W = lambda s: WB + 16384 * s
    USLOT = [1024 * k for k in (0, 0, 48, 64, 128, 144, 96, 80, 112, 128, 16, 32, 48, 64)]
    UBASE = [1024 * k for k in (0, 0, 0, 64, 96, 96, 96, 80, 80, 80, 16, 16, 16, 16)]
    RB = 81920
    a("""s_load_dwordx2 s[20:21], s[0:1], 48
         s_load_dwordx2 s[24:25], s[0:1], 56""")
    R = RegAlloc(start=3, limit=256)
    t0 = R.get(); t1 = R.get(); t2 = R.get()
    vx = [R.get(), R.get()]; vw = R.get(); vd = R.get()
    xa = [[R.get(), R.get()] for _ in range(2)]
    wa = [[R.get(), R.get()] for _ in range(2)]
    da = [R.get() for _ in range(4)]
    big = R.get(144, 2)
    acc = [[[big + 32 * mat + 16 * F + 4 * nt for nt in range(4)] for F in range(2)] for mat in range(2)]
    wf = [[big + 64 + 16 * b + 4 * i for i in range(4)] for b in range(2)]
    xf = [[big + 96 + 16 * b + 4 * i for i in range(4)] for b in range(2)]
    cs = [big + 128, big + 132]; ones = big + 136; stv = big + 140
    wd = [R.get(16, 2) for _ in range(5)]
    sp = R.get(8, 2)
    a(f"""s_sub_u32 s37, s47, 4
         v_lshrrev_b32 {v(t0)}, 3, v1
         s_mul_i32 s34, s37, 37
         v_and_b32 {v(t1)}, 7, v1
         s_lshr_b32 s34, s34, 8
         v_lshrrev_b32 {v(t2)}, 4, v1
         s_and_b32 s38, s3, 3
         v_and_b32 {v(vw)}, 1, {v(t2)}
         s_lshr_b32 s39, s3, 2
         s_lshl_b32 s89, s34, 1
         s_add_u32 s89, s89, s37
         s_add_u32 s89, s89, s33
         s_and_b32 s49, s3, 1
         s_lshl_b32 s49, s49, 1
         v_or_b32 {v(vw)}, s49, {v(vw)}
         s_mul_i32 s90, s89, 37
         v_lshlrev_b32 {v(vw)}, 1, {v(vw)}
         s_lshr_b32 s90, s90, 8
         v_xor_b32 {v(vw)}, {v(vw)}, {v(t1)}
         s_mul_i32 s90, s90, 7
         v_lshlrev_b32 {v(vw)}, 4, {v(vw)}
         s_sub_u32 s89, s89, s90
         v_mul_u32_u24 {v(vd)}, 3584, {v(t0)}
         s_lshl_b32 s89, s89, 7
         v_add_u32 {v(vw)}, {v(vw)}, {v(vd)}
         s_mul_i32 s45, s3, {8*3584}
         v_xor_b32 {v(vx[1])}, {v(t1)}, {v(t2)}
         s_lshl_b32 s49, s37, 7
         v_lshlrev_b32 {v(vx[1])}, 4, {v(vx[1])}
         s_add_u32 s45, s45, s49
         v_mul_u32_u24 {v(vx[0])}, 28672, {v(t0)}
         s_lshl_b32 s46, s3, 11
         v_add_u32 {v(vx[0])}, {v(vx[0])}, {v(vx[1])}
         s_mov_b32 s10, 1605632
         v_xor_b32 {v(vx[1])}, 64, {v(vx[0])}
         s_mov_b32 s14, 1605632
         s_lshl_b32 s48, s33, 2
         s_add_u32 s48, s48, s38
         s_mul_i32 s40, s48, 896
         s_mul_i32 s49, s39, {32*28672}
         s_add_u32 s40, s40, s49
         s_lshl_b32 s44, s38, 13
         s_lshl_b32 s49, s39, 12
         s_add_u32 s44, s44, s49
         s_add_u32 s90, s89, 128
         s_cmp_eq_u32 s90, 896
         s_cselect_b32 s90, 0, s90
         s_and_b32 s54, s34, 1
         s_lshl_b32 s54, s54, 6
         v_xor_b32 {v(xa[0][1])}, s54, {v(vx[0])}
         v_xor_b32 {v(xa[1][1])}, s54, {v(vx[1])}
         s_add_u32 s65, s89, s40""")
    def xdma(c):
        out = []
        for i in range(4):
            def f(i=i):
                a(f"s_add_u32 m0, s44, {X(c%3)}")
                a(f"s_add_u32 s49, s{40+i}, s{89+c}")
                a(f"buffer_load_dwordx4 {v(vx[i&1])}, s[4:7], s49 offen offset:{i*1024} lds", tag=('x', c))
            out.append(f)
        return out
    def wdma(c):
        out = []
        for mat in range(2):
            def f(mat=mat):
                a(f"s_mul_i32 s49, s{89+c}, 1792")
                a(f"s_add_u32 m0, s46, {W(c%3) + mat*1024}")
                a(f"s_add_u32 s49, s49, s45")
                a(f"buffer_load_dwordx4 {v(vw)}, s[{8+4*mat}:{11+4*mat}], s49 offen lds", tag=('x', c))
            out.append(f)
        return out
    a(f"""s_mul_i32 s49, s89, 1792
          s_add_u32 m0, s46, {W(0)}
          s_add_u32 s49, s49, s45""")
    a.wait_smem()
    st()
    def x0q(k):
        a(f"s_xor_b32 s54, s34, {k}")
        a(f"s_lshl_b32 s64, s54, 10")
        a(f"s_mul_i32 s54, s54, {8*28672}")
        a(f"s_add_u32 s64, s64, s44")
        a(f"s_add_u32 s54, s54, s65")
        a(f"s_add_u32 m0, s64, {X(0)}")
        a.raw("    s_nop 0")
        a(f"buffer_load_dwordx4 {v(xa[k&1][1])}, s[4:7], s54 offen lds", tag=('x', 0))
    a(f"buffer_load_dwordx4 {v(vw)}, s[8:11], s49 offen lds", tag=('x', 0))
    a(f"s_add_u32 m0, s46, {W(0) + 1024}")
    a.raw("    s_nop 0")
    a(f"buffer_load_dwordx4 {v(vw)}, s[12:15], s49 offen lds", tag=('x', 0))
    x0q(0)
    CW = {c: wdma(c) for c in range(1, 7)}
    CX = {c: xdma(c) for c in range(1, 7)}
    R1 = opt('r1', 'w')
    if R1 == 'w': CW[1].pop(0)()
    if R1 == 'x': x0q(1)
    if 'fs' in OPT: st()
    for i in range(1, 4): a(f"s_add_u32 s{40+i}, s40, {i*(8*28672-1024)}")
    rot = lambda i: L(f"s_add_u32 s{89+i}, s{88+i}, 128\ns_cmp_eq_u32 s{89+i}, 896\ns_cselect_b32 s{89+i}, 0, s{89+i}")
    for i in range(2, 5):
        for x in rot(i): a(x)
    a(f"""v_lshlrev_b32 {v(vd)}, 1, {v(t2)}
          v_xor_b32 {v(vd)}, {v(vd)}, {v(t1)}
          v_lshlrev_b32 {v(vd)}, 4, {v(vd)}
          v_mul_u32_u24 {v(t0)}, 896, {v(t0)}
          v_add_u32 {v(vd)}, {v(vd)}, {v(t0)}""")
    a(f"""v_and_b32 {v(t0)}, 15, v1
          v_bfe_u32 {v(t1)}, v1, 1, 3
          v_xor_b32 {v(t1)}, {v(t1)}, {v(t2)}
          s_and_b32 s49, s38, 2
          s_lshl_b32 s49, s49, 1
          v_xor_b32 {v(t1)}, s49, {v(t1)}
          v_lshlrev_b32 {v(t1)}, 4, {v(t1)}
          v_lshl_add_u32 {v(t1)}, {v(t0)}, 7, {v(t1)}
          s_lshl_b32 s49, s38, 13
          s_add_u32 s49, s49, {XB}
          v_add_u32 {v(xa[0][0])}, s49, {v(t1)}
          v_xor_b32 {v(xa[1][0])}, 64, {v(xa[0][0])}""")
    a(f"""v_bfe_u32 {v(t0)}, v1, 3, 2
          s_lshl_b32 s49, s39, 1
          s_and_b32 s54, s38, 1
          s_or_b32 s58, s49, s54
          v_xor_b32 {v(t0)}, s58, {v(t0)}
          v_lshlrev_b32 {v(t0)}, 5, {v(t0)}
          v_bfe_u32 {v(t1)}, v1, 2, 2
          v_lshl_add_u32 {v(t0)}, {v(t1)}, 7, {v(t0)}
          v_and_b32 {v(t1)}, 3, v1
          v_lshl_add_u32 {v(t0)}, {v(t1)}, 3, {v(t0)}
          v_lshl_add_u32 {v(t0)}, {v(t2)}, 11, {v(t0)}
          s_and_b32 s49, s38, 2
          s_lshl_b32 s49, s49, 12
          s_add_u32 s49, s49, {WB}
          v_add_u32 {v(wa[0][0])}, s49, {v(t0)}
          v_xor_b32 {v(wa[0][1])}, 32, {v(wa[0][0])}
          v_xor_b32 {v(wa[1][0])}, 0x2000, {v(wa[0][0])}
          v_xor_b32 {v(wa[1][1])}, 0x2000, {v(wa[0][1])}""")
    for i in range(4): a(f"v_mov_b32 {v(ones+i)}, 0x3f803f80")
    a(f"""v_min_u32 {v(sp+5)}, 6, v1
          v_lshlrev_b32 {v(sp+5)}, 7, {v(sp+5)}
          s_lshl_b32 s49, s2, 3
          s_add_u32 s49, s49, s3
          s_sub_u32 s49, s49, 256
          s_mul_i32 s55, s49, 896
          s_mov_b32 s22, 1605632
          s_mov_b32 s23, 0x00020000""")
    FIL = {}
    FIL[0] = L(f"""v_add_u32 {v(xa[0][1])}, 0x10000, {v(xa[0][0])}
          v_add_u32 {v(xa[1][1])}, 0x10000, {v(xa[1][0])}""")
    FIL[1] = L(f"""s_mul_i32 s35, s34, 7
          s_sub_u32 s35, s37, s35
          s_lshl_b32 s50, s33, 2
          s_add_u32 s50, s50, s34
          s_mul_i32 s51, s38, {448*896}
          s_mul_i32 s54, s39, {16*896}
          s_add_u32 s51, s51, s54
          s_lshl_b32 s54, s35, 7
          s_add_u32 s51, s51, s54
          s_add_u32 s52, s51, {8*896-1024}
          s_xor_b32 s54, s39, s50
          s_and_b32 s54, s54, 1
          s_lshl_b32 s54, s54, 11
          s_lshl_b32 s53, s38, 12
          s_add_u32 s53, s53, s54""")
    def ddma(u):
        out = []
        for i in range(2):
            def f(i=i):
                a(f"s_mul_i32 s49, s{89+u%7}, 448")
                if u == 7: a(f"s_add_u32 s{51+i}, s{51+i}, 28672")
                a(f"s_add_u32 m0, s53, {USLOT[u]}")
                a(f"s_add_u32 s49, s49, s{51+i}")
                a(f"buffer_load_dwordx4 {v(vd)}, s[20:23], s49 offen offset:{i*1024} lds", tag=('d', u))
            out.append(f)
        return out
    FIL[2] = ["\n".join(rot(5)), "\n".join(rot(6))] + L(f"""v_bfe_u32 {v(t0)}, v1, 3, 2
          s_and_b32 s54, s38, 2
          v_xor_b32 {v(t0)}, s54, {v(t0)}
          v_lshlrev_b32 {v(t0)}, 5, {v(t0)}
          v_lshl_add_u32 {v(t0)}, {v(t1)}, 3, {v(t0)}
          v_lshrrev_b32 {v(t1)}, 2, v1
          v_lshl_add_u32 {v(t0)}, {v(t1)}, 7, {v(t0)}
          s_lshl_b32 s54, s38, 12
          v_add_u32 {v(da[0])}, s54, {v(t0)}""") + [f"v_xor_b32 {v(da[i])}, {32*i}, {v(da[0])}" for i in range(1, 4)]
    dbase = [USLOT[0]]
    def dreads(u):
        out = []
        if UBASE[u] != dbase[0]:
            off = UBASE[u] - dbase[0]
            for i in range(4): out.append(f"v_add_u32 {v(da[i])}, {off & 0xffffffff:#x}, {v(da[i])}")
            dbase[0] = UBASE[u]
        off = USLOT[u] - dbase[0]
        for i in range(4):
            for h in range(2):
                out.append(f"ds_read_b64_tr_b16 {v(wd[u%5]+4*i+2*h,2)}, {v(da[i])} offset:{off + h*2048}")
        return out
    dbg = sp + 1; pv = sp + 2; sta = sp + 3
    FIL[3] = L(f"""v_and_b32 {v(dbg)}, 31, v1
          v_lshlrev_b32 {v(dbg)}, 3, {v(dbg)}
          v_and_b32 {v(sta)}, 15, v1
          v_lshlrev_b32 {v(sta)}, 4, {v(sta)}
          s_lshl_b32 s56, s48, 8
          s_add_u32 s56, s56, {OFF_ST}
          s_mul_i32 s57, s48, 56
          s_lshl_b32 s54, s37, 1
          s_add_u32 s57, s57, s54
          s_add_u32 s57, s57, s39
          s_lshl_b32 s57, s57, 12
          s_mov_b32 s26, 1835008
          s_mov_b32 s27, 0x00020000""")
    FIL[4] = L(f"""s_mul_i32 s59, s50, 56
          s_mul_i32 s54, s38, 14
          s_add_u32 s59, s59, s54
          s_lshl_b32 s59, s59, 12
          s_lshl_b32 s54, s39, 11
          s_add_u32 s59, s59, s54
          s_lshl_b32 s60, s48, 1
          s_add_u32 s60, s60, s39
          s_lshl_b32 s60, s60, 6
          s_add_u32 s60, s60, s37
          s_lshl_b32 s60, s60, 2
          s_add_u32 s60, s60, {OFF_F2}
          s_lshl_b32 s61, s50, 9
          s_add_u32 s61, s61, {OFF_F2}""")
    FIL[5] = L(f"""s_mul_i32 s36, s38, 7
          s_lshl_b32 s36, 0x7f, s36
          s_lshl_b32 s62, s3, 15
          s_lshl_b32 s54, s33, 10
          s_add_u32 s62, s62, s54
          s_add_u32 s62, s62, {OFF_FL + 900}
          s_lshl_b32 s63, s58, 9
          s_add_u32 s63, s63, s50
          s_mul_i32 s63, s63, 896
          s_lshl_b32 s54, s35, 7
          s_add_u32 s63, s63, s54
          s_and_b32 s54, s38, 2
          s_lshl_b32 s54, s54, 5
          s_add_u32 s63, s63, s54""")
    FIL[7] = L(f"""s_lshl_b32 s32, s50, 16
          s_lshl_b32 s54, s3, 13
          s_add_u32 s32, s32, s54
          s_add_u32 s32, s32, {OFF_V2}
          s_add_u32 s47, s32, 3072
          v_lshlrev_b32 {v(sp)}, 4, {v(sta)}
          v_and_b32 {v(sp)}, 256, {v(sp)}""")
    def wreads(S):
        c, e = divmod(S, 2)
        return [f"ds_read_b64_tr_b16 {v(wf[S&1][2*mat+F]+2*u,2)}, {v(wa[e][F])} offset:{(c%3)*16384 + mat*1024 + u*512}"
                for F in range(2) for mat in range(2) for u in range(2)]
    def xreads(S):
        c, e = divmod(S, 2); s = c % 3
        return [f"ds_read_b128 {v(xf[S&1][nt],4)}, {v(xa[e][s>>1])} offset:{(s&1)*32768 + nt*2048}" for nt in range(4)]
    def reads(S):
        w = wreads(S); x = xreads(S)
        return [x[0]] + w[0:4] + [x[1]] + w[4:8] + [x[2], x[3]]
    tou = [] if 'nomall' in OPT else [f"buffer_load_dword {v(sp+4)}, {v(sp+5)}, s[20:23], s55 offen"]
    SCH = opt('sch', 'w1x14,Tw2x22,x22w3,x34,Dw4,x44,w5x51,x53,Ew6,x64').split(',')
    def sched(S):
        out = []; t = SCH[S + 1] if S + 1 < len(SCH) else ''; i = 0
        while i < len(t):
            if t[i] == 'T': out += tou; i += 1
            elif t[i] == 'D': assert S < 5; out += ddma(0); i += 1
            elif t[i] == 'E': assert 7 <= S < 9; out += ddma(1); i += 1
            else:
                c = int(t[i + 1]); assert S >= 2 * (c - 3) + 1 and S < 2 * c - 1
                if t[i] == 'w': out += CW[c]; CW[c] = []; i += 2
                else:
                    for _ in range(int(t[i + 2])): out.append(CX[c].pop(0))
                    i += 3
        return out
    for x in FIL.pop(1): a(x)
    if 'fs' in OPT: st()
    if 'nob0' not in OPT: a("s_barrier")
    for k in range(2 if R1 == 'x' else 1, 4): x0q(k)
    if 'fs' in OPT: st()
    if 'nob1' not in OPT: a("s_barrier")
    for f in sched(-1): em(a, f)
    if 'fs' in OPT: st()
    a.wait_tag(('x', 0))
    if 'fs' in OPT: st()
    a("s_barrier")
    st()
    for x in reads(0): a(x)
    for S in range(14):
        c, e = divmod(S, 2)
        mains = []
        for nt in range(4):
            for F in range(2):
                for mat in range(2):
                    mains.append(m16(acc[mat][F][nt], wf[S & 1][2 * mat + F], xf[S & 1][nt], '0' if S == 0 else None))
        if e == 0:
            for mat in range(2):
                mains.insert(2 + mat, m16(cs[mat], wf[S & 1][2 * mat], ones, '0' if S == 0 else None))
        pre = []; rd = []; dm = []; ex = []
        if e == 1:
            def sync(c=c):
                if 'fine' in OPT: st()
                if c < 6: a.wait_tag(('x', c + 1))
                if c == 2: a.wait_tag(('d', 0))
                if c == 4: a.wait_tag(('d', 1))
                if c == 5: a.wait_tag(('d', 4))
                a.wait(lg=0)
                a("s_barrier")
                if 'fine' in OPT: st()
                if c == 6 and PRIO:
                    a("s_cmp_lg_u32 s39, 0\ns_cbranch_scc1 NOPR\ns_setprio 2")
                    a.raw("NOPR:")
            pre = [sync]
        dm = sched(S)
        if S >= 9: dm = dm + {9: lambda: ddma(2) + ddma(3), 10: lambda: ddma(4), 11: lambda: ddma(5) + ddma(6), 12: lambda: ddma(7),
                    13: lambda: ddma(8) + ddma(9) + ddma(10)}[S]()
        if S < 13: rd = reads(S + 1)
        if S == 8: dm = dm + [f"buffer_load_dword {v(pv)}, {v(dbg)}, s[28:31], 0 offen sc1"]
        if S == 10:
            def chk():
                spin(a, pv, dbg, 's[28:31]', '0', '-1', first=False)
                a(f"buffer_load_dwordx4 {v(stv,4)}, {v(sta)}, s[16:19], s56 offen sc1")
                a(f"buffer_load_dword {v(sp+4)}, {v(sp)}, s[16:19], s61 offen sc1")
            dm = dm + [chk]
        if S == 6: ex = dreads(0)
        if S == 10: ex = dreads(1)
        if S == 11:
            ex = dreads(2); d3 = dreads(3); ex += d3[:8]
        if S == 12:
            ex = d3[8:] + dreads(4)
            ex += [f"s_lshl_b32 s54, s3, 11", f"v_add_u32 {v(t0)}, s54, v2",
                   f"ds_write_b128 {v(t0)}, {v(cs[0],4)}", f"ds_write_b128 {v(t0)}, {v(cs[1],4)} offset:1024"]
        if S == 13:
            ex = [f"s_and_b32 s54, s3, 5", f"s_lshl_b32 s54, s54, 11", f"v_add_u32 {v(t0)}, s54, v2", f"v_xor_b32 {v(t1)}, 0x800, {v(t0)}"]
            for F in range(2):
                for mat in range(2):
                    for hp in range(2):
                        dst = (wf[0][0] if hp == 0 else xf[0][0]) + 8 * mat + 4 * F
                        ex.append(f"ds_read_b128 {v(dst,4)}, {v(t1 if F else t0)} offset:{hp*4096 + mat*1024}")
        ex = ex + FIL.get(S, [])
        fills = pre + merge(*[l for l in (rd, dm) if l]) + ex
        weave(a, mains, fills)
    assert all(not l for l in CW.values()) and all(not l for l in CX.values())
    st()
    cv = wf[0][0]
    nm = wf[1][0]; c1 = nm + 4; d2 = nm + 8
    for i in range(4):
        a(f"v_lshlrev_b32 {v(d2+i)}, 16, {v(stv+i)}")
        a(f"v_and_b32 {v(nm+i)}, 0xffff0000, {v(stv+i)}")
        a(f"v_rcp_f32 {v(c1+i)}, {v(d2+i)}")
    for i in range(0, 16, 2): a(pk('add', cv + i, cv + i, xf[0][0] + i))
    for i in range(4):
        a(f"v_mul_f32 {v(d2+i)}, {v(d2+i)}, {v(d2+i)}")
        a(f"v_mul_f32 {v(c1+i)}, {lit(-math.log2(math.e))}, {v(c1+i)}")
    late = ddma(11) + ddma(12) + ddma(13)
    for nt in range(4):
        e = xf[0][0] + 8 * (nt & 1); hp = xf[1][nt]
        idx = [(F, r) for F in range(2) for r in range(4)]
        G = lambda F, r: acc[0][F][nt] + r
        U = lambda F, r: acc[1][F][nt] + r
        pi = [(F, r) for F in range(2) for r in (0, 2)]
        for F, r in pi: a(pk('fma', G(F,r), cv+4*F+r, ('b', nm+nt), G(F,r)))
        for F, r in pi: a(pk('mul', e+4*F+r, G(F,r), ('b', c1+nt)))
        if nt < 3: late[2 * nt]()
        for F, r in pi: a(pk('fma', U(F,r), cv+8+4*F+r, ('b', nm+nt), U(F,r)))
        for F, r in idx: a(f"v_exp_f32 {v(e+4*F+r)}, {v(e+4*F+r)}")
        for F, r in pi: a(pk('mul', U(F,r), U(F,r), G(F,r)))
        for F, r in pi: a(pk('fma', e+4*F+r, e+4*F+r, ('b', d2+nt), ('b', d2+nt)))
        if nt < 3: late[2 * nt + 1]()
        for F, r in idx: a(f"v_rcp_f32 {v(e+4*F+r)}, {v(e+4*F+r)}")
        for F, r in pi: a(pk('mul', U(F,r), U(F,r), e+4*F+r))
        for i in range(4): a(f"v_cvt_pk_bf16_f32 {v(hp+i)}, {v(U(i>>1,2*(i&1)))}, {v(U(i>>1,2*(i&1)+1))}")
        a(f"buffer_store_dwordx4 {v(hp,4)}, v2, s[16:19], s57 offen offset:{nt*1024} sc1", tag='hs')
    st()
    T2 = sp
    vh = vx; pa = vw; pv = xa[0][0]; vo = xa[0][1]; v2a = xa[1][0]; one = xa[1][1]
    xv = wa[0][0]
    assert xv % 2 == 0 and wa[1][1] == xv + 3
    hf = [[big + 8 * s + 4 * N for N in range(2)] for s in range(14)]
    ab = [[big + 112 + 16 * N + 4 * i for i in range(4)] for N in range(2)]
    T2o = big + 40
    va = [da[0], da[1]]
    a(f"""s_and_b32 s49, s38, 1
          s_lshl_b32 s49, s49, 10
          v_add_u32 {v(vh[0])}, s49, v2
          v_xor_b32 {v(vh[1])}, 0x400, {v(vh[0])}
          v_mov_b32 {v(one)}, 1""")
    def hloads(u0, u1):
        for u in range(u0, u1):
            a(f"s_lshl_b32 s49, s{89+u%7}, 6")
            if u == 7: a(f"s_add_u32 s59, s59, 4096")
            a(f"s_add_u32 s49, s49, s59")
            for N in range(2):
                a(f"buffer_load_dwordx4 {v(hf[u][N],4)}, {v(vh[N])}, s[16:19], s49 offen sc1")
    tmp = hf[7][0]
    F1 = L(f"""v_and_b32 {v(t0)}, 15, v1
          v_mul_u32_u24 {v(vo)}, 28672, {v(t0)}
          v_lshl_add_u32 {v(vo)}, {v(t2)}, 3, {v(vo)}
          s_lshl_b32 s54, s58, 4
          v_add_u32 {v(t0)}, s54, {v(t0)}
          v_cvt_f32_u32 {v(t0)}, {v(t0)}
          v_mul_f32 {v(t0)}, {lit(1/64)}, {v(t0)}
          v_cvt_f32_u32 {v(t1)}, {v(t2)}
          v_mul_f32 {v(t1)}, 4.0, {v(t1)}
          v_mul_f32 {v(tmp)}, {v(t1)}, {v(t0)}""")
    F1 += [f"v_fmamk_f32 {v(tmp+k)}, {v(t0)}, {lit(float(16*(k>>2)+(k&3)))}, {v(tmp)}" for k in range(1, 8)]
    F1 += [f"v_cos_f32 {v(tmp+8+k)}, {v(tmp+k)}" for k in range(8)]
    F1 += [f"v_sin_f32 {v(tmp+k)}, {v(tmp+k)}" for k in range(8)]
    F1 += L(f"""v_lshlrev_b32 {v(t1)}, 31, v1
          v_or_b32 {v(t1)}, 1.0, {v(t1)}
          v_cmp_gt_u32 vcc, 16, v1
          v_cndmask_b32 {v(tmp)}, {v(tmp)}, {v(t1)}, vcc""")
    F1 += [f"v_cvt_pk_bf16_f32 {v(T2+k)}, {v(tmp+8+k)}, {v(tmp+k)}" for k in range(8)]
    F1 += L(f"""v_bfe_u32 {v(t0)}, v1, 2, 2
          s_and_b32 s54, s3, 1
          v_xor_b32 {v(t0)}, s54, {v(t0)}
          s_lshl_b32 s54, s35, 2
          v_add_u32 {v(t0)}, s54, {v(t0)}
          v_subrev_u32 {v(t1)}, 14, {v(t0)}
          v_min_u32 {v(t0)}, {v(t0)}, {v(t1)}
          v_lshlrev_b32 {v(t0)}, 6, {v(t0)}
          v_sub_u32 {v(t1)}, 1344, {v(t0)}
          v_cmp_gt_u32 vcc, 448, {v(t0)}
          v_cndmask_b32 {v(t0)}, {v(t1)}, {v(t0)}, vcc
          v_lshl_add_u32 {v(t0)}, {v(t2)}, 10, {v(t0)}
          v_and_b32 {v(t1)}, 3, v1
          v_lshl_add_u32 {v(v2a)}, {v(t1)}, 4, {v(t0)}""")
    xld = [f"buffer_load_dwordx2 {v(xv+2*cl,2)}, {v(vo)}, s[4:7], s63 offen offset:{cl*32}" for cl in range(2)]
    F2 = []
    for cl in range(2):
        F2 += [f"""s_and_b32 s0, s38, 2
              s_add_u32 s0, s0, {cl}
              s_lshl_b32 s54, s35, 2
              s_add_u32 s54, s54, s0""", f"""s_cmp_ge_u32 s54, 14
              s_cselect_b32 s64, 14, 0
              s_cselect_b32 s65, 0x80008000, 0
              s_sub_u32 s54, s54, s64""", f"""s_cmp_ge_u32 s54, 7
              s_cselect_b32 s64, 15, 0
              s_cselect_b32 s54, 0x80008000, 0
              s_xor_b32 s65, s65, s54"""] + L(f"""v_and_b32 {v(t1)}, 1, {v(t2)}
              v_xor_b32 {v(t1)}, s0, {v(t1)}
              v_lshlrev_b32 {v(t1)}, 6, {v(t1)}
              v_lshl_add_u32 {v(t1)}, {v(t2)}, 11, {v(t1)}
              v_and_b32 {v(va[cl])}, 15, v1
              v_xor_b32 {v(va[cl])}, s64, {v(va[cl])}
              v_lshl_add_u32 {v(va[cl])}, {v(va[cl])}, 2, {v(t1)}""")
        F2 += [f"v_xor_b32 {v(T2o+8*cl+k)}, s65, {v(T2+k)}" for k in range(8)]
    ra = [da[2], da[3], vd, t0]
    for k in range(1, 5):
        F2 += [f"s_xor_b32 s54, s3, {k&3}\ns_mul_i32 s54, s54, 6144\ns_add_u32 s54, s54, {RB}", f"v_add_u32 {v(ra[k-1])}, s54, v2"]
    flag = lambda off, sc: f"buffer_store_dword {v(one)}, off, s[16:19], s60 offset:{off}{sc}"
    back = None if 'noback' in OPT else f"buffer_load_dword {v(t1)}, {v(t0)}, s[16:19], s57 offen sc1"
    a(f"v_lshlrev_b32 {v(pa)}, 2, v1")
    a(f"v_lshlrev_b32 {v(t0)}, 7, v1")
    a(f"s_mov_b32 exec_hi, 0\nbuffer_load_dword {v(pv)}, {v(pa)}, s[16:19], s61 offen sc1\ns_mov_b32 exec_lo, 1")
    a.wait_tag('hs')
    a(flag(0, ''))
    a("s_mov_b32 exec_lo, -1")
    st()
    a("s_cmp_lg_u32 s39, 0")
    a("s_cbranch_scc0 BX")
    if back: a.raw("    " + back)
    a("s_branch BY")
    a.raw("BX:")
    spinh(a, pv, pa, 0, '0x0fffffff', flag(128, ' sc1'), back)
    a.raw("BY:")
    a("s_mov_b64 exec, -1")
    a("s_barrier")
    st()
    LA = int(opt('la', 3))
    hloads(0, LA)
    if PRIO: a("s_setprio 0")
    a.vmq.insert(0, dict(w={('v', t1)}, tag=None))
    F1 = [x.replace(v(t1), v(tmp+16)) for x in F1]
    for x in F1 + xld: a(x)
    PS = int(opt('ps', 1)); B2 = int(opt('b2', 11))
    for s in range(14):
        dr = dreads(s + 5) if s + 5 < 14 else []
        pre = dr[:len(dr) - 8]; dr = dr[len(pre):]
        fl = F2[len(F2) * (s - 9) // 5: len(F2) * (s - 8) // 5] if s >= 9 else []
        for x in pre: a(x)
        for i in range(4):
            for N in range(2):
                a(m16(ab[N][i], wd[s % 5] + 4 * i, hf[s][N], '0' if s == 0 else None))
                k = 2 * i + N
                for x in fl[len(fl) * k // 8: len(fl) * (k + 1) // 8]: a(x)
            for x in dr[2 * i: 2 * i + 2]: a(x)
            if i == 0:
                if s + LA == 7:
                    st()
                    spinh(a, pv, pa, 256, 's36', flag(128, ' sc1'))
                    st()
                    a(f"v_and_b32 {v(pa)}, 3, v1")
                    a(f"v_lshlrev_b32 {v(pa)}, 13, {v(pa)}")
                if s == PS: a(f"s_mov_b32 exec_hi, 0\nbuffer_load_dword {v(pv)}, {v(pa)}, s[16:19], s61 offen offset:256 sc1\ns_mov_b32 exec_hi, -1")
                if s + LA < 14: hloads(s + LA, s + LA + 1)
                if s + LA == 13:
                    a(f"buffer_load_dword {v(pv)}, {v(pa)}, s[16:19], s62 offen sc1")
                    a("s_mov_b64 exec, 1\n" + flag(128, ' sc1') + "\ns_mov_b64 exec, -1")
        if s == 0: st()
        if s == B2:
            assert s + LA >= 13
            a.wait(lg=0)
            a("s_barrier")
    def v2dma():
        a("s_lshl_b32 m0, s3, 11")
        a.raw("    s_nop 0")
        a.raw(f"    buffer_load_dwordx4 {v(v2a)}, s[16:19], s32 offen sc1 lds")
        a.raw(f"    buffer_load_dwordx4 {v(v2a)}, s[16:19], s47 offen offset:1024 sc1 lds")
    a(f"v_cmp_ne_u32 vcc, 1, {v(pv)}")
    a(f"s_and_b32 s98, vcc_lo, 15")
    a(f"s_cbranch_scc1 V2LATE")
    v2dma()
    a.raw("V2LATE:")
    st()
    for k in range(1, 4):
        C, N = k >> 1, k & 1
        for cl in range(2):
            a(f"ds_write_b128 {v(ra[k-1])}, {v(ab[N][2*C+cl],4)} offset:{(k-1)*2048 + cl*1024}")
    pr = big; e = big + 24; xs = big + 32
    for i in range(4):
        a(f"v_lshlrev_b32 {v(xs+2*i)}, 16, {v(xv+i)}")
        a(f"v_and_b32 {v(xs+2*i+1)}, 0xffff0000, {v(xv+i)}")
    a(f"v_mov_b32 {v(t1)}, {lit(2048*448/2)}")
    a(f"v_mov_b32 {v(t2)}, {lit(-math.log2(math.e))}")
    a.wait(lg=0)
    a("s_barrier")
    for k in range(3):
        for cl in range(2):
            a(f"ds_read_b128 {v(pr+8*k+4*cl,4)}, {v(t0)} offset:{k*2048 + cl*1024}")
    y = ab[0][0]
    for i in range(0, 8, 2): a(pk('add', y+i, y+i, pr+i))
    for i in range(0, 8, 2): a(pk('add', pr+8+i, pr+8+i, pr+16+i))
    for i in range(0, 8, 2): a(pk('add', y+i, y+i, pr+8+i))
    for i in range(0, 8, 2): a(pk('mul', e+i, y+i, ('b', t2)))
    for i in range(8): a(f"v_exp_f32 {v(e+i)}, {v(e+i)}")
    for i in range(0, 8, 2): a(pk('fma', e+i, e+i, ('b', t1), ('b', t1)))
    for i in range(8): a(f"v_rcp_f32 {v(e+i)}, {v(e+i)}")
    for i in range(0, 8, 2): a(pk('mul', y+i, y+i, e+i))
    st()
    a("s_cmp_eq_u32 s98, 0")
    a("s_cbranch_scc1 V2OK")
    spin(a, pv, pa, 's[16:19]', 's62', '0xf')
    v2dma()
    a.raw("V2OK:")
    st()
    a.raw("    s_waitcnt vmcnt(0)")
    a("s_barrier")
    st()
    vf = big + 56; so = big + 88
    n = 0
    for cl in range(2):
        for par in range(2):
            for kk in range(2):
                for hh in range(2):
                    o = (16 * kk + 2 * hh) * 2 + par
                    a(f"ds_read2st64_b32 {v(vf+4*n+2*hh,2)}, {v(va[cl])} offset0:{o} offset1:{o+2}")
                n += 1
    n = 0
    for cl in range(2):
        for par in range(2):
            for kk in range(2):
                b = (T2 if par == 0 else T2o + 8 * cl) + 4 * kk
                a(m16(so + 4 * cl, vf + 4 * n, b, '0' if (par == 0 and kk == 0) else None)); n += 1
    OST = ' nt' if 'ont' in OPT else ''
    for cl in range(2):
        for i in (0, 2): a(pk('fma', xs+4*cl+i, so+4*cl+i, y+4*cl+i, xs+4*cl+i))
        for i in range(2): a(f"v_cvt_pk_bf16_f32 {v(xv+2*cl+i)}, {v(xs+4*cl+2*i)}, {v(xs+4*cl+2*i+1)}")
        a(f"buffer_store_dwordx2 {v(xv+2*cl,2)}, {v(vo)}, s[24:27], s63 offen offset:{cl*32}{OST}")
    st.dump(t0)
    a("s_endpgm")
    return R.maxv

def spec(a, st):
    XS = 928; VS = 1032
    WB = 66560; TB = WB + 65536; SB = TB + 16384
    a("""s_load_dwordx2 s[20:21], s[0:1], 8
         s_load_dwordx2 s[24:25], s[0:1], 16
         s_mov_b32 s22, 921600
         s_mov_b32 s23, 0x00020000
         s_mov_b32 s26, 921600
         s_mov_b32 s27, 0x00020000""")
    R = RegAlloc(start=3, limit=256)
    t0 = R.get(); t1 = R.get(); t2 = R.get(); t3 = R.get(); t4 = R.get()
    mi = R.get(8, 2)
    IT = R.get(56, 2); FT = R.get(56, 2); AC = R.get(64, 2); AF = R.get(32, 2); TF = R.get(32, 2)
    a.vmq = [dict(w={('v', 255)}, tag=None)] + [dict(w=set(), tag='x') for _ in range(8)]
    st()
    a(f"""s_and_b32 s33, s3, 3
          s_lshr_b32 s34, s3, 2
          s_lshr_b32 s44, s33, 1
          s_and_b32 s45, s3, 1
          s_lshl_b32 s37, s2, 13
          s_add_u32 s37, s37, {OFF_FL}
          s_lshl_b32 s49, s2, 9
          s_add_u32 s49, s49, {OFF_F2}
          v_lshlrev_b32 {v(t0)}, 10, v1""")
    for i in range(4): a(f"v_mov_b32 {v(AF+i)}, 0")
    wave0(a, ["s_mov_b32 exec_hi, 0", f"buffer_store_dwordx4 {v(AF,4)}, v2, s[16:19], s49 offen sc1", "s_mov_b32 exec_lo, 0xff",
              f"buffer_store_dwordx2 {v(AF,2)}, {v(t0)}, s[16:19], s37 offen offset:896 sc1", "s_mov_b64 exec, -1"])
    a(f"""v_and_b32 {v(t0)}, 15, v1
          s_lshl_b32 s49, s33, 4
          v_add_u32 {v(t0)}, s49, {v(t0)}
          v_cmp_eq_u32 vcc, 1, {v(t0)}
          v_cndmask_b32 {v(t0)}, {v(t0)}, 64, vcc
          v_and_b32 {v(t1)}, 1, {v(t0)}
          v_cvt_f32_u32 {v(t1)}, {v(t1)}
          v_mul_f32 {v(t1)}, {lit(-0.25)}, {v(t1)}
          v_lshrrev_b32 {v(t0)}, 1, {v(t0)}
          v_cvt_f32_u32 {v(t0)}, {v(t0)}
          v_mul_f32 {v(t0)}, {lit(1/64)}, {v(t0)}
          v_lshrrev_b32 {v(t4)}, 4, v1
          v_lshlrev_b32 {v(t2)}, 2, {v(t4)}
          v_cvt_f32_u32 {v(t2)}, {v(t2)}
          v_fma_f32 {v(TF)}, {v(t2)}, {v(t0)}, {v(t1)}""")
    for k in range(1, 16): a(f"v_fmamk_f32 {v(TF+k)}, {v(t0)}, {lit(float(16*(k>>2)+(k&3)))}, {v(TF)}")
    for k in range(16): a(f"v_cos_f32 {v(TF+k)}, {v(TF+k)}")
    a(f"""v_lshrrev_b32 {v(t0)}, 2, v1
          v_mul_u32_u24 {v(t0)}, {XS}, {v(t0)}
          v_and_b32 {v(t1)}, 3, v1
          v_lshlrev_b32 {v(t1)}, 3, {v(t1)}
          v_add_u32 {v(t2)}, {v(t0)}, {v(t1)}
          v_sub_u32 {v(t3)}, {v(t0)}, {v(t1)}
          s_lshl_b32 s42, s34, 7
          s_lshl_b32 s49, s34, 3
          s_sub_u32 s43, 32, s49""")
    for t in range(4):
        if t: a("s_add_u32 s42, s42, s43")
        a(f"v_add_u32 {v(mi+t)}, s42, {v(t2)}")
        a(f"s_sub_u32 s49, 440, s42")
        a(f"v_add_u32 {v(mi+4+t)}, s49, {v(t3)}")
    a(f"""v_lshrrev_b32 {v(t0)}, 3, v1
          v_mul_u32_u24 {v(t1)}, {XS}, {v(t0)}
          v_and_b32 {v(t2)}, 7, v1
          v_lshl_add_u32 {v(t1)}, {v(t2)}, 4, {v(t1)}
          v_add_u32 {v(t1)}, s36, {v(t1)}""")
    s1 = [AF, AF + 1]; s2 = [AF + 2, AF + 3]
    a(f"""s_lshl_b32 s49, s3, 5
          s_add_u32 s49, s49, {SB}
          v_lshl_add_u32 {v(t2)}, {v(t0)}, 2, s49
          s_lshl_b32 s49, s34, 6
          s_lshl_b32 s46, s45, 5
          s_add_u32 s49, s49, s46
          s_lshl_b32 s46, s44, 3
          s_add_u32 s49, s49, s46
          s_add_u32 s49, s49, {SB + 256}
          v_lshrrev_b32 {v(t3)}, 5, v1
          v_lshl_add_u32 {v(t3)}, {v(t3)}, 4, s49
          v_and_b32 {v(AF+4)}, 3, {v(t0)}
          v_lshl_add_u32 {v(t3)}, {v(AF+4)}, 1, {v(t3)}
          s_lshl_b32 s46, s45, 7
          s_lshr_b32 s49, s3, 1
          s_lshl_b32 s49, s49, 2
          s_add_u32 s46, s46, s49
          s_add_u32 s46, s46, {SB + 512}
          v_lshl_add_u32 {v(AF+4)}, {v(t0)}, 4, s46
          v_lshlrev_b32 {v(t0)}, 2, v1
          v_add_u32 {v(AF+20)}, {SB + 512}, {v(t0)}
          s_lshl_b32 s46, s2, 8
          s_add_u32 s46, s46, {OFF_ST}
          v_lshlrev_b32 {v(t4)}, 4, {v(t4)}
          v_add_u32 {v(t4)}, {SB}, {v(t4)}""")
    tv = AC + 32; u0, u1, u2, u3 = AC + 48, AC + 49, AC + 50, AC + 51
    a(f"""v_and_b32 {v(u0)}, 31, v1
          v_lshrrev_b32 {v(u1)}, 5, v1
          v_lshlrev_b32 {v(u1)}, 2, {v(u1)}
          s_lshl_b32 s49, s44, 4
          v_add_u32 {v(u1)}, s49, {v(u1)}
          s_cmp_eq_u32 s34, 0
          s_cselect_b64 vcc, -1, 0
          v_cndmask_b32 {v(u2)}, {v(u1)}, {v(u0)}, vcc
          v_cndmask_b32 {v(u3)}, {v(u0)}, {v(u1)}, vcc""")
    a(f"""v_cmp_le_u32 s[62:63], 16, {v(u2)}
          v_cmp_eq_u32 s[50:51], 0, {v(u2)}
          s_cmp_eq_u32 s2, 0
          s_cselect_b64 s[52:53], -1, 0
          s_and_b64 s[54:55], s[62:63], s[52:53]
          s_and_b64 s[50:51], s[50:51], s[52:53]
          s_cmp_eq_u32 s45, 1
          s_cselect_b64 s[50:51], s[50:51], 0
          s_and_b64 s[56:57], s[50:51], vcc
          v_lshlrev_b32 {v(u2)}, 6, {v(u2)}
          v_add_u32 {v(u2)}, s2, {v(u2)}
          v_subrev_u32 {v(u0)}, 992, {v(u2)}
          v_cndmask_b32 {v(u2)}, {v(u2)}, {v(u0)}, s[54:55]
          v_mov_b32 {v(u0)}, 1024
          v_cndmask_b32 {v(u2)}, {v(u2)}, {v(u0)}, s[56:57]
          v_cvt_f32_u32 {v(u2)}, {v(u2)}
          v_cvt_f32_u32 {v(u3)}, {v(u3)}
          v_mul_f32 {v(u2)}, {lit(1/2048)}, {v(u2)}
          v_mul_f32 {v(u0)}, {lit(1/32)}, {v(u3)}
          v_cndmask_b32 {v(u0)}, {v(u0)}, {v(u2)}, vcc
          s_cmp_eq_u32 s45, 1
          s_cselect_b32 s49, {lit(-0.25)}, 0
          v_mov_b32 {v(u1)}, s49
          v_cndmask_b32 {v(u1)}, {v(u1)}, 0, s[56:57]
          v_fma_f32 {v(tv)}, {v(u2)}, {v(u3)}, {v(u1)}""")
    for i in range(1, 8): a(f"v_fmamk_f32 {v(tv+i)}, {v(u0)}, {lit(float(8*(i>>2)+(i&3)))}, {v(tv)}")
    a(f"v_mul_f32 {v(u3)}, 0.5, {v(u3)}")
    a(f"v_cndmask_b32 {v(tv)}, {v(tv)}, {v(u3)}, s[50:51]")
    for i in range(8): a(f"v_cos_f32 {v(tv+i)}, {v(tv+i)}")
    for i in range(4): a(f"v_cvt_pk_bf16_f32 {v(tv+8+i)}, {v(tv+2*i)}, {v(tv+2*i+1)}")
    a(f"""s_andn2_b64 s[58:59], s[52:53], s[62:63]
          s_cmp_lg_u32 s2, 0
          s_cselect_b32 s49, s45, 0
          s_mul_i32 s49, s49, 0x80008000""")
    for i in range(4): a(f"v_xor_b32 {v(tv+12+i)}, s49, {v(tv+8+i)}")
    for i in range(4): a(f"v_cndmask_b32 {v(tv+12+i)}, {v(tv+12+i)}, 0, s[58:59]")
    for i in range(4): a(f"v_cndmask_b32 {v(tv+8+i)}, {v(tv+8+i)}, 0, s[54:55]")
    a(f"""s_lshl_b32 s60, s34, 3
          s_add_u32 s60, s60, s44
          s_lshl_b32 s60, s60, 10
          s_add_u32 s60, s60, {TB}
          s_mul_i32 s49, s45, 6144
          s_add_u32 s49, s49, s60
          v_add_u32 {v(u0)}, s49, v2
          s_cmp_eq_u32 s2, 0
          s_cselect_b32 s49, 0, 1
          s_xor_b32 s49, s49, s45
          s_lshl_b32 s49, s49, 11
          s_add_u32 s49, s49, s60
          v_add_u32 {v(u1)}, s49, v2""")
    a(f"ds_write_b128 {v(u0)}, {v(tv+8,4)}")
    a(f"ds_write_b128 {v(u1)}, {v(tv+12,4)} offset:2048")
    w0, w1, w2, w3 = FT + 52, FT + 53, FT + 54, FT + 55
    a(f"""s_lshl_b32 s38, s3, 8
          s_add_u32 s38, s38, s2
          s_mul_i32 s49, s34, 992
          s_cmp_eq_u32 s2, 0
          s_cselect_b32 s49, s49, 0
          s_sub_u32 s38, s38, s49
          s_sub_u32 s39, 2048, s38
          s_cmp_eq_u32 s38, 0
          s_cselect_b32 s40, 1024, s39
          v_and_b32 {v(w0)}, 31, v1
          v_lshlrev_b32 {v(w0)}, 4, {v(w0)}
          v_cmp_gt_u32 vcc, 32, v1
          v_mov_b32 {v(w1)}, s38
          v_mov_b32 {v(w2)}, s39
          v_mov_b32 {v(w3)}, s40
          v_cndmask_b32 {v(w2)}, {v(w2)}, {v(w1)}, vcc
          v_cndmask_b32 {v(w3)}, {v(w3)}, {v(w1)}, vcc
          v_mul_u32_u24 {v(w2)}, 450, {v(w2)}
          v_mul_u32_u24 {v(w3)}, 450, {v(w3)}
          v_and_b32 {v(w2)}, 0xffffffc0, {v(w2)}
          v_and_b32 {v(w3)}, 0xffffffc0, {v(w3)}
          v_add_u32 {v(w2)}, {v(w2)}, {v(w0)}
          v_add_u32 {v(w3)}, {v(w3)}, {v(w0)}
          v_mov_b32 {v(w0)}, {(-28800) & 0xffffffff:#x}
          v_mov_b32 {v(w1)}, 28800
          v_cndmask_b32 {v(w0)}, {v(w0)}, {v(w1)}, vcc
          s_lshl_b32 s41, s3, 13""")
    wdm = []
    for i in range(4):
        for mat in range(2):
            wdm.append((f"v_add_u32 {v(w2)}, {v(w2)}, {v(w0)}\n" if i and not mat else "") +
                       f"s_add_u32 m0, s41, {WB + i*2048 + mat*1024}\n" +
                       f"buffer_load_dwordx4 {v(w2 if i else w3)}, s[{20+4*mat}:{23+4*mat}], 0 offen lds")
    NW0 = int(OPT[OPT.index('nw0') + 1]) if 'nw0' in OPT else 4
    a.wait_smem()
    if NW0:
        a("s_barrier")
        for x in wdm[:NW0]: a(x)
    wdm = wdm[NW0:]
    st()
    if PRIO: a("s_setprio 3")
    a.wait_tag('x')
    st()
    for i in range(7): a(f"ds_read_b128 {v(AC+4*i,4)}, {v(t1)} offset:{i*128}")
    for i in range(28):
        a(f"v_dot2c_f32_bf16 {v(s1[i&1])}, 0x3f803f80, {v(AC+i)}")
        a(f"v_dot2c_f32_bf16 {v(s2[i&1])}, {v(AC+i)}, {v(AC+i)}")
    mean = s1[0]; var = s2[0]
    a(f"v_add_f32 {v(mean)}, {v(s1[0])}, {v(s1[1])}")
    a(f"v_add_f32 {v(var)}, {v(s2[0])}, {v(s2[1])}")
    for m in ("quad_perm:[1,0,3,2]", "quad_perm:[2,3,0,1]", "row_half_mirror"):
        for r in (mean, var): a(f"v_add_f32_dpp {v(r)}, {v(r)}, {v(r)} {m} row_mask:0xf bank_mask:0xf")
    nm = s1[1]; rs = s2[1]
    a(f"""v_mul_f32 {v(mean)}, {lit(1/448)}, {v(mean)}
          v_mul_f32 {v(var)}, {lit(1/448)}, {v(var)}
          v_fma_f32 {v(var)}, -{v(mean)}, {v(mean)}, {v(var)}
          v_max_f32 {v(var)}, 0, {v(var)}
          v_cvt_pk_bf16_f32 {v(var)}, {v(var)}, {v(var)}
          v_lshlrev_b32 {v(var)}, 16, {v(var)}
          v_add_f32 {v(var)}, {lit(1e-5)}, {v(var)}
          v_cvt_pk_bf16_f32 {v(var)}, {v(var)}, {v(var)}
          v_lshlrev_b32 {v(var)}, 16, {v(var)}
          v_sqrt_f32 {v(var)}, {v(var)}
          v_cvt_pk_bf16_f32 {v(nm)}, {v(var)}, -{v(mean)}
          v_lshlrev_b32 {v(var)}, 16, {v(nm)}
          v_rcp_f32 {v(rs)}, {v(var)}""")
    a("s_mov_b32 exec_lo, 0x01010101\ns_mov_b32 exec_hi, 0x01010101")
    a(f"ds_write_b16_d16_hi {v(t3)}, {v(nm)}")
    a(f"ds_write_b32 {v(t2)}, {v(rs)}")
    a(f"ds_write_b32 {v(AF+4)}, {v(nm)}")
    a("s_mov_b64 exec, -1")
    a.wait(lg=0)
    a("s_barrier")
    st()
    rsv = TF + 16; nmf = AF; Tp = AF + 8; cin = AF + 16
    a(f"ds_read_b32 {v(t2)}, {v(AF+20)}")
    for k in range(4): a(f"ds_read_b128 {v(rsv+4*k,4)}, {v(t4)} offset:{64*k}")
    for ks in range(2): a(f"ds_read_b128 {v(nmf+4*ks,4)}, {v(t4)} offset:{256 + 64*ks}")
    seq = [(t, arr, ks) for t in range(4) for arr in range(4) for ks in range(2)]
    def xr(n):
        t, arr, ks = seq[n]
        return [f"ds_read_b64_tr_b16 {v(IT+4*(n%14)+2*u,2)}, {v(mi+4*(arr>>1)+t)} offset:{(32*ks+16*u)*XS + 448*(arr&1)}" for u in range(2)]
    for n in range(4):
        for x in xr(n): a(x)
    for k in range(0, 16, 2): a(pk('mul', TF+k, TF+k, rsv+k))
    wave0(a, [f"buffer_store_dword {v(t2)}, {v(t0)}, s[16:19], s46 offen sc1"])
    nv0 = a.nvm
    for n in range(4, 10):
        for x in xr(n): a(x)
    for k in range(8): a(f"v_cvt_pk_bf16_f32 {v(Tp+k)}, {v(TF+2*k)}, {v(TF+2*k+1)}")
    a(m16(cin, Tp, nmf, '0')); a(m16(cin, Tp + 4, nmf + 4))
    for n in range(10, 14):
        for x in xr(n): a(x)
    A = lambda t, arr: AC + 16 * t + 4 * arr
    def fold(t):
        out = []
        d1 = TF + 8 * (t & 1); d2 = d1 + 4
        for r in (0, 2):
            out += [pk('add', d1+r, A(t,0)+r, A(t,1)+r, neg=[1]), pk('add', A(t,0)+r, A(t,0)+r, A(t,1)+r)]
        for r in (0, 2):
            out += [pk('add', d2+r, A(t,2)+r, A(t,3)+r, neg=[1]), pk('add', A(t,2)+r, A(t,2)+r, A(t,3)+r)]
        q = "quad_perm:[3,2,1,0] row_mask:0xf bank_mask:0xf"
        for r in range(4):
            out += [f"v_subrev_f32_dpp {v(A(t,1)+r)}, {v(A(t,2)+r)}, {v(A(t,0)+r)} {q}",
                    f"v_add_f32_dpp {v(A(t,0)+r)}, {v(A(t,2)+r)}, {v(A(t,0)+r)} {q}"]
        for r in range(4):
            out += [f"v_subrev_f32_dpp {v(A(t,2)+r)}, {v(d2+r)}, {v(d1+r)} {q}",
                    f"v_add_f32_dpp {v(A(t,3)+r)}, {v(d2+r)}, {v(d1+r)} {q}"]
        return out
    for t in range(4):
        mains = []; fills = []
        for n in range(8 * t, 8 * t + 8):
            _, arr, ks = seq[n]
            mains.append(m16(A(t, arr), Tp + 4 * ks, IT + 4 * (n % 14), v(cin, 4) if ks == 0 else None))
        fl = fold(t - 1) if t else []
        for i, m in enumerate(mains):
            a(m)
            n = 8 * t + i + 14
            if n < 32:
                for x in xr(n): a(x)
            if t < 2 and i & 1 and wdm: a(wdm.pop(0))
            if i >= 2:
                for x in fl[(i - 2) * 4:(i - 1) * 4]: a(x)
    a(f"v_mov_b32 {v(t0)}, 1")
    a(f"s_lshl_b32 s49, s2, 3")
    wave0(a, [f"s_waitcnt vmcnt({a.nvm - nv0})", "s_mov_b64 exec, 1", f"buffer_store_dword {v(t0)}, off, s[28:31], s49 sc1", "s_mov_b64 exec, -1"])
    a(f"""v_lshrrev_b32 {v(t1)}, 4, v1
          v_lshlrev_b32 {v(t1)}, 17, {v(t1)}
          v_and_b32 {v(t2)}, 15, v1
          v_lshl_add_u32 {v(t1)}, {v(t2)}, 4, {v(t1)}
          s_lshl_b32 s46, s33, 19
          s_lshl_b32 s49, s2, 11
          s_add_u32 s46, s46, s49
          s_lshl_b32 s49, s34, 10
          s_add_u32 s46, s46, s49
          s_add_u32 s46, s46, {OFF_V1}
          s_add_u32 s47, s46, 65536""")
    for x in fold(3): a(x)
    st()
    for r in range(4):
        for par in range(2):
            o = AF + 4 * (2 * r + par)
            for cs_ in range(2):
                for th in range(2):
                    a(f"v_cvt_pk_bf16_f32 {v(o+2*cs_+th)}, {v(A(2*th,2*par+cs_)+r)}, {v(A(2*th+1,2*par+cs_)+r)}")
            a(f"buffer_store_dwordx4 {v(o,4)}, {v(t1)}, s[16:19], s{46+(r>>1)} offen offset:{(r&1)*512 + par*256} sc1", tag='v1s')
    st()
    fa = mi + 1; wr = mi + 2; ga = mi + 3; gr = mi + 4; vo = mi + 5; tb = mi + 6; pv = mi + 7
    a(f"v_and_b32 {v(t4)}, 31, v1")
    a(f"v_lshlrev_b32 {v(t4)}, 3, {v(t4)}")
    a(f"buffer_load_dword {v(pv)}, {v(t4)}, s[28:31], 0 offen sc1", tag='dp')
    if PRIO: a("s_setprio 0")
    K = mi
    a(f"""v_and_b32 {v(t2)}, 31, v1
          s_lshl_b32 s49, s33, 6
          s_add_u32 s49, s49, 2
          s_sub_u32 s49, s49, s34
          v_lshl_add_u32 {v(t2)}, {v(t2)}, 1, s49
          v_cvt_f32_u32 {v(t2)}, {v(t2)}
          v_mul_f32 {v(t2)}, {lit(1/448)}, {v(t2)}
          v_lshrrev_b32 {v(t1)}, 5, v1
          v_cvt_f32_u32 {v(t3)}, {v(t1)}
          v_mul_f32 {v(K)}, 4.0, {v(t2)}
          v_fma_f32 {v(t3)}, {v(t3)}, 2.0, 0.5
          v_cos_f32 {v(K)}, {v(K)}
          v_mul_f32 {v(t3)}, {v(t3)}, {v(t2)}
          v_add_f32 {v(K)}, {v(K)}, {v(K)}""")
    def f1chain(P0, n, d, ks0):
        out = []
        sl = lambda P: AC + 4 * (P % 8)
        for P in range(P0, P0 + n):
            if P < P0 + 2:
                for u in range(2):
                    k = 4 * P + u
                    out.append(f"v_fmamk_f32 {v(sl(P)+2+u)}, {v(t2)}, {lit(float(k))}, {v(t3)}" if k else f"v_mov_b32 {v(sl(P)+2+u)}, {v(t3)}")
                for u in range(2): out.append(f"v_cos_f32 {v(sl(P)+u)}, {v(sl(P)+2+u)}")
                for u in range(2): out.append(f"v_sin_f32 {v(sl(P)+2+u)}, {v(sl(P)+2+u)}")
            else:
                for c in (0, 2): out.append(pk('fma', sl(P)+c, sl(P-1)+c, ('b', K), sl(P-2)+c, neg=[2]))
            Pc = P - 1
            for Pc in ([P - 1, P] if P == P0 + n - 1 else [P - 1]):
                t, q = divmod(Pc - P0, d)
                if Pc >= P0 and t & 1:
                    for c in range(2):
                        for u in range(2):
                            out.append(f"v_cvt_pk_bf16_f32 {v(FT+8*(ks0+q)+4*c+2*u+(t>>1))}, {v(sl(Pc-d)+2*c+u)}, {v(sl(Pc)+2*c+u)}")
        return out
    for x in f1chain(0, 16, 4, 0): a(x)
    a(f"""s_lshl_b32 s49, s3, 10
          s_add_u32 s49, s49, s37
          v_and_b32 {v(tb)}, 3, v1
          v_lshlrev_b32 {v(tb)}, 13, {v(tb)}
          v_and_b32 {v(vo)}, 4, v1
          v_lshl_add_u32 {v(tb)}, {v(vo)}, 10, {v(tb)}
          s_lshl_b32 s50, s3, 15
          s_lshr_b32 s51, s2, 3
          s_lshl_b32 s51, s51, 10
          s_add_u32 s50, s50, s51
          s_add_u32 s50, s50, {OFF_FL + 896}""")
    if PRIO: a("s_setprio 3")
    st()
    a.wait_tag('v1s')
    a(f"s_mov_b64 exec, 1\nbuffer_store_dword {v(t0)}, off, s[16:19], s49 offset:896 sc1\ns_mov_b64 exec, -1")
    st()
    spin(a, pv, t4, 's[28:31]', '0', '-1', first=False)
    a(f"buffer_load_dword {v(pv)}, {v(tb)}, s[16:19], s50 offen sc1")
    if PRIO: a("s_setprio 0")
    for x in f1chain(16, 12, 3, 4): a(x)
    a(f"""s_lshl_b32 s51, s2, 16
          s_lshl_b32 s49, s3, 13
          s_add_u32 s51, s51, s49
          s_add_u32 s51, s51, {OFF_V1}
          s_mul_i32 s52, s3, {4*VS}""")
    if PRIO: a("s_setprio 3")
    st()
    spin(a, pv, tb, 's[16:19]', 's50', '0xff', first=False)
    a("s_barrier")
    st()
    for hh in range(2):
        for i in range(4):
            a(f"s_add_u32 m0, s52, {(hh*32+i)*VS}")
            a(f"s_add_u32 s49, s51, {i*2048 + hh*1024}")
            a(f"buffer_load_dwordx4 v2, s[16:19], s49 offen sc1 lds", tag=('v', hh))
    if PRIO: a("s_setprio 0")
    a(f"""v_and_b32 {v(t2)}, 31, v1
          s_lshl_b32 s49, s33, 5
          v_add_u32 {v(t2)}, s49, {v(t2)}
          v_cvt_f32_u32 {v(t3)}, {v(t2)}
          v_add_f32 {v(t3)}, 0.5, {v(t3)}
          v_mul_f32 {v(t3)}, {lit(1/448)}, {v(t3)}
          s_sub_u32 s49, 2, s34
          v_lshl_add_u32 {v(t4)}, {v(t1)}, 3, s49
          v_mul_f32 {v(K)}, {lit(16.0)}, {v(t3)}
          v_cmp_eq_u32 vcc, 10, {v(t4)}
          v_cvt_f32_u32 {v(t4)}, {v(t4)}
          v_cos_f32 {v(K)}, {v(K)}
          v_mul_f32 {v(t4)}, {v(t4)}, {v(t3)}
          v_cndmask_b32 {v(pv)}, 1.0, 0.5, vcc
          v_add_f32 {v(K)}, {v(K)}, {v(K)}""")
    sl = lambda Q: AC + 8 * (Q % 4)
    def i1cvt(Q):
        for c in range(2):
            for h in range(2):
                a(f"v_cvt_pk_bf16_f32 {v(IT+8*(Q>>1)+4*c+2*(Q&1)+h)}, {v(sl(Q)+4*c+2*h)}, {v(sl(Q)+4*c+2*h+1)}")
    for Q in range(14):
        if Q < 2:
            for r in range(4):
                k = 16 * Q + 2 * r
                a(f"v_fmamk_f32 {v(sl(Q)+4+r)}, {v(t3)}, {lit(float(k))}, {v(t4)}" if k else f"v_mov_b32 {v(sl(Q)+4+r)}, {v(t4)}")
            for r in range(4): a(f"v_cos_f32 {v(sl(Q)+r)}, {v(sl(Q)+4+r)}")
            for r in range(4): a(f"v_sin_f32 {v(sl(Q)+4+r)}, {v(sl(Q)+4+r)}")
        else:
            for c in range(0, 8, 2): a(pk('fma', sl(Q)+c, sl(Q-1)+c, ('b', K), sl(Q-2)+c, neg=[2]))
        if Q: i1cvt(Q - 1)
    a(f"v_mul_f32 {v(sl(13)+7)}, {v(sl(13)+7)}, {v(pv)}")
    a(f"""v_and_b32 {v(t3)}, 31, v1
          v_mul_u32_u24 {v(fa)}, {VS}, {v(t3)}
          v_lshl_add_u32 {v(fa)}, {v(t1)}, 5, {v(fa)}
          s_lshl_b32 s49, s34, 8
          v_add_u32 {v(fa)}, s49, {v(fa)}
          v_lshlrev_b32 {v(vo)}, 2, {v(t2)}
          s_lshl_b32 s49, s34, 1
          s_sub_u32 s49, {WB + 4}, s49
          v_lshl_add_u32 {v(wr)}, {v(t1)}, 13, s49
          v_add_u32 {v(wr)}, {v(wr)}, {v(vo)}
          s_lshl_b32 s49, s2, 1
          s_sub_u32 s54, 64, s49
          s_and_b32 s54, s54, 63
          v_add_u32 {v(K)}, s54, {v(wr)}
          v_add_u32 {v(wr)}, s49, {v(wr)}
          v_lshl_add_u32 {v(vo)}, {v(t1)}, 18, {v(vo)}
          s_lshl_b32 s49, s34, 15
          v_add_u32 {v(gr)}, s49, v2
          s_lshl_b32 s49, s33, 11
          v_add_u32 {v(ga)}, s49, {v(gr)}
          v_add_u32 {v(tb)}, {TB}, v2
          s_lshl_b32 s53, s2, 11
          s_lshl_b32 s49, s34, 10
          s_add_u32 s53, s53, s49
          s_add_u32 s53, s53, {OFF_V2}""")
    i1cvt(13)
    for k in range(8): a(f"ds_read_b128 {v(TF+4*k,4)}, {v(tb)} offset:{k*1024}")
    st()
    def f1r(ks):
        hh, q = (0, ks) if ks < 4 else (1, ks - 4)
        return [f"ds_read_b64 {v(AF+16*(ks&1)+4*(2*d+c)+2*u,2)}, {v(fa)} offset:{hh*32*VS + c*512 + (4*q+u)*16 + 8*d}"
                for d in range(2) for c in range(2) for u in range(2)]
    a.wait_tag(('v', 0))
    a("s_barrier")
    st()
    for x in f1r(0): a(x)
    for ks in range(7):
        mains = [m32(AC + 16 * i, AF + 16 * (ks & 1) + 4 * i, FT + 8 * ks + 4 * (i >> 1), '0' if ks == 0 else None) for i in range(4)]
        fills = f1r(ks + 1) if ks < 6 else []
        if ks == 3:
            def sy():
                a.wait_tag(('v', 1)); a("s_barrier")
            fills = [sy] + fills
        weave(a, mains, fills, span=3)
    def wrd(r):
        return [f"ds_read_u16_d16_hi {v(FT+4*(r%14)+2*pm+mat)}, {v(K if pm else wr)} offset:{(8*(r>>2)+(r&3))*2048 + mat*1024 + pm*512}"
                for pm in range(2) for mat in range(2)]
    BF = lambda i: AF + 8 * ((i + 2) & 3)
    Tf = lambda T, s: TF + 8 * T + 4 * s
    cvt = lambda i: [f"v_cvt_pk_bf16_f32 {v(BF(i)+k)}, {v(AC+16*i+2*k)}, {v(AC+16*i+2*k+1)}" for k in range(8)]
    for x in cvt(0) + cvt(1): a(x)
    def f2(i0):
        o0, o1 = AC + 16 * i0, AC + 16 * i0 + 16
        C, S = BF(i0), BF(i0 + 1)
        return [m32(o0, Tf(0, 0), C, '0'), m32(o1, Tf(3, 0), C, '0'), m32(o0, Tf(0, 1), C + 4), m32(o1, Tf(3, 1), C + 4),
                m32(o0, Tf(1, 0), S), m32(o1, Tf(2, 0), S), m32(o0, Tf(1, 1), S + 4), m32(o1, Tf(2, 1), S + 4)]
    wl = [x for r in range(14) for x in wrd(r)]
    weave(a, f2(0), cvt(2) + cvt(3) + wl[:16])
    weave(a, f2(2), wl[16:])
    st()
    for k in range(8): a(f"ds_read_b128 {v(TF+4*k,4)}, {v(tb)} offset:{8192 + k*1024}")
    a("s_barrier")
    al, de, gm, be = AC, AC + 16, AC + 32, AC + 48
    for r in range(16):
        Pr, Pi, Mr, Mi = [FT + 4 * (r % 14) + k for k in range(4)]
        a1, b1 = (t1, t2) if r & 1 else (t3, t4)
        A_, D_, G_, B_ = al + r, de + r, gm + r, be + r
        if r == 0:
            for k, x in enumerate((A_, D_, G_, B_)): a(f"v_mov_b32 {v(AF+k)}, {v(x)}")
        a(f"""v_sub_f32 {v(a1)}, {v(A_)}, {v(B_)}
              v_add_f32 {v(b1)}, {v(G_)}, {v(D_)}
              v_add_f32 {v(A_)}, {v(A_)}, {v(B_)}
              v_sub_f32 {v(G_)}, {v(G_)}, {v(D_)}
              v_mul_f32 {v(B_)}, {v(a1)}, {v(Pr)}
              v_mul_f32 {v(D_)}, {v(a1)}, {v(Pi)}
              v_fmac_f32 {v(B_)}, {v(b1)}, {v(Pi)}
              v_fma_f32 {v(D_)}, -{v(b1)}, {v(Pr)}, {v(D_)}
              v_fma_f32 {v(a1)}, {v(A_)}, {v(Mr)}, {v(B_)}
              v_fma_f32 {v(b1)}, {v(A_)}, {v(Mi)}, {v(D_)}
              v_fma_f32 {v(A_)}, {v(G_)}, {v(Mi)}, {v(a1)}
              v_fma_f32 {v(G_)}, -{v(G_)}, {v(Mr)}, {v(b1)}
              v_fma_f32 {v(B_)}, {v(B_)}, 2.0, -{v(A_)}
              v_fma_f32 {v(D_)}, {v(D_)}, -2.0, {v(G_)}""")
        if r == 0:
            a("s_cmp_lg_u32 s2, 0")
            a("s_cbranch_scc1 NOFIX")
            a("s_mov_b32 exec_hi, 0")
            a(f"""v_mul_f32 {v(A_)}, {v(AF)}, {v(Pr)}
                  v_mul_f32 {v(G_)}, {v(AF)}, {v(Pi)}
                  v_mul_f32 {v(D_)}, {v(AF+1)}, {v(Mr)}
                  v_mul_f32 {v(B_)}, {v(AF+1)}, {v(Mi)}
                  v_fmac_f32 {v(A_)}, {v(AF+2)}, {v(Pi)}
                  v_fma_f32 {v(G_)}, -{v(AF+2)}, {v(Pr)}, {v(G_)}
                  v_fmac_f32 {v(D_)}, {v(AF+3)}, {v(Mi)}
                  v_fma_f32 {v(B_)}, -{v(AF+3)}, {v(Mr)}, {v(B_)}""")
            a("s_mov_b32 exec_hi, -1")
            a.raw("NOFIX:")
        if r < 2:
            for x in wrd(r + 14): a(x)
        if r & 1:
            for i in range(4): a(f"v_cvt_pk_bf16_f32 {v(AF+8*i+(r>>1))}, {v(AC+16*i+r-1)}, {v(AC+16*i+r)}")
    st()
    def i2(i0):
        o0, o1 = AC + 16 * i0, AC + 16 * i0 + 16
        S, D = AF + 8 * i0, AF + 8 * i0 + 8
        return [m32(o0, S, Tf(0, 0), '0'), m32(o0, S + 4, Tf(0, 1)), m32(o0, D, Tf(3, 0)), m32(o0, D + 4, Tf(3, 1)),
                m32(o1, S, Tf(1, 0), '0'), m32(o1, S + 4, Tf(1, 1)), m32(o1, D, Tf(2, 0)), m32(o1, D + 4, Tf(2, 1))]
    def gout(i):
        out = []
        for s_ in range(2):
            o = FT + 8 * i + 4 * s_
            out += [f"v_cvt_pk_bf16_f32 {v(o+k)}, {v(AC+16*i+8*s_+2*k)}, {v(AC+16*i+8*s_+2*k+1)}" for k in range(4)]
            out.append(f"ds_write_b128 {v(ga)}, {v(o,4)} offset:{i*8192 + s_*1024}")
        return out
    mm = i2(0) + i2(2)
    for x in mm[:6]: a(x)
    weave(a, mm[6:], gout(0) + gout(1) + gout(2)[:5])
    for x in gout(2)[5:] + gout(3): a(x)
    a.wait(lg=0)
    a("s_barrier")
    st()
    ring = [AF, AF + 16, TF]
    def i1r(ks):
        return [f"ds_read_b128 {v(ring[ks%3]+4*i,4)}, {v(gr)} offset:{i*8192 + ks*1024}" for i in range(4)]
    for x in i1r(0) + i1r(1): a(x)
    for ks in range(7):
        mains = [m32(AC + 16 * i, ring[ks % 3] + 4 * i, IT + 8 * ks + 4 * (i >> 1), '0' if ks == 0 else None) for i in range(4)]
        weave(a, mains, i1r(ks + 2) if ks < 5 else [])
    st()
    for r in range(16):
        x0, x1 = (t1, t2) if r & 1 else (t3, t4)
        a(f"""v_sub_f32 {v(x0)}, {v(AC+r)}, {v(AC+32+r)}
              v_sub_f32 {v(x1)}, {v(AC+16+r)}, {v(AC+48+r)}
              v_add_f32 {v(AC+r)}, {v(AC+r)}, {v(AC+32+r)}
              v_add_f32 {v(AC+16+r)}, {v(AC+16+r)}, {v(AC+48+r)}
              v_cvt_pk_bf16_f32 {v(AC+32+r)}, {v(x0)}, {v(x1)}
              v_cvt_pk_bf16_f32 {v(AC+48+r)}, {v(AC+r)}, {v(AC+16+r)}
              s_add_u32 s49, s53, {(8*(r>>2)+(r&3))*65536}
              buffer_store_dword {v(AC+32+r)}, {v(vo)}, s[16:19], s49 offen sc1
              buffer_store_dword {v(AC+48+r)}, {v(vo)}, s[16:19], s49 offen offset:512 sc1""")
    st()
    a(f"v_lshlrev_b32 {v(t1)}, 10, v1")
    a.wait(vm=0)
    a("s_barrier")
    wave0(a, ["s_mov_b64 exec, 0xff", f"buffer_store_dword {v(t0)}, {v(t1)}, s[16:19], s37 offen offset:900 sc1", "s_mov_b64 exec, -1"])
    st.dump(t1)
    return R.maxv

def kern(a):
    st = Stamp(a)
    a("s_cmp_ge_u32 s2, 0x100")
    a("s_cbranch_scc1 KEND")
    st()
    a("""s_load_dwordx2 s[4:5], s[0:1], 0
         s_load_dwordx2 s[8:9], s[0:1], 32
         s_load_dwordx2 s[12:13], s[0:1], 40
         s_load_dwordx2 s[16:17], s[0:1], 72
         s_load_dwordx2 s[28:29], s[0:1], 64""")
    a("s_getpc_b64 s[100:101]")
    a.raw("PCREF:")
    a("""v_lshrrev_b32 v2, 6, v0
         s_lshr_b32 s47, s2, 3
         v_lshl_add_u32 v255, s47, 3, v2
         v_readfirstlane_b32 s3, v2
         v_lshlrev_b32 v255, 7, v255
         v_and_b32 v1, 63, v0
         v_min_u32 v255, KEND-PCREF, v255
         v_lshlrev_b32 v2, 4, v1""")
    if 'notouch' not in OPT: a("global_load_dword v255, v255, s[100:101]")
    a("""s_and_b32 s33, s2, 7
         s_mov_b32 s6, 1835008
         s_mov_b32 s7, 0x00020000
         s_mov_b32 s18, 0x10000000
         s_mov_b32 s19, 0x00020000
         s_mov_b32 s30, 256
         s_mov_b32 s31, 0x00020000""")
    a("s_cmp_ge_u32 s2, 32")
    a("s_cbranch_scc1 FFN")
    for t in L(f"""s_lshl_b32 s2, s33, 2
         s_add_u32 s2, s2, s47
         s_mul_i32 s35, s2, 896
         s_mul_i32 s49, s3, {8*28672}
         s_add_u32 s35, s35, s49
         s_mul_i32 s36, s3, {8*928}
         s_mov_b32 m0, s36
         s_add_u32 s49, s36, {8*928}
         s_mov_b32 exec_hi, 0x00ffffff
         s_waitcnt lgkmcnt(0)
         XL:
         buffer_load_dwordx4 v2, s[4:7], s35 offen lds
         s_add_u32 m0, m0, 928
         s_add_u32 s35, s35, 28672
         s_cmp_lt_u32 m0, s49
         s_cbranch_scc1 XL
         s_mov_b32 exec_hi, -1
         s_branch SPEC
         FFN:
         s_mov_b32 s11, 0x00020000
         s_mov_b32 s15, 0x00020000"""): a.raw(t if t.endswith(':') else "    " + t)
    n0 = st.n
    m1 = ffn(a, st)
    a.raw(".p2align 6")
    a.label("SPEC")
    a.reset_state()
    st.n = n0
    m2 = spec(a, st)
    a.label("KEND")
    a("s_endpgm")
    return max(m1, m2)

def build():
    label = NAME + "_kernel"
    a = Asm()
    a.raw(f"; @launch grid=(256,1,1) block=(512,1,1) lds=163840")
    a.raw('.amdgcn_target "amdgcn-amd-amdhsa--gfx950"\n.text')
    a.raw(f".globl {label}\n.p2align 8\n.type {label},@function\n{label}:")
    nv = kern(a)
    print("vgprs", nv, "instrs", a.nins, file=sys.stderr)
    nv = (nv + 7) // 8 * 8
    a.raw(f""".section .rodata,"a"
.p2align 6
.amdhsa_kernel {label}
  .amdhsa_next_free_vgpr {nv}
  .amdhsa_next_free_sgpr 102
  .amdhsa_accum_offset {nv}
  .amdhsa_group_segment_fixed_size 0
  .amdhsa_kernarg_size 80
  .amdhsa_user_sgpr_count 2
  .amdhsa_user_sgpr_kernarg_segment_ptr 1
  .amdhsa_system_sgpr_workgroup_id_x 1
.end_amdhsa_kernel""")
    return a.text()

if __name__ == "__main__":
    open(sys.argv[1], "w").write(build())
```

```python
import sys, struct, math
sys.path.insert(0, 'work')
from asmlib import *

NAME = "recurrent_scan__spectral_gfnet__swiglu_ffn__prompt"
OFF_H = 0
OFF_V1 = 0x800000
OFF_V2 = 0xA00000
OFF_ST = 0xC00000
OFF_FL = 0xC10000
OFF_F2 = 0xC60000
OFF_DIAG = 0x2000000
NFAST = 24
OPT = sys.argv[2:]
DIAG = 'diag' in OPT
STAMP_OP = 's_memtime' if 'cyc' in OPT else 's_memrealtime'
LIMIT = 0x20000
PRIO = 'noprio' not in OPT

def lit(x):
    return "0x%08x" % struct.unpack('<I', struct.pack('<f', x))[0]
def m32(d, a, b, c=None):
    return f"v_mfma_f32_32x32x16_bf16 {v(d,16)}, {v(a,4)}, {v(b,4)}, {v(d,16) if c is None else c}"
def m16(d, a, b, c=None):
    return f"v_mfma_f32_16x16x32_bf16 {v(d,4)}, {v(a,4)}, {v(b,4)}, {v(d,4) if c is None else c}"

def bc(r):
    return v(r & ~1, 2), r & 1
def pk(op, d, *srcs, neg=None):
    ops = []; lo = []; hi = []
    for x in srcs:
        if isinstance(x, tuple):
            p, b = bc(x[1]); ops.append(p); lo.append(b); hi.append(b)
        else:
            assert x % 2 == 0
            ops.append(v(x, 2)); lo.append(0); hi.append(1)
    assert d % 2 == 0
    t = f"v_pk_{op}_f32 {v(d,2)}, " + ", ".join(ops)
    if any(lo): t += f" op_sel:[{','.join(map(str, lo))}]"
    if not all(hi): t += f" op_sel_hi:[{','.join(map(str, hi))}]"
    if neg:
        m = ','.join('1' if i in neg else '0' for i in range(len(srcs)))
        t += f" neg_lo:[{m}] neg_hi:[{m}]"
    return t

def em(a, x):
    if callable(x): x()
    elif isinstance(x, tuple): a(x[0], tag=x[1])
    else: a(x)
def weave(a, mains, fills, span=None):
    n = len(mains) if span is None else min(span, len(mains)); k = len(fills); done = 0
    for i, m in enumerate(mains):
        em(a, m)
        upto = min(k, (k * (i + 1) + n - 1) // n)
        while done < upto:
            em(a, fills[done]); done += 1
def merge(*lists):
    items = []
    for li, l in enumerate(lists):
        for i, x in enumerate(l):
            items.append(((i + 0.5) / len(l), li, i, x))
    items.sort(key=lambda t: (t[0], t[1], t[2]))
    return [t[3] for t in items]

NLAB = [0]
class Stamp:
    def __init__(self, a):
        self.a = a; self.n = 0
    def __call__(self, last=False):
        if not DIAG: return
        if self.n >= 22 and not last: return
        self.a.raw(f"    {STAMP_OP} s[96:97]")
        self.a.raw("    s_waitcnt lgkmcnt(0)")
        self.a.raw(f"    s_mov_b32 s{66+self.n}, s96")
        self.a.lgq = []
        self.n += 1
        assert self.n <= 23
    def dump(self, vt):
        if not DIAG: return
        a = self.a
        self(True)
        if 'probe' in OPT:
            NLAB[0] += 1; L = f"PR{NLAB[0]}"
            wgp = int(OPT[OPT.index('probe')+1]); ip = int(OPT[OPT.index('probe')+2])
            if ip < 0: ip += self.n
            a(f"s_lshl_b32 s98, s2, 3\ns_add_u32 s98, s98, s3")
            a(f"s_cmp_lg_u32 s98, {8*wgp+7}")
            a(f"s_cbranch_scc1 {L}")
            a(f"s_sub_u32 s98, s{66+min(ip, self.n-1)}, s66")
            a(f"s_add_u32 s98, s98, {int(OPT[OPT.index('probe')+3])}")
            a(f"s_mov_b32 s99, 0")
            a.raw(f"{L}_L:")
            a.raw(f"    s_memrealtime s[96:97]\n    s_add_u32 s99, s99, 1\n    s_waitcnt lgkmcnt(0)\n    s_sub_u32 s96, s96, s66\n    s_cmp_ge_u32 s96, s98\n    s_cbranch_scc1 {L}\n    s_cmp_lt_u32 s99, 100000\n    s_cbranch_scc1 {L}_L")
            a.raw(f"{L}:")
            return
        if 'dbgdiag' in OPT:
            NLAB[0] += 1; L = f"DD{NLAB[0]}"
            a(f"s_lshl_b32 s98, s2, 3\ns_add_u32 s98, s98, s3")
            a(f"s_cmp_lg_u32 s98, {8*int(OPT[OPT.index('dbgdiag')+1])+7}")
            a(f"s_cbranch_scc1 {L}")
            for i in range(1, min(17, self.n)):
                a(f"s_sub_u32 s98, s{66+i}, s66")
                a(f"v_mov_b32 {v(vt)}, s98")
                a(f"buffer_store_dword {v(vt)}, off, s[28:31], 0 offset:{4*i-4}")
                a.wait(vm=0)
            a.raw(f"{L}:")
            return
        a(f"s_lshl_b32 s98, s2, 3\ns_add_u32 s98, s98, s3\ns_lshl_b32 s98, s98, 7")
        a(f"s_add_u32 s98, s98, {OFF_DIAG}")
        for i in range(self.n):
            a(f"v_mov_b32 {v(vt)}, s{66+i}")
            a(f"buffer_store_dword {v(vt)}, off, s[16:19], s98 offset:{4*i}")
            a.wait(vm=0)

def spin(a, vdst, vaddr, srd, soff, mask, first=True, val='1'):
    NLAB[0] += 1; L = f"SP{NLAB[0]}"
    a("s_mov_b32 s99, 0")
    if not first:
        a(f"v_cmp_ne_u32 vcc, {val}, {v(vdst)}")
        a(f"s_and_b64 vcc, vcc, {mask}")
        a(f"s_cbranch_scc0 {L}_D")
    a(f"s_mov_b64 exec, {mask}")
    a.raw(f"{L}:")
    a.raw(f"    buffer_load_dword {v(vdst)}, {v(vaddr)}, {srd}, {soff} offen sc1")
    a.raw("    s_add_u32 s99, s99, 1")
    a.raw("    s_waitcnt vmcnt(0)")
    a.raw(f"    v_cmp_ne_u32 vcc, {val}, {v(vdst)}")
    a.raw("    s_nop 1")
    a.raw("    s_cmp_eq_u64 vcc, 0")
    a.raw(f"    s_cbranch_scc1 {L}_E")
    a.raw(f"    s_cmp_lt_u32 s99, {LIMIT}")
    a.raw(f"    s_cbranch_scc1 {L}")
    a.raw(f"{L}_E:")
    a.raw("    s_mov_b64 exec, -1")
    a.raw(f"{L}_D:")
    if first: a.vmq = []

def wave0(a, lines):
    NLAB[0] += 1; L = f"W0_{NLAB[0]}"
    a("s_cmp_lg_u32 s3, 0")
    a(f"s_cbranch_scc1 {L}")
    for l in lines: a.raw("    " + l)
    a.raw(f"{L}:")

def opt(name, dflt):
    return OPT[OPT.index(name) + 1] if name in OPT else dflt
def L(text):
    return [t.strip() for t in text.split('\n') if t.strip()]

def spinh(a, vdst, vaddr, off, mask, slow=None, back=None):
    NLAB[0] += 1; Lb = f"SP{NLAB[0]}"
    a(f"v_cmp_eq_u32 vcc, 1, {v(vdst)}")
    a(f"s_andn2_b32 s54, {mask}, vcc_lo")
    a(f"s_cbranch_scc0 {Lb}_D")
    r = lambda t: a.raw("    " + t)
    r("s_mov_b32 s99, 0")
    r("s_mov_b32 exec_hi, 0")
    if back: r(back)
    a.raw(f"{Lb}:")
    r(f"buffer_load_dword {v(vdst)}, {v(vaddr)}, s[16:19], s61 offen offset:{off} sc1")
    r("s_add_u32 s99, s99, 1")
    r("s_waitcnt vmcnt(0)")
    r(f"v_cmp_eq_u32 vcc, 1, {v(vdst)}")
    r("s_nop 1")
    r("s_or_b32 s54, vcc_lo, vcc_hi")
    r(f"s_andn2_b32 s54, {mask}, s54")
    r(f"s_cbranch_scc0 {Lb}_E")
    r(f"s_cmp_lg_u32 s99, {NFAST}")
    r(f"s_cbranch_scc1 {Lb}_C")
    if slow:
        r("s_mov_b32 exec_lo, 1")
        r(slow)
    r("s_mov_b64 exec, -1")
    a.raw(f"{Lb}_C:")
    r(f"s_cmp_lt_u32 s99, {LIMIT}")
    r(f"s_cbranch_scc1 {Lb}")
    a.raw(f"{Lb}_E:")
    r("s_mov_b64 exec, -1")
    a.raw(f"{Lb}_D:")

def ffn(a, st):
    XB = 16384; WB = 114688
    X = lambda s: XB + 32768 * s
    W = lambda s: WB + 16384 * s
    USLOT = [1024 * k for k in (0, 0, 48, 64, 128, 144, 96, 80, 112, 128, 16, 32, 48, 64)]
    UBASE = [1024 * k for k in (0, 0, 0, 64, 96, 96, 96, 80, 80, 80, 16, 16, 16, 16)]
    RB = 81920
    a("""s_load_dwordx2 s[20:21], s[0:1], 48
         s_load_dwordx2 s[24:25], s[0:1], 56""")
    R = RegAlloc(start=3, limit=256)
    t0 = R.get(); t1 = R.get(); t2 = R.get()
    vx = [R.get(), R.get()]; vw = R.get(); vd = R.get()
    xa = [[R.get(), R.get()] for _ in range(2)]
    wa = [[R.get(), R.get()] for _ in range(2)]
    da = [R.get() for _ in range(4)]
    big = R.get(144, 2)
    acc = [[[big + 32 * mat + 16 * F + 4 * nt for nt in range(4)] for F in range(2)] for mat in range(2)]
    wf = [[big + 64 + 16 * b + 4 * i for i in range(4)] for b in range(2)]
    xf = [[big + 96 + 16 * b + 4 * i for i in range(4)] for b in range(2)]
    cs = [big + 128, big + 132]; ones = big + 136; stv = big + 140
    wd = [R.get(16, 2) for _ in range(5)]
    sp = R.get(8, 2)
    a(f"""s_sub_u32 s37, s47, 4
         v_lshrrev_b32 {v(t0)}, 3, v1
         s_mul_i32 s34, s37, 37
         v_and_b32 {v(t1)}, 7, v1
         s_lshr_b32 s34, s34, 8
         v_lshrrev_b32 {v(t2)}, 4, v1
         s_and_b32 s38, s3, 3
         v_and_b32 {v(vw)}, 1, {v(t2)}
         s_lshr_b32 s39, s3, 2
         s_lshl_b32 s89, s34, 1
         s_add_u32 s89, s89, s37
         s_add_u32 s89, s89, s33
         s_and_b32 s49, s3, 1
         s_lshl_b32 s49, s49, 1
         v_or_b32 {v(vw)}, s49, {v(vw)}
         s_mul_i32 s90, s89, 37
         v_lshlrev_b32 {v(vw)}, 1, {v(vw)}
         s_lshr_b32 s90, s90, 8
         v_xor_b32 {v(vw)}, {v(vw)}, {v(t1)}
         s_mul_i32 s90, s90, 7
         v_lshlrev_b32 {v(vw)}, 4, {v(vw)}
         s_sub_u32 s89, s89, s90
         v_mul_u32_u24 {v(vd)}, 3584, {v(t0)}
         s_lshl_b32 s89, s89, 7
         v_add_u32 {v(vw)}, {v(vw)}, {v(vd)}
         s_mul_i32 s45, s3, {8*3584}
         v_xor_b32 {v(vx[1])}, {v(t1)}, {v(t2)}
         s_lshl_b32 s49, s37, 7
         v_lshlrev_b32 {v(vx[1])}, 4, {v(vx[1])}
         s_add_u32 s45, s45, s49
         v_mul_u32_u24 {v(vx[0])}, 28672, {v(t0)}
         s_lshl_b32 s46, s3, 11
         v_add_u32 {v(vx[0])}, {v(vx[0])}, {v(vx[1])}
         s_mov_b32 s10, 1605632
         v_xor_b32 {v(vx[1])}, 64, {v(vx[0])}
         s_mov_b32 s14, 1605632
         s_lshl_b32 s48, s33, 2
         s_add_u32 s48, s48, s38
         s_mul_i32 s40, s48, 896
         s_mul_i32 s49, s39, {32*28672}
         s_add_u32 s40, s40, s49
         s_lshl_b32 s44, s38, 13
         s_lshl_b32 s49, s39, 12
         s_add_u32 s44, s44, s49
         s_and_b32 s54, s34, 1
         s_lshl_b32 s64, s54, 11
         s_add_u32 s64, s64, s44
         s_mul_i32 s65, s54, {16*28672}
         s_add_u32 s65, s65, s89
         s_add_u32 s65, s65, s40""")
    def xdma(c):
        out = []
        for i in range(4):
            def f(i=i):
                a(f"s_add_u32 m0, s44, {X(c%3)}")
                a(f"s_add_u32 s49, s{40+i}, s{89+c}")
                a(f"buffer_load_dwordx4 {v(vx[i&1])}, s[4:7], s49 offen offset:{i*1024} lds", tag=('x', c))
            out.append(f)
        return out
    def wdma(c):
        out = []
        for mat in range(2):
            def f(mat=mat):
                a(f"s_mul_i32 s49, s{89+c}, 1792")
                a(f"s_add_u32 m0, s46, {W(c%3) + mat*1024}")
                a(f"s_add_u32 s49, s49, s45")
                a(f"buffer_load_dwordx4 {v(vw)}, s[{8+4*mat}:{11+4*mat}], s49 offen lds", tag=('x', c))
            out.append(f)
        return out
    a(f"""s_mul_i32 s49, s89, 1792
          s_add_u32 m0, s46, {W(0)}
          s_add_u32 s49, s49, s45""")
    a.wait_smem()
    st()
    def x0pair():
        a(f"s_add_u32 m0, s64, {X(0)}")
        a(f"s_add_u32 s49, s65, {8*28672-1024}")
        a(f"buffer_load_dwordx4 {v(vx[0])}, s[4:7], s65 offen lds", tag=('x', 0))
        a(f"buffer_load_dwordx4 {v(vx[1])}, s[4:7], s49 offen offset:1024 lds", tag=('x', 0))
    a(f"buffer_load_dwordx4 {v(vw)}, s[8:11], s49 offen lds", tag=('x', 0))
    a(f"s_add_u32 m0, s46, {W(0) + 1024}")
    a(f"s_xor_b32 s54, s54, 1")
    a(f"buffer_load_dwordx4 {v(vw)}, s[12:15], s49 offen lds", tag=('x', 0))
    x0pair()
    a(f"""s_xor_b32 s64, s64, 2048
          s_mul_i32 s65, s54, {16*28672}
          s_add_u32 s65, s65, s89
          s_add_u32 s65, s65, s40""")
    if 'nob0' not in OPT: a("s_barrier")
    x0pair()
    if 'fs' in OPT: st()
    for i in range(1, 4): a(f"s_add_u32 s{40+i}, s40, {i*(8*28672-1024)}")
    rot = lambda i: L(f"s_add_u32 s{89+i}, s{88+i}, 128\ns_cmp_eq_u32 s{89+i}, 896\ns_cselect_b32 s{89+i}, 0, s{89+i}")
    for i in range(1, 3):
        for x in rot(i): a(x)
    a(f"""v_lshlrev_b32 {v(vd)}, 1, {v(t2)}
          v_xor_b32 {v(vd)}, {v(vd)}, {v(t1)}
          v_lshlrev_b32 {v(vd)}, 4, {v(vd)}
          v_mul_u32_u24 {v(t0)}, 896, {v(t0)}
          v_add_u32 {v(vd)}, {v(vd)}, {v(t0)}""")
    a(f"""v_and_b32 {v(t0)}, 15, v1
          v_bfe_u32 {v(t1)}, v1, 1, 3
          v_xor_b32 {v(t1)}, {v(t1)}, {v(t2)}
          s_and_b32 s49, s38, 2
          s_lshl_b32 s49, s49, 1
          v_xor_b32 {v(t1)}, s49, {v(t1)}
          v_lshlrev_b32 {v(t1)}, 4, {v(t1)}
          v_lshl_add_u32 {v(t1)}, {v(t0)}, 7, {v(t1)}
          s_lshl_b32 s49, s38, 13
          s_add_u32 s49, s49, {XB}
          v_add_u32 {v(xa[0][0])}, s49, {v(t1)}
          v_xor_b32 {v(xa[1][0])}, 64, {v(xa[0][0])}""")
    a(f"""v_bfe_u32 {v(t0)}, v1, 3, 2
          s_lshl_b32 s49, s39, 1
          s_and_b32 s54, s38, 1
          s_or_b32 s58, s49, s54
          v_xor_b32 {v(t0)}, s58, {v(t0)}
          v_lshlrev_b32 {v(t0)}, 5, {v(t0)}
          v_bfe_u32 {v(t1)}, v1, 2, 2
          v_lshl_add_u32 {v(t0)}, {v(t1)}, 7, {v(t0)}
          v_and_b32 {v(t1)}, 3, v1
          v_lshl_add_u32 {v(t0)}, {v(t1)}, 3, {v(t0)}
          v_lshl_add_u32 {v(t0)}, {v(t2)}, 11, {v(t0)}
          s_and_b32 s49, s38, 2
          s_lshl_b32 s49, s49, 12
          s_add_u32 s49, s49, {WB}
          v_add_u32 {v(wa[0][0])}, s49, {v(t0)}
          v_xor_b32 {v(wa[0][1])}, 32, {v(wa[0][0])}
          v_xor_b32 {v(wa[1][0])}, 0x2000, {v(wa[0][0])}
          v_xor_b32 {v(wa[1][1])}, 0x2000, {v(wa[0][1])}""")
    for i in range(4): a(f"v_mov_b32 {v(ones+i)}, 0x3f803f80")
    a(f"""v_min_u32 {v(sp+5)}, 6, v1
          v_lshlrev_b32 {v(sp+5)}, 7, {v(sp+5)}
          s_lshl_b32 s49, s2, 3
          s_add_u32 s49, s49, s3
          s_sub_u32 s49, s49, 256
          s_mul_i32 s55, s49, 896
          s_mov_b32 s22, 1605632
          s_mov_b32 s23, 0x00020000""")
    if 'fs' in OPT: st()
    for f in wdma(1) + xdma(1): f()
    if 'fs' in OPT: st()
    FIL = {}
    FIL[0] = rot(3) + rot(4) + L(f"""v_add_u32 {v(xa[0][1])}, 0x10000, {v(xa[0][0])}
          v_add_u32 {v(xa[1][1])}, 0x10000, {v(xa[1][0])}""")
    FIL[1] = L(f"""s_mul_i32 s35, s34, 7
          s_sub_u32 s35, s37, s35
          s_lshl_b32 s50, s33, 2
          s_add_u32 s50, s50, s34
          s_mul_i32 s51, s38, {448*896}
          s_mul_i32 s54, s39, {16*896}
          s_add_u32 s51, s51, s54
          s_lshl_b32 s54, s35, 7
          s_add_u32 s51, s51, s54
          s_add_u32 s52, s51, {8*896-1024}
          s_xor_b32 s54, s39, s50
          s_and_b32 s54, s54, 1
          s_lshl_b32 s54, s54, 11
          s_lshl_b32 s53, s38, 12
          s_add_u32 s53, s53, s54""")
    def ddma(u):
        out = []
        for i in range(2):
            def f(i=i):
                a(f"s_mul_i32 s49, s{89+u%7}, 448")
                if u == 7: a(f"s_add_u32 s{51+i}, s{51+i}, 28672")
                a(f"s_add_u32 m0, s53, {USLOT[u]}")
                a(f"s_add_u32 s49, s49, s{51+i}")
                a(f"buffer_load_dwordx4 {v(vd)}, s[20:23], s49 offen offset:{i*1024} lds", tag=('d', u))
            out.append(f)
        return out
    FIL[2] = ["\n".join(rot(5)), "\n".join(rot(6))] + L(f"""v_bfe_u32 {v(t0)}, v1, 3, 2
          s_and_b32 s54, s38, 2
          v_xor_b32 {v(t0)}, s54, {v(t0)}
          v_lshlrev_b32 {v(t0)}, 5, {v(t0)}
          v_lshl_add_u32 {v(t0)}, {v(t1)}, 3, {v(t0)}
          v_lshrrev_b32 {v(t1)}, 2, v1
          v_lshl_add_u32 {v(t0)}, {v(t1)}, 7, {v(t0)}
          s_lshl_b32 s54, s38, 12
          v_add_u32 {v(da[0])}, s54, {v(t0)}""") + [f"v_xor_b32 {v(da[i])}, {32*i}, {v(da[0])}" for i in range(1, 4)]
    FIL[0] = ["\n".join(FIL[0][0:3]), "\n".join(FIL[0][3:6])] + FIL[0][6:]
    dbase = [USLOT[0]]
    def dreads(u):
        out = []
        if UBASE[u] != dbase[0]:
            off = UBASE[u] - dbase[0]
            for i in range(4): out.append(f"v_add_u32 {v(da[i])}, {off & 0xffffffff:#x}, {v(da[i])}")
            dbase[0] = UBASE[u]
        off = USLOT[u] - dbase[0]
        for i in range(4):
            for h in range(2):
                out.append(f"ds_read_b64_tr_b16 {v(wd[u%5]+4*i+2*h,2)}, {v(da[i])} offset:{off + h*2048}")
        return out
    dbg = sp + 1; pv = sp + 2; sta = sp + 3
    FIL[3] = L(f"""v_and_b32 {v(dbg)}, 31, v1
          v_lshlrev_b32 {v(dbg)}, 3, {v(dbg)}
          v_and_b32 {v(sta)}, 15, v1
          v_lshlrev_b32 {v(sta)}, 4, {v(sta)}
          s_lshl_b32 s56, s48, 8
          s_add_u32 s56, s56, {OFF_ST}
          s_mul_i32 s57, s48, 56
          s_lshl_b32 s54, s37, 1
          s_add_u32 s57, s57, s54
          s_add_u32 s57, s57, s39
          s_lshl_b32 s57, s57, 12
          s_mov_b32 s26, 1835008
          s_mov_b32 s27, 0x00020000""")
    FIL[4] = L(f"""s_mul_i32 s59, s50, 56
          s_mul_i32 s54, s38, 14
          s_add_u32 s59, s59, s54
          s_lshl_b32 s59, s59, 12
          s_lshl_b32 s54, s39, 11
          s_add_u32 s59, s59, s54
          s_lshl_b32 s60, s48, 1
          s_add_u32 s60, s60, s39
          s_lshl_b32 s60, s60, 6
          s_add_u32 s60, s60, s37
          s_lshl_b32 s60, s60, 2
          s_add_u32 s60, s60, {OFF_F2}
          s_lshl_b32 s61, s50, 9
          s_add_u32 s61, s61, {OFF_F2}""")
    FIL[5] = L(f"""s_mul_i32 s36, s38, 7
          s_lshl_b32 s36, 0x7f, s36
          s_lshl_b32 s62, s3, 15
          s_lshl_b32 s54, s33, 10
          s_add_u32 s62, s62, s54
          s_add_u32 s62, s62, {OFF_FL + 900}
          s_lshl_b32 s63, s58, 9
          s_add_u32 s63, s63, s50
          s_mul_i32 s63, s63, 896
          s_lshl_b32 s54, s35, 7
          s_add_u32 s63, s63, s54
          s_and_b32 s54, s38, 2
          s_lshl_b32 s54, s54, 5
          s_add_u32 s63, s63, s54""")
    FIL[7] = L(f"""s_lshl_b32 s32, s50, 16
          s_lshl_b32 s54, s3, 13
          s_add_u32 s32, s32, s54
          s_add_u32 s32, s32, {OFF_V2}
          s_add_u32 s47, s32, 3072
          v_lshlrev_b32 {v(sp)}, 4, {v(sta)}
          v_and_b32 {v(sp)}, 256, {v(sp)}""")
    def wreads(S):
        c, e = divmod(S, 2)
        return [f"ds_read_b64_tr_b16 {v(wf[S&1][2*mat+F]+2*u,2)}, {v(wa[e][F])} offset:{(c%3)*16384 + mat*1024 + u*512}"
                for F in range(2) for mat in range(2) for u in range(2)]
    def xreads(S):
        c, e = divmod(S, 2); s = c % 3
        return [f"ds_read_b128 {v(xf[S&1][nt],4)}, {v(xa[e][s>>1])} offset:{(s&1)*32768 + nt*2048}" for nt in range(4)]
    def reads(S):
        w = wreads(S); x = xreads(S)
        return [x[0]] + w[0:4] + [x[1]] + w[4:8] + [x[2], x[3]]
    a.wait_tag(('x', 0))
    if 'fs' in OPT: st()
    a("s_barrier")
    st()
    for x in reads(0): a(x)
    ch = lambda c: wdma(c) + xdma(c)
    tou = [] if 'nomall' in OPT else [f"buffer_load_dword {v(sp+4)}, {v(sp+5)}, s[20:23], s55 offen"]
    CH = {c: ch(c) for c in range(2, 7)}
    SCH = opt('sch', 'T24,2232,34,U,44,53,53,V,64').split(',')
    def sched(S):
        out = []; t = SCH[S]; i = 0
        while i < len(t):
            if t[i] == 'T': out += tou; i += 1
            elif t[i] == 'U': out += ddma(0) + [CH[4].pop(0), CH[4].pop(0)]; i += 1
            elif t[i] == 'V': out += ddma(1) + [CH[6].pop(0), CH[6].pop(0)]; i += 1
            else:
                c = int(t[i]); assert S >= 2 * (c - 3) + 1 and S < 2 * c - 1
                for _ in range(int(t[i + 1])): out.append(CH[c].pop(0))
                i += 2
        return out
    for S in range(14):
        c, e = divmod(S, 2)
        mains = []
        for nt in range(4):
            for F in range(2):
                for mat in range(2):
                    mains.append(m16(acc[mat][F][nt], wf[S & 1][2 * mat + F], xf[S & 1][nt], '0' if S == 0 else None))
        if e == 0:
            for mat in range(2):
                mains.insert(2 + mat, m16(cs[mat], wf[S & 1][2 * mat], ones, '0' if S == 0 else None))
        pre = []; rd = []; dm = []; ex = []
        if e == 1:
            def sync(c=c):
                if 'fine' in OPT: st()
                if c < 6: a.wait_tag(('x', c + 1))
                if c == 2: a.wait_tag(('d', 0))
                if c == 4: a.wait_tag(('d', 1))
                if c == 5: a.wait_tag(('d', 4))
                a.wait(lg=0)
                a("s_barrier")
                if 'fine' in OPT: st()
                if c == 6 and PRIO:
                    a("s_cmp_lg_u32 s39, 0\ns_cbranch_scc1 NOPR\ns_setprio 2")
                    a.raw("NOPR:")
            pre = [sync]
        if S < 9: dm = sched(S)
        else: dm = {9: lambda: ddma(2) + ddma(3), 10: lambda: ddma(4), 11: lambda: ddma(5) + ddma(6), 12: lambda: ddma(7),
                    13: lambda: ddma(8) + ddma(9) + ddma(10)}[S]()
        if S < 13: rd = reads(S + 1)
        if S == 8: dm = dm + [f"buffer_load_dword {v(pv)}, {v(dbg)}, s[28:31], 0 offen sc1"]
        if S == 10:
            def chk():
                spin(a, pv, dbg, 's[28:31]', '0', '-1', first=False)
                a(f"buffer_load_dwordx4 {v(stv,4)}, {v(sta)}, s[16:19], s56 offen sc1")
                a(f"buffer_load_dword {v(sp+4)}, {v(sp)}, s[16:19], s61 offen sc1")
            dm = dm + [chk]
        if S == 6: ex = dreads(0)
        if S == 10: ex = dreads(1)
        if S == 11:
            ex = dreads(2); d3 = dreads(3); ex += d3[:8]
        if S == 12:
            ex = d3[8:] + dreads(4)
            ex += [f"s_lshl_b32 s54, s3, 11", f"v_add_u32 {v(t0)}, s54, v2",
                   f"ds_write_b128 {v(t0)}, {v(cs[0],4)}", f"ds_write_b128 {v(t0)}, {v(cs[1],4)} offset:1024"]
        if S == 13:
            ex = [f"s_and_b32 s54, s3, 5", f"s_lshl_b32 s54, s54, 11", f"v_add_u32 {v(t0)}, s54, v2", f"v_xor_b32 {v(t1)}, 0x800, {v(t0)}"]
            for F in range(2):
                for mat in range(2):
                    for hp in range(2):
                        dst = (wf[0][0] if hp == 0 else xf[0][0]) + 8 * mat + 4 * F
                        ex.append(f"ds_read_b128 {v(dst,4)}, {v(t1 if F else t0)} offset:{hp*4096 + mat*1024}")
        ex = ex + FIL.get(S, [])
        fills = pre + merge(*[l for l in (rd, dm) if l]) + ex
        weave(a, mains, fills)
    assert all(not l for l in CH.values())
    st()
    cv = wf[0][0]
    nm = wf[1][0]; c1 = nm + 4; d2 = nm + 8
    for i in range(4):
        a(f"v_lshlrev_b32 {v(d2+i)}, 16, {v(stv+i)}")
        a(f"v_and_b32 {v(nm+i)}, 0xffff0000, {v(stv+i)}")
        a(f"v_rcp_f32 {v(c1+i)}, {v(d2+i)}")
    for i in range(0, 16, 2): a(pk('add', cv + i, cv + i, xf[0][0] + i))
    for i in range(4):
        a(f"v_mul_f32 {v(d2+i)}, {v(d2+i)}, {v(d2+i)}")
        a(f"v_mul_f32 {v(c1+i)}, {lit(-math.log2(math.e))}, {v(c1+i)}")
    late = ddma(11) + ddma(12) + ddma(13)
    for nt in range(4):
        e = xf[0][0] + 8 * (nt & 1); hp = xf[1][nt]
        idx = [(F, r) for F in range(2) for r in range(4)]
        G = lambda F, r: acc[0][F][nt] + r
        U = lambda F, r: acc[1][F][nt] + r
        pi = [(F, r) for F in range(2) for r in (0, 2)]
        for F, r in pi: a(pk('fma', G(F,r), cv+4*F+r, ('b', nm+nt), G(F,r)))
        for F, r in pi: a(pk('mul', e+4*F+r, G(F,r), ('b', c1+nt)))
        if nt < 3: late[2 * nt]()
        for F, r in pi: a(pk('fma', U(F,r), cv+8+4*F+r, ('b', nm+nt), U(F,r)))
        for F, r in idx: a(f"v_exp_f32 {v(e+4*F+r)}, {v(e+4*F+r)}")
        for F, r in pi: a(pk('mul', U(F,r), U(F,r), G(F,r)))
        for F, r in pi: a(pk('fma', e+4*F+r, e+4*F+r, ('b', d2+nt), ('b', d2+nt)))
        if nt < 3: late[2 * nt + 1]()
        for F, r in idx: a(f"v_rcp_f32 {v(e+4*F+r)}, {v(e+4*F+r)}")
        for F, r in pi: a(pk('mul', U(F,r), U(F,r), e+4*F+r))
        for i in range(4): a(f"v_cvt_pk_bf16_f32 {v(hp+i)}, {v(U(i>>1,2*(i&1)))}, {v(U(i>>1,2*(i&1)+1))}")
        a(f"buffer_store_dwordx4 {v(hp,4)}, v2, s[16:19], s57 offen offset:{nt*1024} sc1", tag='hs')
    st()
    T2 = sp
    vh = vx; pa = vw; pv = xa[0][0]; vo = xa[0][1]; v2a = xa[1][0]; one = xa[1][1]
    xv = wa[0][0]
    assert xv % 2 == 0 and wa[1][1] == xv + 3
    hf = [[big + 8 * s + 4 * N for N in range(2)] for s in range(14)]
    ab = [[big + 112 + 16 * N + 4 * i for i in range(4)] for N in range(2)]
    T2o = big + 40
    va = [da[0], da[1]]
    a(f"""s_and_b32 s49, s38, 1
          s_lshl_b32 s49, s49, 10
          v_add_u32 {v(vh[0])}, s49, v2
          v_xor_b32 {v(vh[1])}, 0x400, {v(vh[0])}
          v_mov_b32 {v(one)}, 1""")
    def hloads(u0, u1):
        for u in range(u0, u1):
            a(f"s_lshl_b32 s49, s{89+u%7}, 6")
            if u == 7: a(f"s_add_u32 s59, s59, 4096")
            a(f"s_add_u32 s49, s49, s59")
            for N in range(2):
                a(f"buffer_load_dwordx4 {v(hf[u][N],4)}, {v(vh[N])}, s[16:19], s49 offen sc1")
    tmp = hf[7][0]
    F1 = L(f"""v_and_b32 {v(t0)}, 15, v1
          v_mul_u32_u24 {v(vo)}, 28672, {v(t0)}
          v_lshl_add_u32 {v(vo)}, {v(t2)}, 3, {v(vo)}
          s_lshl_b32 s54, s58, 4
          v_add_u32 {v(t0)}, s54, {v(t0)}
          v_cvt_f32_u32 {v(t0)}, {v(t0)}
          v_mul_f32 {v(t0)}, {lit(1/64)}, {v(t0)}
          v_cvt_f32_u32 {v(t1)}, {v(t2)}
          v_mul_f32 {v(t1)}, 4.0, {v(t1)}
          v_mul_f32 {v(tmp)}, {v(t1)}, {v(t0)}""")
    F1 += [f"v_fmamk_f32 {v(tmp+k)}, {v(t0)}, {lit(float(16*(k>>2)+(k&3)))}, {v(tmp)}" for k in range(1, 8)]
    F1 += [f"v_cos_f32 {v(tmp+8+k)}, {v(tmp+k)}" for k in range(8)]
    F1 += [f"v_sin_f32 {v(tmp+k)}, {v(tmp+k)}" for k in range(8)]
    F1 += L(f"""v_lshlrev_b32 {v(t1)}, 31, v1
          v_or_b32 {v(t1)}, 1.0, {v(t1)}
          v_cmp_gt_u32 vcc, 16, v1
          v_cndmask_b32 {v(tmp)}, {v(tmp)}, {v(t1)}, vcc""")
    F1 += [f"v_cvt_pk_bf16_f32 {v(T2+k)}, {v(tmp+8+k)}, {v(tmp+k)}" for k in range(8)]
    F1 += L(f"""v_bfe_u32 {v(t0)}, v1, 2, 2
          s_and_b32 s54, s3, 1
          v_xor_b32 {v(t0)}, s54, {v(t0)}
          s_lshl_b32 s54, s35, 2
          v_add_u32 {v(t0)}, s54, {v(t0)}
          v_subrev_u32 {v(t1)}, 14, {v(t0)}
          v_min_u32 {v(t0)}, {v(t0)}, {v(t1)}
          v_lshlrev_b32 {v(t0)}, 6, {v(t0)}
          v_sub_u32 {v(t1)}, 1344, {v(t0)}
          v_cmp_gt_u32 vcc, 448, {v(t0)}
          v_cndmask_b32 {v(t0)}, {v(t1)}, {v(t0)}, vcc
          v_lshl_add_u32 {v(t0)}, {v(t2)}, 10, {v(t0)}
          v_and_b32 {v(t1)}, 3, v1
          v_lshl_add_u32 {v(v2a)}, {v(t1)}, 4, {v(t0)}""")
    xld = [f"buffer_load_dwordx2 {v(xv+2*cl,2)}, {v(vo)}, s[4:7], s63 offen offset:{cl*32}" for cl in range(2)]
    F2 = []
    for cl in range(2):
        F2 += [f"""s_and_b32 s0, s38, 2
              s_add_u32 s0, s0, {cl}
              s_lshl_b32 s54, s35, 2
              s_add_u32 s54, s54, s0""", f"""s_cmp_ge_u32 s54, 14
              s_cselect_b32 s64, 14, 0
              s_cselect_b32 s65, 0x80008000, 0
              s_sub_u32 s54, s54, s64""", f"""s_cmp_ge_u32 s54, 7
              s_cselect_b32 s64, 15, 0
              s_cselect_b32 s54, 0x80008000, 0
              s_xor_b32 s65, s65, s54"""] + L(f"""v_and_b32 {v(t1)}, 1, {v(t2)}
              v_xor_b32 {v(t1)}, s0, {v(t1)}
              v_lshlrev_b32 {v(t1)}, 6, {v(t1)}
              v_lshl_add_u32 {v(t1)}, {v(t2)}, 11, {v(t1)}
              v_and_b32 {v(va[cl])}, 15, v1
              v_xor_b32 {v(va[cl])}, s64, {v(va[cl])}
              v_lshl_add_u32 {v(va[cl])}, {v(va[cl])}, 2, {v(t1)}""")
        F2 += [f"v_xor_b32 {v(T2o+8*cl+k)}, s65, {v(T2+k)}" for k in range(8)]
    ra = [da[2], da[3], vd, t0]
    for k in range(1, 5):
        F2 += [f"s_xor_b32 s54, s3, {k&3}\ns_mul_i32 s54, s54, 6144\ns_add_u32 s54, s54, {RB}", f"v_add_u32 {v(ra[k-1])}, s54, v2"]
    flag = lambda off, sc: f"buffer_store_dword {v(one)}, off, s[16:19], s60 offset:{off}{sc}"
    back = None if 'noback' in OPT else f"buffer_load_dword {v(t1)}, {v(t0)}, s[16:19], s57 offen sc1"
    a(f"v_lshlrev_b32 {v(pa)}, 2, v1")
    a(f"v_lshlrev_b32 {v(t0)}, 7, v1")
    a(f"s_mov_b32 exec_hi, 0\nbuffer_load_dword {v(pv)}, {v(pa)}, s[16:19], s61 offen sc1\ns_mov_b32 exec_lo, 1")
    a.wait_tag('hs')
    a(flag(0, ''))
    a("s_mov_b32 exec_lo, -1")
    st()
    a("s_cmp_lg_u32 s39, 0")
    a("s_cbranch_scc0 BX")
    if back: a.raw("    " + back)
    a("s_branch BY")
    a.raw("BX:")
    spinh(a, pv, pa, 0, '0x0fffffff', flag(128, ' sc1'), back)
    a.raw("BY:")
    a("s_mov_b64 exec, -1")
    a("s_barrier")
    st()
    LA = int(opt('la', 3))
    hloads(0, LA)
    if PRIO: a("s_setprio 0")
    a.vmq.insert(0, dict(w={('v', t1)}, tag=None))
    F1 = [x.replace(v(t1), v(tmp+16)) for x in F1]
    for x in F1 + xld: a(x)
    PS = int(opt('ps', 1)); B2 = int(opt('b2', 11))
    for s in range(14):
        dr = dreads(s + 5) if s + 5 < 14 else []
        pre = dr[:len(dr) - 8]; dr = dr[len(pre):]
        fl = F2[len(F2) * (s - 9) // 5: len(F2) * (s - 8) // 5] if s >= 9 else []
        for x in pre: a(x)
        for i in range(4):
            for N in range(2):
                a(m16(ab[N][i], wd[s % 5] + 4 * i, hf[s][N], '0' if s == 0 else None))
                k = 2 * i + N
                for x in fl[len(fl) * k // 8: len(fl) * (k + 1) // 8]: a(x)
            for x in dr[2 * i: 2 * i + 2]: a(x)
            if i == 0:
                if s + LA == 7:
                    st()
                    spinh(a, pv, pa, 256, 's36', flag(128, ' sc1'))
                    st()
                    a(f"v_and_b32 {v(pa)}, 3, v1")
                    a(f"v_lshlrev_b32 {v(pa)}, 13, {v(pa)}")
                if s == PS: a(f"s_mov_b32 exec_hi, 0\nbuffer_load_dword {v(pv)}, {v(pa)}, s[16:19], s61 offen offset:256 sc1\ns_mov_b32 exec_hi, -1")
                if s + LA < 14: hloads(s + LA, s + LA + 1)
                if s + LA == 13:
                    a(f"buffer_load_dword {v(pv)}, {v(pa)}, s[16:19], s62 offen sc1")
                    a("s_mov_b64 exec, 1\n" + flag(128, ' sc1') + "\ns_mov_b64 exec, -1")
        if s == 0: st()
        if s == B2:
            assert s + LA >= 13
            a.wait(lg=0)
            a("s_barrier")
    def v2dma():
        a("s_lshl_b32 m0, s3, 11")
        a.raw("    s_nop 0")
        a.raw(f"    buffer_load_dwordx4 {v(v2a)}, s[16:19], s32 offen sc1 lds")
        a.raw(f"    buffer_load_dwordx4 {v(v2a)}, s[16:19], s47 offen offset:1024 sc1 lds")
    a(f"v_cmp_ne_u32 vcc, 1, {v(pv)}")
    a(f"s_and_b32 s98, vcc_lo, 15")
    a(f"s_cbranch_scc1 V2LATE")
    v2dma()
    a.raw("V2LATE:")
    st()
    for k in range(1, 4):
        C, N = k >> 1, k & 1
        for cl in range(2):
            a(f"ds_write_b128 {v(ra[k-1])}, {v(ab[N][2*C+cl],4)} offset:{(k-1)*2048 + cl*1024}")
    pr = big; e = big + 24; xs = big + 32
    for i in range(4):
        a(f"v_lshlrev_b32 {v(xs+2*i)}, 16, {v(xv+i)}")
        a(f"v_and_b32 {v(xs+2*i+1)}, 0xffff0000, {v(xv+i)}")
    a(f"v_mov_b32 {v(t1)}, {lit(2048*448/2)}")
    a(f"v_mov_b32 {v(t2)}, {lit(-math.log2(math.e))}")
    a.wait(lg=0)
    a("s_barrier")
    for k in range(3):
        for cl in range(2):
            a(f"ds_read_b128 {v(pr+8*k+4*cl,4)}, {v(t0)} offset:{k*2048 + cl*1024}")
    y = ab[0][0]
    for i in range(0, 8, 2): a(pk('add', y+i, y+i, pr+i))
    for i in range(0, 8, 2): a(pk('add', pr+8+i, pr+8+i, pr+16+i))
    for i in range(0, 8, 2): a(pk('add', y+i, y+i, pr+8+i))
    for i in range(0, 8, 2): a(pk('mul', e+i, y+i, ('b', t2)))
    for i in range(8): a(f"v_exp_f32 {v(e+i)}, {v(e+i)}")
    for i in range(0, 8, 2): a(pk('fma', e+i, e+i, ('b', t1), ('b', t1)))
    for i in range(8): a(f"v_rcp_f32 {v(e+i)}, {v(e+i)}")
    for i in range(0, 8, 2): a(pk('mul', y+i, y+i, e+i))
    st()
    a("s_cmp_eq_u32 s98, 0")
    a("s_cbranch_scc1 V2OK")
    spin(a, pv, pa, 's[16:19]', 's62', '0xf')
    v2dma()
    a.raw("V2OK:")
    st()
    a.raw("    s_waitcnt vmcnt(0)")
    a("s_barrier")
    st()
    vf = big + 56; so = big + 88
    n = 0
    for cl in range(2):
        for par in range(2):
            for kk in range(2):
                for hh in range(2):
                    o = (16 * kk + 2 * hh) * 2 + par
                    a(f"ds_read2st64_b32 {v(vf+4*n+2*hh,2)}, {v(va[cl])} offset0:{o} offset1:{o+2}")
                n += 1
    n = 0
    for cl in range(2):
        for par in range(2):
            for kk in range(2):
                b = (T2 if par == 0 else T2o + 8 * cl) + 4 * kk
                a(m16(so + 4 * cl, vf + 4 * n, b, '0' if (par == 0 and kk == 0) else None)); n += 1
    OST = ' nt' if 'ont' in OPT else ''
    for cl in range(2):
        for i in (0, 2): a(pk('fma', xs+4*cl+i, so+4*cl+i, y+4*cl+i, xs+4*cl+i))
        for i in range(2): a(f"v_cvt_pk_bf16_f32 {v(xv+2*cl+i)}, {v(xs+4*cl+2*i)}, {v(xs+4*cl+2*i+1)}")
        a(f"buffer_store_dwordx2 {v(xv+2*cl,2)}, {v(vo)}, s[24:27], s63 offen offset:{cl*32}{OST}")
    st.dump(t0)
    a("s_endpgm")
    return R.maxv

def spec(a, st):
    XS = 928; VS = 1032
    WB = 66560; TB = WB + 65536; SB = TB + 16384
    a("""s_load_dwordx2 s[20:21], s[0:1], 8
         s_load_dwordx2 s[24:25], s[0:1], 16
         s_mov_b32 s22, 921600
         s_mov_b32 s23, 0x00020000
         s_mov_b32 s26, 921600
         s_mov_b32 s27, 0x00020000""")
    R = RegAlloc(start=3, limit=256)
    t0 = R.get(); t1 = R.get(); t2 = R.get(); t3 = R.get(); t4 = R.get()
    mi = R.get(8, 2)
    IT = R.get(56, 2); FT = R.get(56, 2); AC = R.get(64, 2); AF = R.get(32, 2); TF = R.get(32, 2)
    a.vmq = [dict(w={('v', 255)}, tag=None)] + [dict(w=set(), tag='x') for _ in range(8)]
    st()
    a(f"""s_and_b32 s33, s3, 3
          s_lshr_b32 s34, s3, 2
          s_lshr_b32 s44, s33, 1
          s_and_b32 s45, s3, 1
          s_lshl_b32 s37, s2, 13
          s_add_u32 s37, s37, {OFF_FL}
          s_lshl_b32 s49, s2, 9
          s_add_u32 s49, s49, {OFF_F2}
          v_lshlrev_b32 {v(t0)}, 10, v1""")
    for i in range(4): a(f"v_mov_b32 {v(AF+i)}, 0")
    wave0(a, ["s_mov_b32 exec_hi, 0", f"buffer_store_dwordx4 {v(AF,4)}, v2, s[16:19], s49 offen sc1", "s_mov_b32 exec_lo, 0xff",
              f"buffer_store_dwordx2 {v(AF,2)}, {v(t0)}, s[16:19], s37 offen offset:896 sc1", "s_mov_b64 exec, -1"])
    a(f"""v_and_b32 {v(t0)}, 15, v1
          s_lshl_b32 s49, s33, 4
          v_add_u32 {v(t0)}, s49, {v(t0)}
          v_cmp_eq_u32 vcc, 1, {v(t0)}
          v_cndmask_b32 {v(t0)}, {v(t0)}, 64, vcc
          v_and_b32 {v(t1)}, 1, {v(t0)}
          v_cvt_f32_u32 {v(t1)}, {v(t1)}
          v_mul_f32 {v(t1)}, {lit(-0.25)}, {v(t1)}
          v_lshrrev_b32 {v(t0)}, 1, {v(t0)}
          v_cvt_f32_u32 {v(t0)}, {v(t0)}
          v_mul_f32 {v(t0)}, {lit(1/64)}, {v(t0)}
          v_lshrrev_b32 {v(t4)}, 4, v1
          v_lshlrev_b32 {v(t2)}, 2, {v(t4)}
          v_cvt_f32_u32 {v(t2)}, {v(t2)}
          v_fma_f32 {v(TF)}, {v(t2)}, {v(t0)}, {v(t1)}""")
    for k in range(1, 16): a(f"v_fmamk_f32 {v(TF+k)}, {v(t0)}, {lit(float(16*(k>>2)+(k&3)))}, {v(TF)}")
    for k in range(16): a(f"v_cos_f32 {v(TF+k)}, {v(TF+k)}")
    a(f"""v_lshrrev_b32 {v(t0)}, 2, v1
          v_mul_u32_u24 {v(t0)}, {XS}, {v(t0)}
          v_and_b32 {v(t1)}, 3, v1
          v_lshlrev_b32 {v(t1)}, 3, {v(t1)}
          v_add_u32 {v(t2)}, {v(t0)}, {v(t1)}
          v_sub_u32 {v(t3)}, {v(t0)}, {v(t1)}
          s_lshl_b32 s42, s34, 7
          s_lshl_b32 s49, s34, 3
          s_sub_u32 s43, 32, s49""")
    for t in range(4):
        if t: a("s_add_u32 s42, s42, s43")
        a(f"v_add_u32 {v(mi+t)}, s42, {v(t2)}")
        a(f"s_sub_u32 s49, 440, s42")
        a(f"v_add_u32 {v(mi+4+t)}, s49, {v(t3)}")
    a(f"""v_lshrrev_b32 {v(t0)}, 3, v1
          v_mul_u32_u24 {v(t1)}, {XS}, {v(t0)}
          v_and_b32 {v(t2)}, 7, v1
          v_lshl_add_u32 {v(t1)}, {v(t2)}, 4, {v(t1)}
          v_add_u32 {v(t1)}, s36, {v(t1)}""")
    s1 = [AF, AF + 1]; s2 = [AF + 2, AF + 3]
    a(f"""s_lshl_b32 s49, s3, 5
          s_add_u32 s49, s49, {SB}
          v_lshl_add_u32 {v(t2)}, {v(t0)}, 2, s49
          s_lshl_b32 s49, s34, 6
          s_lshl_b32 s46, s45, 5
          s_add_u32 s49, s49, s46
          s_lshl_b32 s46, s44, 3
          s_add_u32 s49, s49, s46
          s_add_u32 s49, s49, {SB + 256}
          v_lshrrev_b32 {v(t3)}, 5, v1
          v_lshl_add_u32 {v(t3)}, {v(t3)}, 4, s49
          v_and_b32 {v(AF+4)}, 3, {v(t0)}
          v_lshl_add_u32 {v(t3)}, {v(AF+4)}, 1, {v(t3)}
          s_lshl_b32 s46, s45, 7
          s_lshr_b32 s49, s3, 1
          s_lshl_b32 s49, s49, 2
          s_add_u32 s46, s46, s49
          s_add_u32 s46, s46, {SB + 512}
          v_lshl_add_u32 {v(AF+4)}, {v(t0)}, 4, s46
          v_lshlrev_b32 {v(t0)}, 2, v1
          v_add_u32 {v(AF+20)}, {SB + 512}, {v(t0)}
          s_lshl_b32 s46, s2, 8
          s_add_u32 s46, s46, {OFF_ST}
          v_lshlrev_b32 {v(t4)}, 4, {v(t4)}
          v_add_u32 {v(t4)}, {SB}, {v(t4)}""")
    tv = AC + 32; u0, u1, u2, u3 = AC + 48, AC + 49, AC + 50, AC + 51
    a(f"""v_and_b32 {v(u0)}, 31, v1
          v_lshrrev_b32 {v(u1)}, 5, v1
          v_lshlrev_b32 {v(u1)}, 2, {v(u1)}
          s_lshl_b32 s49, s44, 4
          v_add_u32 {v(u1)}, s49, {v(u1)}
          s_cmp_eq_u32 s34, 0
          s_cselect_b64 vcc, -1, 0
          v_cndmask_b32 {v(u2)}, {v(u1)}, {v(u0)}, vcc
          v_cndmask_b32 {v(u3)}, {v(u0)}, {v(u1)}, vcc""")
    a(f"""v_cmp_le_u32 s[62:63], 16, {v(u2)}
          v_cmp_eq_u32 s[50:51], 0, {v(u2)}
          s_cmp_eq_u32 s2, 0
          s_cselect_b64 s[52:53], -1, 0
          s_and_b64 s[54:55], s[62:63], s[52:53]
          s_and_b64 s[50:51], s[50:51], s[52:53]
          s_cmp_eq_u32 s45, 1
          s_cselect_b64 s[50:51], s[50:51], 0
          s_and_b64 s[56:57], s[50:51], vcc
          v_lshlrev_b32 {v(u2)}, 6, {v(u2)}
          v_add_u32 {v(u2)}, s2, {v(u2)}
          v_subrev_u32 {v(u0)}, 992, {v(u2)}
          v_cndmask_b32 {v(u2)}, {v(u2)}, {v(u0)}, s[54:55]
          v_mov_b32 {v(u0)}, 1024
          v_cndmask_b32 {v(u2)}, {v(u2)}, {v(u0)}, s[56:57]
          v_cvt_f32_u32 {v(u2)}, {v(u2)}
          v_cvt_f32_u32 {v(u3)}, {v(u3)}
          v_mul_f32 {v(u2)}, {lit(1/2048)}, {v(u2)}
          v_mul_f32 {v(u0)}, {lit(1/32)}, {v(u3)}
          v_cndmask_b32 {v(u0)}, {v(u0)}, {v(u2)}, vcc
          s_cmp_eq_u32 s45, 1
          s_cselect_b32 s49, {lit(-0.25)}, 0
          v_mov_b32 {v(u1)}, s49
          v_cndmask_b32 {v(u1)}, {v(u1)}, 0, s[56:57]
          v_fma_f32 {v(tv)}, {v(u2)}, {v(u3)}, {v(u1)}""")
    for i in range(1, 8): a(f"v_fmamk_f32 {v(tv+i)}, {v(u0)}, {lit(float(8*(i>>2)+(i&3)))}, {v(tv)}")
    a(f"v_mul_f32 {v(u3)}, 0.5, {v(u3)}")
    a(f"v_cndmask_b32 {v(tv)}, {v(tv)}, {v(u3)}, s[50:51]")
    for i in range(8): a(f"v_cos_f32 {v(tv+i)}, {v(tv+i)}")
    for i in range(4): a(f"v_cvt_pk_bf16_f32 {v(tv+8+i)}, {v(tv+2*i)}, {v(tv+2*i+1)}")
    a(f"""s_andn2_b64 s[58:59], s[52:53], s[62:63]
          s_cmp_lg_u32 s2, 0
          s_cselect_b32 s49, s45, 0
          s_mul_i32 s49, s49, 0x80008000""")
    for i in range(4): a(f"v_xor_b32 {v(tv+12+i)}, s49, {v(tv+8+i)}")
    for i in range(4): a(f"v_cndmask_b32 {v(tv+12+i)}, {v(tv+12+i)}, 0, s[58:59]")
    for i in range(4): a(f"v_cndmask_b32 {v(tv+8+i)}, {v(tv+8+i)}, 0, s[54:55]")
    a(f"""s_lshl_b32 s60, s34, 3
          s_add_u32 s60, s60, s44
          s_lshl_b32 s60, s60, 10
          s_add_u32 s60, s60, {TB}
          s_mul_i32 s49, s45, 6144
          s_add_u32 s49, s49, s60
          v_add_u32 {v(u0)}, s49, v2
          s_cmp_eq_u32 s2, 0
          s_cselect_b32 s49, 0, 1
          s_xor_b32 s49, s49, s45
          s_lshl_b32 s49, s49, 11
          s_add_u32 s49, s49, s60
          v_add_u32 {v(u1)}, s49, v2""")
    a(f"ds_write_b128 {v(u0)}, {v(tv+8,4)}")
    a(f"ds_write_b128 {v(u1)}, {v(tv+12,4)} offset:2048")
    w0, w1, w2, w3 = FT + 52, FT + 53, FT + 54, FT + 55
    a(f"""s_lshl_b32 s38, s3, 8
          s_add_u32 s38, s38, s2
          s_mul_i32 s49, s34, 992
          s_cmp_eq_u32 s2, 0
          s_cselect_b32 s49, s49, 0
          s_sub_u32 s38, s38, s49
          s_sub_u32 s39, 2048, s38
          s_cmp_eq_u32 s38, 0
          s_cselect_b32 s40, 1024, s39
          v_and_b32 {v(w0)}, 31, v1
          v_lshlrev_b32 {v(w0)}, 4, {v(w0)}
          v_cmp_gt_u32 vcc, 32, v1
          v_mov_b32 {v(w1)}, s38
          v_mov_b32 {v(w2)}, s39
          v_mov_b32 {v(w3)}, s40
          v_cndmask_b32 {v(w2)}, {v(w2)}, {v(w1)}, vcc
          v_cndmask_b32 {v(w3)}, {v(w3)}, {v(w1)}, vcc
          v_mul_u32_u24 {v(w2)}, 450, {v(w2)}
          v_mul_u32_u24 {v(w3)}, 450, {v(w3)}
          v_and_b32 {v(w2)}, 0xffffffc0, {v(w2)}
          v_and_b32 {v(w3)}, 0xffffffc0, {v(w3)}
          v_add_u32 {v(w2)}, {v(w2)}, {v(w0)}
          v_add_u32 {v(w3)}, {v(w3)}, {v(w0)}
          v_mov_b32 {v(w0)}, {(-28800) & 0xffffffff:#x}
          v_mov_b32 {v(w1)}, 28800
          v_cndmask_b32 {v(w0)}, {v(w0)}, {v(w1)}, vcc
          s_lshl_b32 s41, s3, 13""")
    wdm = []
    for i in range(4):
        for mat in range(2):
            wdm.append((f"v_add_u32 {v(w2)}, {v(w2)}, {v(w0)}\n" if i and not mat else "") +
                       f"s_add_u32 m0, s41, {WB + i*2048 + mat*1024}\n" +
                       f"buffer_load_dwordx4 {v(w2 if i else w3)}, s[{20+4*mat}:{23+4*mat}], 0 offen lds")
    NW0 = int(OPT[OPT.index('nw0') + 1]) if 'nw0' in OPT else 4
    a.wait_smem()
    if NW0:
        a("s_barrier")
        for x in wdm[:NW0]: a(x)
    wdm = wdm[NW0:]
    st()
    if PRIO: a("s_setprio 3")
    a.wait_tag('x')
    st()
    for i in range(7): a(f"ds_read_b128 {v(AC+4*i,4)}, {v(t1)} offset:{i*128}")
    for i in range(28):
        a(f"v_dot2c_f32_bf16 {v(s1[i&1])}, 0x3f803f80, {v(AC+i)}")
        a(f"v_dot2c_f32_bf16 {v(s2[i&1])}, {v(AC+i)}, {v(AC+i)}")
    mean = s1[0]; var = s2[0]
    a(f"v_add_f32 {v(mean)}, {v(s1[0])}, {v(s1[1])}")
    a(f"v_add_f32 {v(var)}, {v(s2[0])}, {v(s2[1])}")
    for m in ("quad_perm:[1,0,3,2]", "quad_perm:[2,3,0,1]", "row_half_mirror"):
        for r in (mean, var): a(f"v_add_f32_dpp {v(r)}, {v(r)}, {v(r)} {m} row_mask:0xf bank_mask:0xf")
    nm = s1[1]; rs = s2[1]
    a(f"""v_mul_f32 {v(mean)}, {lit(1/448)}, {v(mean)}
          v_mul_f32 {v(var)}, {lit(1/448)}, {v(var)}
          v_fma_f32 {v(var)}, -{v(mean)}, {v(mean)}, {v(var)}
          v_max_f32 {v(var)}, 0, {v(var)}
          v_cvt_pk_bf16_f32 {v(var)}, {v(var)}, {v(var)}
          v_lshlrev_b32 {v(var)}, 16, {v(var)}
          v_add_f32 {v(var)}, {lit(1e-5)}, {v(var)}
          v_cvt_pk_bf16_f32 {v(var)}, {v(var)}, {v(var)}
          v_lshlrev_b32 {v(var)}, 16, {v(var)}
          v_sqrt_f32 {v(var)}, {v(var)}
          v_cvt_pk_bf16_f32 {v(nm)}, {v(var)}, -{v(mean)}
          v_lshlrev_b32 {v(var)}, 16, {v(nm)}
          v_rcp_f32 {v(rs)}, {v(var)}""")
    a("s_mov_b32 exec_lo, 0x01010101\ns_mov_b32 exec_hi, 0x01010101")
    a(f"ds_write_b16_d16_hi {v(t3)}, {v(nm)}")
    a(f"ds_write_b32 {v(t2)}, {v(rs)}")
    a(f"ds_write_b32 {v(AF+4)}, {v(nm)}")
    a("s_mov_b64 exec, -1")
    a.wait(lg=0)
    a("s_barrier")
    st()
    rsv = TF + 16; nmf = AF; Tp = AF + 8; cin = AF + 16
    a(f"ds_read_b32 {v(t2)}, {v(AF+20)}")
    for k in range(4): a(f"ds_read_b128 {v(rsv+4*k,4)}, {v(t4)} offset:{64*k}")
    for ks in range(2): a(f"ds_read_b128 {v(nmf+4*ks,4)}, {v(t4)} offset:{256 + 64*ks}")
    seq = [(t, arr, ks) for t in range(4) for arr in range(4) for ks in range(2)]
    def xr(n):
        t, arr, ks = seq[n]
        return [f"ds_read_b64_tr_b16 {v(IT+4*(n%14)+2*u,2)}, {v(mi+4*(arr>>1)+t)} offset:{(32*ks+16*u)*XS + 448*(arr&1)}" for u in range(2)]
    for n in range(4):
        for x in xr(n): a(x)
    for k in range(0, 16, 2): a(pk('mul', TF+k, TF+k, rsv+k))
    wave0(a, [f"buffer_store_dword {v(t2)}, {v(t0)}, s[16:19], s46 offen sc1"])
    nv0 = a.nvm
    for n in range(4, 10):
        for x in xr(n): a(x)
    for k in range(8): a(f"v_cvt_pk_bf16_f32 {v(Tp+k)}, {v(TF+2*k)}, {v(TF+2*k+1)}")
    a(m16(cin, Tp, nmf, '0')); a(m16(cin, Tp + 4, nmf + 4))
    for n in range(10, 14):
        for x in xr(n): a(x)
    A = lambda t, arr: AC + 16 * t + 4 * arr
    def fold(t):
        out = []
        d1 = TF + 8 * (t & 1); d2 = d1 + 4
        for r in (0, 2):
            out += [pk('add', d1+r, A(t,0)+r, A(t,1)+r, neg=[1]), pk('add', A(t,0)+r, A(t,0)+r, A(t,1)+r)]
        for r in (0, 2):
            out += [pk('add', d2+r, A(t,2)+r, A(t,3)+r, neg=[1]), pk('add', A(t,2)+r, A(t,2)+r, A(t,3)+r)]
        q = "quad_perm:[3,2,1,0] row_mask:0xf bank_mask:0xf"
        for r in range(4):
            out += [f"v_subrev_f32_dpp {v(A(t,1)+r)}, {v(A(t,2)+r)}, {v(A(t,0)+r)} {q}",
                    f"v_add_f32_dpp {v(A(t,0)+r)}, {v(A(t,2)+r)}, {v(A(t,0)+r)} {q}"]
        for r in range(4):
            out += [f"v_subrev_f32_dpp {v(A(t,2)+r)}, {v(d2+r)}, {v(d1+r)} {q}",
                    f"v_add_f32_dpp {v(A(t,3)+r)}, {v(d2+r)}, {v(d1+r)} {q}"]
        return out
    for t in range(4):
        mains = []; fills = []
        for n in range(8 * t, 8 * t + 8):
            _, arr, ks = seq[n]
            mains.append(m16(A(t, arr), Tp + 4 * ks, IT + 4 * (n % 14), v(cin, 4) if ks == 0 else None))
        fl = fold(t - 1) if t else []
        for i, m in enumerate(mains):
            a(m)
            n = 8 * t + i + 14
            if n < 32:
                for x in xr(n): a(x)
            if t < 2 and i & 1 and wdm: a(wdm.pop(0))
            if i >= 2:
                for x in fl[(i - 2) * 4:(i - 1) * 4]: a(x)
    a(f"v_mov_b32 {v(t0)}, 1")
    a(f"s_lshl_b32 s49, s2, 3")
    wave0(a, [f"s_waitcnt vmcnt({a.nvm - nv0})", "s_mov_b64 exec, 1", f"buffer_store_dword {v(t0)}, off, s[28:31], s49 sc1", "s_mov_b64 exec, -1"])
    a(f"""v_lshrrev_b32 {v(t1)}, 4, v1
          v_lshlrev_b32 {v(t1)}, 17, {v(t1)}
          v_and_b32 {v(t2)}, 15, v1
          v_lshl_add_u32 {v(t1)}, {v(t2)}, 4, {v(t1)}
          s_lshl_b32 s46, s33, 19
          s_lshl_b32 s49, s2, 11
          s_add_u32 s46, s46, s49
          s_lshl_b32 s49, s34, 10
          s_add_u32 s46, s46, s49
          s_add_u32 s46, s46, {OFF_V1}
          s_add_u32 s47, s46, 65536""")
    for x in fold(3): a(x)
    st()
    for r in range(4):
        for par in range(2):
            o = AF + 4 * (2 * r + par)
            for cs_ in range(2):
                for th in range(2):
                    a(f"v_cvt_pk_bf16_f32 {v(o+2*cs_+th)}, {v(A(2*th,2*par+cs_)+r)}, {v(A(2*th+1,2*par+cs_)+r)}")
            a(f"buffer_store_dwordx4 {v(o,4)}, {v(t1)}, s[16:19], s{46+(r>>1)} offen offset:{(r&1)*512 + par*256} sc1", tag='v1s')
    st()
    fa = mi + 1; wr = mi + 2; ga = mi + 3; gr = mi + 4; vo = mi + 5; tb = mi + 6; pv = mi + 7
    a(f"v_and_b32 {v(t4)}, 31, v1")
    a(f"v_lshlrev_b32 {v(t4)}, 3, {v(t4)}")
    a(f"buffer_load_dword {v(pv)}, {v(t4)}, s[28:31], 0 offen sc1", tag='dp')
    if PRIO: a("s_setprio 0")
    K = mi
    a(f"""v_and_b32 {v(t2)}, 31, v1
          s_lshl_b32 s49, s33, 6
          s_add_u32 s49, s49, 2
          s_sub_u32 s49, s49, s34
          v_lshl_add_u32 {v(t2)}, {v(t2)}, 1, s49
          v_cvt_f32_u32 {v(t2)}, {v(t2)}
          v_mul_f32 {v(t2)}, {lit(1/448)}, {v(t2)}
          v_lshrrev_b32 {v(t1)}, 5, v1
          v_cvt_f32_u32 {v(t3)}, {v(t1)}
          v_mul_f32 {v(K)}, 4.0, {v(t2)}
          v_fma_f32 {v(t3)}, {v(t3)}, 2.0, 0.5
          v_cos_f32 {v(K)}, {v(K)}
          v_mul_f32 {v(t3)}, {v(t3)}, {v(t2)}
          v_add_f32 {v(K)}, {v(K)}, {v(K)}""")
    def f1chain(P0, n, d, ks0):
        out = []
        sl = lambda P: AC + 4 * (P % 8)
        for P in range(P0, P0 + n):
            if P < P0 + 2:
                for u in range(2):
                    k = 4 * P + u
                    out.append(f"v_fmamk_f32 {v(sl(P)+2+u)}, {v(t2)}, {lit(float(k))}, {v(t3)}" if k else f"v_mov_b32 {v(sl(P)+2+u)}, {v(t3)}")
                for u in range(2): out.append(f"v_cos_f32 {v(sl(P)+u)}, {v(sl(P)+2+u)}")
                for u in range(2): out.append(f"v_sin_f32 {v(sl(P)+2+u)}, {v(sl(P)+2+u)}")
            else:
                for c in (0, 2): out.append(pk('fma', sl(P)+c, sl(P-1)+c, ('b', K), sl(P-2)+c, neg=[2]))
            Pc = P - 1
            for Pc in ([P - 1, P] if P == P0 + n - 1 else [P - 1]):
                t, q = divmod(Pc - P0, d)
                if Pc >= P0 and t & 1:
                    for c in range(2):
                        for u in range(2):
                            out.append(f"v_cvt_pk_bf16_f32 {v(FT+8*(ks0+q)+4*c+2*u+(t>>1))}, {v(sl(Pc-d)+2*c+u)}, {v(sl(Pc)+2*c+u)}")
        return out
    for x in f1chain(0, 16, 4, 0): a(x)
    a(f"""s_lshl_b32 s49, s3, 10
          s_add_u32 s49, s49, s37
          v_and_b32 {v(tb)}, 3, v1
          v_lshlrev_b32 {v(tb)}, 13, {v(tb)}
          v_and_b32 {v(vo)}, 4, v1
          v_lshl_add_u32 {v(tb)}, {v(vo)}, 10, {v(tb)}
          s_lshl_b32 s50, s3, 15
          s_lshr_b32 s51, s2, 3
          s_lshl_b32 s51, s51, 10
          s_add_u32 s50, s50, s51
          s_add_u32 s50, s50, {OFF_FL + 896}""")
    if PRIO: a("s_setprio 3")
    st()
    a.wait_tag('v1s')
    a(f"s_mov_b64 exec, 1\nbuffer_store_dword {v(t0)}, off, s[16:19], s49 offset:896 sc1\ns_mov_b64 exec, -1")
    st()
    spin(a, pv, t4, 's[28:31]', '0', '-1', first=False)
    a(f"buffer_load_dword {v(pv)}, {v(tb)}, s[16:19], s50 offen sc1")
    if PRIO: a("s_setprio 0")
    for x in f1chain(16, 12, 3, 4): a(x)
    a(f"""s_lshl_b32 s51, s2, 16
          s_lshl_b32 s49, s3, 13
          s_add_u32 s51, s51, s49
          s_add_u32 s51, s51, {OFF_V1}
          s_mul_i32 s52, s3, {4*VS}""")
    if PRIO: a("s_setprio 3")
    st()
    spin(a, pv, tb, 's[16:19]', 's50', '0xff', first=False)
    a("s_barrier")
    st()
    for hh in range(2):
        for i in range(4):
            a(f"s_add_u32 m0, s52, {(hh*32+i)*VS}")
            a(f"s_add_u32 s49, s51, {i*2048 + hh*1024}")
            a(f"buffer_load_dwordx4 v2, s[16:19], s49 offen sc1 lds", tag=('v', hh))
    if PRIO: a("s_setprio 0")
    a(f"""v_and_b32 {v(t2)}, 31, v1
          s_lshl_b32 s49, s33, 5
          v_add_u32 {v(t2)}, s49, {v(t2)}
          v_cvt_f32_u32 {v(t3)}, {v(t2)}
          v_add_f32 {v(t3)}, 0.5, {v(t3)}
          v_mul_f32 {v(t3)}, {lit(1/448)}, {v(t3)}
          s_sub_u32 s49, 2, s34
          v_lshl_add_u32 {v(t4)}, {v(t1)}, 3, s49
          v_mul_f32 {v(K)}, {lit(16.0)}, {v(t3)}
          v_cmp_eq_u32 vcc, 10, {v(t4)}
          v_cvt_f32_u32 {v(t4)}, {v(t4)}
          v_cos_f32 {v(K)}, {v(K)}
          v_mul_f32 {v(t4)}, {v(t4)}, {v(t3)}
          v_cndmask_b32 {v(pv)}, 1.0, 0.5, vcc
          v_add_f32 {v(K)}, {v(K)}, {v(K)}""")
    sl = lambda Q: AC + 8 * (Q % 4)
    def i1cvt(Q):
        for c in range(2):
            for h in range(2):
                a(f"v_cvt_pk_bf16_f32 {v(IT+8*(Q>>1)+4*c+2*(Q&1)+h)}, {v(sl(Q)+4*c+2*h)}, {v(sl(Q)+4*c+2*h+1)}")
    for Q in range(14):
        if Q < 2:
            for r in range(4):
                k = 16 * Q + 2 * r
                a(f"v_fmamk_f32 {v(sl(Q)+4+r)}, {v(t3)}, {lit(float(k))}, {v(t4)}" if k else f"v_mov_b32 {v(sl(Q)+4+r)}, {v(t4)}")
            for r in range(4): a(f"v_cos_f32 {v(sl(Q)+r)}, {v(sl(Q)+4+r)}")
            for r in range(4): a(f"v_sin_f32 {v(sl(Q)+4+r)}, {v(sl(Q)+4+r)}")
        else:
            for c in range(0, 8, 2): a(pk('fma', sl(Q)+c, sl(Q-1)+c, ('b', K), sl(Q-2)+c, neg=[2]))
        if Q: i1cvt(Q - 1)
    a(f"v_mul_f32 {v(sl(13)+7)}, {v(sl(13)+7)}, {v(pv)}")
    a(f"""v_and_b32 {v(t3)}, 31, v1
          v_mul_u32_u24 {v(fa)}, {VS}, {v(t3)}
          v_lshl_add_u32 {v(fa)}, {v(t1)}, 5, {v(fa)}
          s_lshl_b32 s49, s34, 8
          v_add_u32 {v(fa)}, s49, {v(fa)}
          v_lshlrev_b32 {v(vo)}, 2, {v(t2)}
          s_lshl_b32 s49, s34, 1
          s_sub_u32 s49, {WB + 4}, s49
          v_lshl_add_u32 {v(wr)}, {v(t1)}, 13, s49
          v_add_u32 {v(wr)}, {v(wr)}, {v(vo)}
          s_lshl_b32 s49, s2, 1
          s_sub_u32 s54, 64, s49
          s_and_b32 s54, s54, 63
          v_add_u32 {v(K)}, s54, {v(wr)}
          v_add_u32 {v(wr)}, s49, {v(wr)}
          v_lshl_add_u32 {v(vo)}, {v(t1)}, 18, {v(vo)}
          s_lshl_b32 s49, s34, 15
          v_add_u32 {v(gr)}, s49, v2
          s_lshl_b32 s49, s33, 11
          v_add_u32 {v(ga)}, s49, {v(gr)}
          v_add_u32 {v(tb)}, {TB}, v2
          s_lshl_b32 s53, s2, 11
          s_lshl_b32 s49, s34, 10
          s_add_u32 s53, s53, s49
          s_add_u32 s53, s53, {OFF_V2}""")
    i1cvt(13)
    for k in range(8): a(f"ds_read_b128 {v(TF+4*k,4)}, {v(tb)} offset:{k*1024}")
    st()
    def f1r(ks):
        hh, q = (0, ks) if ks < 4 else (1, ks - 4)
        return [f"ds_read_b64 {v(AF+16*(ks&1)+4*(2*d+c)+2*u,2)}, {v(fa)} offset:{hh*32*VS + c*512 + (4*q+u)*16 + 8*d}"
                for d in range(2) for c in range(2) for u in range(2)]
    a.wait_tag(('v', 0))
    a("s_barrier")
    st()
    for x in f1r(0): a(x)
    for ks in range(7):
        mains = [m32(AC + 16 * i, AF + 16 * (ks & 1) + 4 * i, FT + 8 * ks + 4 * (i >> 1), '0' if ks == 0 else None) for i in range(4)]
        fills = f1r(ks + 1) if ks < 6 else []
        if ks == 3:
            def sy():
                a.wait_tag(('v', 1)); a("s_barrier")
            fills = [sy] + fills
        weave(a, mains, fills, span=3)
    def wrd(r):
        return [f"ds_read_u16_d16_hi {v(FT+4*(r%14)+2*pm+mat)}, {v(K if pm else wr)} offset:{(8*(r>>2)+(r&3))*2048 + mat*1024 + pm*512}"
                for pm in range(2) for mat in range(2)]
    BF = lambda i: AF + 8 * ((i + 2) & 3)
    Tf = lambda T, s: TF + 8 * T + 4 * s
    cvt = lambda i: [f"v_cvt_pk_bf16_f32 {v(BF(i)+k)}, {v(AC+16*i+2*k)}, {v(AC+16*i+2*k+1)}" for k in range(8)]
    for x in cvt(0) + cvt(1): a(x)
    def f2(i0):
        o0, o1 = AC + 16 * i0, AC + 16 * i0 + 16
        C, S = BF(i0), BF(i0 + 1)
        return [m32(o0, Tf(0, 0), C, '0'), m32(o1, Tf(3, 0), C, '0'), m32(o0, Tf(0, 1), C + 4), m32(o1, Tf(3, 1), C + 4),
                m32(o0, Tf(1, 0), S), m32(o1, Tf(2, 0), S), m32(o0, Tf(1, 1), S + 4), m32(o1, Tf(2, 1), S + 4)]
    wl = [x for r in range(14) for x in wrd(r)]
    weave(a, f2(0), cvt(2) + cvt(3) + wl[:16])
    weave(a, f2(2), wl[16:])
    st()
    for k in range(8): a(f"ds_read_b128 {v(TF+4*k,4)}, {v(tb)} offset:{8192 + k*1024}")
    a("s_barrier")
    al, de, gm, be = AC, AC + 16, AC + 32, AC + 48
    for r in range(16):
        Pr, Pi, Mr, Mi = [FT + 4 * (r % 14) + k for k in range(4)]
        a1, b1 = (t1, t2) if r & 1 else (t3, t4)
        A_, D_, G_, B_ = al + r, de + r, gm + r, be + r
        if r == 0:
            for k, x in enumerate((A_, D_, G_, B_)): a(f"v_mov_b32 {v(AF+k)}, {v(x)}")
        a(f"""v_sub_f32 {v(a1)}, {v(A_)}, {v(B_)}
              v_add_f32 {v(b1)}, {v(G_)}, {v(D_)}
              v_add_f32 {v(A_)}, {v(A_)}, {v(B_)}
              v_sub_f32 {v(G_)}, {v(G_)}, {v(D_)}
              v_mul_f32 {v(B_)}, {v(a1)}, {v(Pr)}
              v_mul_f32 {v(D_)}, {v(a1)}, {v(Pi)}
              v_fmac_f32 {v(B_)}, {v(b1)}, {v(Pi)}
              v_fma_f32 {v(D_)}, -{v(b1)}, {v(Pr)}, {v(D_)}
              v_fma_f32 {v(a1)}, {v(A_)}, {v(Mr)}, {v(B_)}
              v_fma_f32 {v(b1)}, {v(A_)}, {v(Mi)}, {v(D_)}
              v_fma_f32 {v(A_)}, {v(G_)}, {v(Mi)}, {v(a1)}
              v_fma_f32 {v(G_)}, -{v(G_)}, {v(Mr)}, {v(b1)}
              v_fma_f32 {v(B_)}, {v(B_)}, 2.0, -{v(A_)}
              v_fma_f32 {v(D_)}, {v(D_)}, -2.0, {v(G_)}""")
        if r == 0:
            a("s_cmp_lg_u32 s2, 0")
            a("s_cbranch_scc1 NOFIX")
            a("s_mov_b32 exec_hi, 0")
            a(f"""v_mul_f32 {v(A_)}, {v(AF)}, {v(Pr)}
                  v_mul_f32 {v(G_)}, {v(AF)}, {v(Pi)}
                  v_mul_f32 {v(D_)}, {v(AF+1)}, {v(Mr)}
                  v_mul_f32 {v(B_)}, {v(AF+1)}, {v(Mi)}
                  v_fmac_f32 {v(A_)}, {v(AF+2)}, {v(Pi)}
                  v_fma_f32 {v(G_)}, -{v(AF+2)}, {v(Pr)}, {v(G_)}
                  v_fmac_f32 {v(D_)}, {v(AF+3)}, {v(Mi)}
                  v_fma_f32 {v(B_)}, -{v(AF+3)}, {v(Mr)}, {v(B_)}""")
            a("s_mov_b32 exec_hi, -1")
            a.raw("NOFIX:")
        if r < 2:
            for x in wrd(r + 14): a(x)
        if r & 1:
            for i in range(4): a(f"v_cvt_pk_bf16_f32 {v(AF+8*i+(r>>1))}, {v(AC+16*i+r-1)}, {v(AC+16*i+r)}")
    st()
    def i2(i0):
        o0, o1 = AC + 16 * i0, AC + 16 * i0 + 16
        S, D = AF + 8 * i0, AF + 8 * i0 + 8
        return [m32(o0, S, Tf(0, 0), '0'), m32(o0, S + 4, Tf(0, 1)), m32(o0, D, Tf(3, 0)), m32(o0, D + 4, Tf(3, 1)),
                m32(o1, S, Tf(1, 0), '0'), m32(o1, S + 4, Tf(1, 1)), m32(o1, D, Tf(2, 0)), m32(o1, D + 4, Tf(2, 1))]
    def gout(i):
        out = []
        for s_ in range(2):
            o = FT + 8 * i + 4 * s_
            out += [f"v_cvt_pk_bf16_f32 {v(o+k)}, {v(AC+16*i+8*s_+2*k)}, {v(AC+16*i+8*s_+2*k+1)}" for k in range(4)]
            out.append(f"ds_write_b128 {v(ga)}, {v(o,4)} offset:{i*8192 + s_*1024}")
        return out
    mm = i2(0) + i2(2)
    for x in mm[:6]: a(x)
    weave(a, mm[6:], gout(0) + gout(1) + gout(2)[:5])
    for x in gout(2)[5:] + gout(3): a(x)
    a.wait(lg=0)
    a("s_barrier")
    st()
    ring = [AF, AF + 16, TF]
    def i1r(ks):
        return [f"ds_read_b128 {v(ring[ks%3]+4*i,4)}, {v(gr)} offset:{i*8192 + ks*1024}" for i in range(4)]
    for x in i1r(0) + i1r(1): a(x)
    for ks in range(7):
        mains = [m32(AC + 16 * i, ring[ks % 3] + 4 * i, IT + 8 * ks + 4 * (i >> 1), '0' if ks == 0 else None) for i in range(4)]
        weave(a, mains, i1r(ks + 2) if ks < 5 else [])
    st()
    for r in range(16):
        x0, x1 = (t1, t2) if r & 1 else (t3, t4)
        a(f"""v_sub_f32 {v(x0)}, {v(AC+r)}, {v(AC+32+r)}
              v_sub_f32 {v(x1)}, {v(AC+16+r)}, {v(AC+48+r)}
              v_add_f32 {v(AC+r)}, {v(AC+r)}, {v(AC+32+r)}
              v_add_f32 {v(AC+16+r)}, {v(AC+16+r)}, {v(AC+48+r)}
              v_cvt_pk_bf16_f32 {v(AC+32+r)}, {v(x0)}, {v(x1)}
              v_cvt_pk_bf16_f32 {v(AC+48+r)}, {v(AC+r)}, {v(AC+16+r)}
              s_add_u32 s49, s53, {(8*(r>>2)+(r&3))*65536}
              buffer_store_dword {v(AC+32+r)}, {v(vo)}, s[16:19], s49 offen sc1
              buffer_store_dword {v(AC+48+r)}, {v(vo)}, s[16:19], s49 offen offset:512 sc1""")
    st()
    a(f"v_lshlrev_b32 {v(t1)}, 10, v1")
    a.wait(vm=0)
    a("s_barrier")
    wave0(a, ["s_mov_b64 exec, 0xff", f"buffer_store_dword {v(t0)}, {v(t1)}, s[16:19], s37 offen offset:900 sc1", "s_mov_b64 exec, -1"])
    st.dump(t1)
    return R.maxv

def kern(a):
    st = Stamp(a)
    a("s_cmp_ge_u32 s2, 0x100")
    a("s_cbranch_scc1 KEND")
    st()
    a("""s_load_dwordx2 s[4:5], s[0:1], 0
         s_load_dwordx2 s[8:9], s[0:1], 32
         s_load_dwordx2 s[12:13], s[0:1], 40
         s_load_dwordx2 s[16:17], s[0:1], 72
         s_load_dwordx2 s[28:29], s[0:1], 64""")
    a("s_getpc_b64 s[100:101]")
    a.raw("PCREF:")
    a("""v_lshrrev_b32 v2, 6, v0
         s_lshr_b32 s47, s2, 3
         v_lshl_add_u32 v255, s47, 3, v2
         v_readfirstlane_b32 s3, v2
         v_lshlrev_b32 v255, 7, v255
         v_and_b32 v1, 63, v0
         v_min_u32 v255, KEND-PCREF, v255
         v_lshlrev_b32 v2, 4, v1""")
    if 'notouch' not in OPT: a("global_load_dword v255, v255, s[100:101]")
    a("""s_and_b32 s33, s2, 7
         s_mov_b32 s6, 1835008
         s_mov_b32 s7, 0x00020000
         s_mov_b32 s18, 0x10000000
         s_mov_b32 s19, 0x00020000
         s_mov_b32 s30, 256
         s_mov_b32 s31, 0x00020000""")
    a("s_cmp_ge_u32 s2, 32")
    a("s_cbranch_scc1 FFN")
    for t in L(f"""s_lshl_b32 s2, s33, 2
         s_add_u32 s2, s2, s47
         s_mul_i32 s35, s2, 896
         s_mul_i32 s49, s3, {8*28672}
         s_add_u32 s35, s35, s49
         s_mul_i32 s36, s3, {8*928}
         s_mov_b32 m0, s36
         s_add_u32 s49, s36, {8*928}
         s_mov_b32 exec_hi, 0x00ffffff
         s_waitcnt lgkmcnt(0)
         XL:
         buffer_load_dwordx4 v2, s[4:7], s35 offen lds
         s_add_u32 m0, m0, 928
         s_add_u32 s35, s35, 28672
         s_cmp_lt_u32 m0, s49
         s_cbranch_scc1 XL
         s_mov_b32 exec_hi, -1
         s_branch SPEC
         FFN:
         s_mov_b32 s11, 0x00020000
         s_mov_b32 s15, 0x00020000"""): a.raw(t if t.endswith(':') else "    " + t)
    n0 = st.n
    m1 = ffn(a, st)
    a.raw(".p2align 6")
    a.label("SPEC")
    a.reset_state()
    st.n = n0
    m2 = spec(a, st)
    a.label("KEND")
    a("s_endpgm")
    return max(m1, m2)

def build():
    label = NAME + "_kernel"
    a = Asm()
    a.raw(f"; @launch grid=(256,1,1) block=(512,1,1) lds=163840")
    a.raw('.amdgcn_target "amdgcn-amd-amdhsa--gfx950"\n.text')
    a.raw(f".globl {label}\n.p2align 8\n.type {label},@function\n{label}:")
    nv = kern(a)
    print("vgprs", nv, "instrs", a.nins, file=sys.stderr)
    nv = (nv + 7) // 8 * 8
    a.raw(f""".section .rodata,"a"
.p2align 6
.amdhsa_kernel {label}
  .amdhsa_next_free_vgpr {nv}
  .amdhsa_next_free_sgpr 102
  .amdhsa_accum_offset {nv}
  .amdhsa_group_segment_fixed_size 0
  .amdhsa_kernarg_size 80
  .amdhsa_user_sgpr_count 2
  .amdhsa_user_sgpr_kernarg_segment_ptr 1
  .amdhsa_system_sgpr_workgroup_id_x 1
.end_amdhsa_kernel""")
    return a.text()

if __name__ == "__main__":
    open(sys.argv[1], "w").write(build())
```

```python
import sys, struct, math
sys.path.insert(0, 'work')
from asmlib import *

NAME = "recurrent_scan__spectral_gfnet__swiglu_ffn__prompt"
OFF_H = 0
OFF_V1 = 0x800000
OFF_V2 = 0xA00000
OFF_ST = 0xC00000
OFF_FL = 0xC10000
OFF_F2 = 0xC60000
OFF_DIAG = 0x2000000
NFAST = 24
OPT = sys.argv[2:]
DIAG = 'diag' in OPT
STAMP_OP = 's_memtime' if 'cyc' in OPT else 's_memrealtime'
LIMIT = 0x20000
PRIO = 'noprio' not in OPT

def lit(x):
    return "0x%08x" % struct.unpack('<I', struct.pack('<f', x))[0]
def m32(d, a, b, c=None):
    return f"v_mfma_f32_32x32x16_bf16 {v(d,16)}, {v(a,4)}, {v(b,4)}, {v(d,16) if c is None else c}"
def m16(d, a, b, c=None):
    return f"v_mfma_f32_16x16x32_bf16 {v(d,4)}, {v(a,4)}, {v(b,4)}, {v(d,4) if c is None else c}"

def bc(r):
    return v(r & ~1, 2), r & 1
def pk(op, d, *srcs, neg=None):
    ops = []; lo = []; hi = []
    for x in srcs:
        if isinstance(x, tuple):
            p, b = bc(x[1]); ops.append(p); lo.append(b); hi.append(b)
        else:
            assert x % 2 == 0
            ops.append(v(x, 2)); lo.append(0); hi.append(1)
    assert d % 2 == 0
    t = f"v_pk_{op}_f32 {v(d,2)}, " + ", ".join(ops)
    if any(lo): t += f" op_sel:[{','.join(map(str, lo))}]"
    if not all(hi): t += f" op_sel_hi:[{','.join(map(str, hi))}]"
    if neg:
        m = ','.join('1' if i in neg else '0' for i in range(len(srcs)))
        t += f" neg_lo:[{m}] neg_hi:[{m}]"
    return t

def em(a, x):
    if callable(x): x()
    elif isinstance(x, tuple): a(x[0], tag=x[1])
    else: a(x)
def weave(a, mains, fills, span=None):
    n = len(mains) if span is None else min(span, len(mains)); k = len(fills); done = 0
    for i, m in enumerate(mains):
        em(a, m)
        upto = min(k, (k * (i + 1) + n - 1) // n)
        while done < upto:
            em(a, fills[done]); done += 1
def merge(*lists):
    items = []
    for li, l in enumerate(lists):
        for i, x in enumerate(l):
            items.append(((i + 0.5) / len(l), li, i, x))
    items.sort(key=lambda t: (t[0], t[1], t[2]))
    return [t[3] for t in items]

NLAB = [0]
class Stamp:
    def __init__(self, a):
        self.a = a; self.n = 0
    def __call__(self, last=False):
        if not DIAG: return
        if self.n >= 22 and not last: return
        self.a.raw(f"    {STAMP_OP} s[96:97]")
        self.a.raw("    s_waitcnt lgkmcnt(0)")
        self.a.raw(f"    s_mov_b32 s{66+self.n}, s96")
        self.a.lgq = []
        self.n += 1
        assert self.n <= 23
    def dump(self, vt):
        if not DIAG: return
        a = self.a
        self(True)
        if 'probe' in OPT:
            NLAB[0] += 1; L = f"PR{NLAB[0]}"
            wgp = int(OPT[OPT.index('probe')+1]); ip = int(OPT[OPT.index('probe')+2])
            if ip < 0: ip += self.n
            a(f"s_lshl_b32 s98, s2, 3\ns_add_u32 s98, s98, s3")
            a(f"s_cmp_lg_u32 s98, {8*wgp+7}")
            a(f"s_cbranch_scc1 {L}")
            a(f"s_sub_u32 s98, s{66+min(ip, self.n-1)}, s66")
            a(f"s_add_u32 s98, s98, {int(OPT[OPT.index('probe')+3])}")
            a(f"s_mov_b32 s99, 0")
            a.raw(f"{L}_L:")
            a.raw(f"    s_memrealtime s[96:97]\n    s_add_u32 s99, s99, 1\n    s_waitcnt lgkmcnt(0)\n    s_sub_u32 s96, s96, s66\n    s_cmp_ge_u32 s96, s98\n    s_cbranch_scc1 {L}\n    s_cmp_lt_u32 s99, 100000\n    s_cbranch_scc1 {L}_L")
            a.raw(f"{L}:")
            return
        if 'dbgdiag' in OPT:
            NLAB[0] += 1; L = f"DD{NLAB[0]}"
            a(f"s_lshl_b32 s98, s2, 3\ns_add_u32 s98, s98, s3")
            a(f"s_cmp_lg_u32 s98, {8*int(OPT[OPT.index('dbgdiag')+1])+7}")
            a(f"s_cbranch_scc1 {L}")
            for i in range(1, min(17, self.n)):
                a(f"s_sub_u32 s98, s{66+i}, s66")
                a(f"v_mov_b32 {v(vt)}, s98")
                a(f"buffer_store_dword {v(vt)}, off, s[28:31], 0 offset:{4*i-4}")
                a.wait(vm=0)
            a.raw(f"{L}:")
            return
        a(f"s_lshl_b32 s98, s2, 3\ns_add_u32 s98, s98, s3\ns_lshl_b32 s98, s98, 7")
        a(f"s_add_u32 s98, s98, {OFF_DIAG}")
        for i in range(self.n):
            a(f"v_mov_b32 {v(vt)}, s{66+i}")
            a(f"buffer_store_dword {v(vt)}, off, s[16:19], s98 offset:{4*i}")
            a.wait(vm=0)

def spin(a, vdst, vaddr, srd, soff, mask, first=True, val='1'):
    NLAB[0] += 1; L = f"SP{NLAB[0]}"
    a("s_mov_b32 s99, 0")
    if not first:
        a(f"v_cmp_ne_u32 vcc, {val}, {v(vdst)}")
        a(f"s_and_b64 vcc, vcc, {mask}")
        a(f"s_cbranch_scc0 {L}_D")
    a(f"s_mov_b64 exec, {mask}")
    a.raw(f"{L}:")
    a.raw(f"    buffer_load_dword {v(vdst)}, {v(vaddr)}, {srd}, {soff} offen sc1")
    a.raw("    s_add_u32 s99, s99, 1")
    a.raw("    s_waitcnt vmcnt(0)")
    a.raw(f"    v_cmp_ne_u32 vcc, {val}, {v(vdst)}")
    a.raw("    s_nop 1")
    a.raw("    s_cmp_eq_u64 vcc, 0")
    a.raw(f"    s_cbranch_scc1 {L}_E")
    a.raw(f"    s_cmp_lt_u32 s99, {LIMIT}")
    a.raw(f"    s_cbranch_scc1 {L}")
    a.raw(f"{L}_E:")
    a.raw("    s_mov_b64 exec, -1")
    a.raw(f"{L}_D:")
    if first: a.vmq = []

def wave0(a, lines):
    NLAB[0] += 1; L = f"W0_{NLAB[0]}"
    a("s_cmp_lg_u32 s3, 0")
    a(f"s_cbranch_scc1 {L}")
    for l in lines: a.raw("    " + l)
    a.raw(f"{L}:")

def opt(name, dflt):
    return OPT[OPT.index(name) + 1] if name in OPT else dflt
def L(text):
    return [t.strip() for t in text.split('\n') if t.strip()]

def spinh(a, vdst, vaddr, off, mask, slow=None, back=None):
    NLAB[0] += 1; Lb = f"SP{NLAB[0]}"
    a(f"v_cmp_eq_u32 vcc, 1, {v(vdst)}")
    a(f"s_andn2_b32 s54, {mask}, vcc_lo")
    a(f"s_cbranch_scc0 {Lb}_D")
    r = lambda t: a.raw("    " + t)
    r("s_mov_b32 s99, 0")
    r("s_mov_b32 exec_hi, 0")
    if back: r(back)
    a.raw(f"{Lb}:")
    r(f"buffer_load_dword {v(vdst)}, {v(vaddr)}, s[16:19], s61 offen offset:{off} sc1")
    r("s_add_u32 s99, s99, 1")
    r("s_waitcnt vmcnt(0)")
    r(f"v_cmp_eq_u32 vcc, 1, {v(vdst)}")
    r("s_nop 1")
    r("s_or_b32 s54, vcc_lo, vcc_hi")
    r(f"s_andn2_b32 s54, {mask}, s54")
    r(f"s_cbranch_scc0 {Lb}_E")
    r(f"s_cmp_lg_u32 s99, {NFAST}")
    r(f"s_cbranch_scc1 {Lb}_C")
    if slow:
        r("s_mov_b32 exec_lo, 1")
        r(slow)
    r("s_mov_b64 exec, -1")
    a.raw(f"{Lb}_C:")
    r(f"s_cmp_lt_u32 s99, {LIMIT}")
    r(f"s_cbranch_scc1 {Lb}")
    a.raw(f"{Lb}_E:")
    r("s_mov_b64 exec, -1")
    a.raw(f"{Lb}_D:")

def ffn(a, st):
    XB = 16384; WB = 114688
    X = lambda s: XB + 32768 * s
    W = lambda s: WB + 16384 * s
    USLOT = [1024 * k for k in (0, 0, 48, 64, 128, 144, 96, 80, 112, 128, 16, 32, 48, 64)]
    UBASE = [1024 * k for k in (0, 0, 0, 64, 96, 96, 96, 80, 80, 80, 16, 16, 16, 16)]
    RB = 81920
    a("""s_load_dwordx2 s[20:21], s[0:1], 48
         s_load_dwordx2 s[24:25], s[0:1], 56""")
    R = RegAlloc(start=3, limit=256)
    t0 = R.get(); t1 = R.get(); t2 = R.get()
    vx = [R.get(), R.get()]; vw = R.get(); vd = R.get()
    xa = [[R.get(), R.get()] for _ in range(2)]
    wa = [[R.get(), R.get()] for _ in range(2)]
    da = [R.get() for _ in range(4)]
    big = R.get(144, 2)
    acc = [[[big + 32 * mat + 16 * F + 4 * nt for nt in range(4)] for F in range(2)] for mat in range(2)]
    wf = [[big + 64 + 16 * b + 4 * i for i in range(4)] for b in range(2)]
    xf = [[big + 96 + 16 * b + 4 * i for i in range(4)] for b in range(2)]
    cs = [big + 128, big + 132]; ones = big + 136; stv = big + 140
    wd = [R.get(16, 2) for _ in range(5)]
    sp = R.get(8, 2)
    a(f"""s_sub_u32 s37, s47, 4
         v_lshrrev_b32 {v(t0)}, 3, v1
         s_mul_i32 s34, s37, 37
         v_and_b32 {v(t1)}, 7, v1
         s_lshr_b32 s34, s34, 8
         v_lshrrev_b32 {v(t2)}, 4, v1
         s_lshl_b32 s3, s3, 2
         s_lshr_b32 s3, 0x76325410, s3
         s_and_b32 s3, s3, 7
         s_and_b32 s38, s3, 3
         v_and_b32 {v(vw)}, 1, {v(t2)}
         s_lshr_b32 s39, s3, 2
         s_and_b32 s62, s34, 2
         s_mul_i32 s63, s62, 7
         s_sub_u32 s37, s37, s63
         s_lshl_b32 s60, s37, 1
         s_and_b32 s89, s33, 6
         s_add_u32 s89, s89, s37
         s_mul_i32 s63, s62, {int(opt('dq', 0)) * 4 % 7}
         s_add_u32 s89, s89, s63
         s_and_b32 s61, s33, 1
         s_mul_i32 s63, s61, 14
         s_add_u32 s37, s37, s63
         s_and_b32 s63, s34, 1
         s_lshl_b32 s63, s63, 1
         s_and_b32 s49, s3, 1
         s_lshl_b32 s49, s49, 1
         v_or_b32 {v(vw)}, s49, {v(vw)}
         s_mul_i32 s90, s89, 37
         v_lshlrev_b32 {v(vw)}, 1, {v(vw)}
         s_lshr_b32 s90, s90, 8
         v_xor_b32 {v(vw)}, {v(vw)}, {v(t1)}
         s_mul_i32 s90, s90, 7
         v_lshlrev_b32 {v(vw)}, 4, {v(vw)}
         s_sub_u32 s89, s89, s90
         v_mul_u32_u24 {v(vd)}, 3584, {v(t0)}
         s_lshl_b32 s89, s89, 7
         v_add_u32 {v(vw)}, {v(vw)}, {v(vd)}
         s_mul_i32 s45, s3, {8*3584}
         v_xor_b32 {v(vx[1])}, {v(t1)}, {v(t2)}
         {'s_mov_b32 s49, 0' if 'hit' in OPT else 's_lshl_b32 s49, s37, 7'}
         v_lshlrev_b32 {v(vx[1])}, 4, {v(vx[1])}
         s_add_u32 s45, s45, s49
         v_mul_u32_u24 {v(vx[0])}, 28672, {v(t0)}
         s_lshl_b32 s46, s3, 11
         v_add_u32 {v(vx[0])}, {v(vx[0])}, {v(vx[1])}
         s_mov_b32 s10, 1605632
         v_xor_b32 {v(vx[1])}, 64, {v(vx[0])}
         s_mov_b32 s14, 1605632
         s_lshr_b32 s48, s38, 1
         s_xor_b32 s48, s48, s33
         s_lshl_b32 s48, s48, 2
         s_add_u32 s48, s48, s62
         s_and_b32 s49, s38, 1
         s_add_u32 s48, s48, s49
         s_mul_i32 s40, s48, 896
         s_mul_i32 s49, s39, {32*28672}
         s_add_u32 s40, s40, s49
         s_lshl_b32 s44, s38, 13
         s_lshl_b32 s49, s39, 12
         s_add_u32 s44, s44, s49
         s_add_u32 s90, s89, 128
         s_cmp_eq_u32 s90, 896
         s_cselect_b32 s90, 0, s90
         s_and_b32 s54, s63, 1
         s_lshl_b32 s54, s54, 6
         v_xor_b32 {v(xa[0][1])}, s54, {v(vx[0])}
         v_xor_b32 {v(xa[1][1])}, s54, {v(vx[1])}
         s_add_u32 s65, s89, s40""")
    def xdma(c):
        out = []
        for i in range(4):
            def f(i=i):
                a(f"s_add_u32 m0, s44, {X(c%3)}")
                a(f"s_add_u32 s49, s{40+i}, s{89+c}")
                a(f"buffer_load_dwordx4 {v(vx[i&1])}, s[4:7], s49 offen offset:{i*1024} lds", tag=('x', c))
            out.append(f)
        return out
    def wdma(c):
        out = []
        for mat in range(2):
            def f(mat=mat):
                a(f"s_mul_i32 s49, s{89+c}, 1792")
                a(f"s_add_u32 m0, s46, {W(c%3) + mat*1024}")
                a(f"s_add_u32 s49, s49, s45")
                a(f"buffer_load_dwordx4 {v(vw)}, s[{8+4*mat}:{11+4*mat}], s49 offen lds", tag=('x', c))
            out.append(f)
        return out
    a(f"""s_mul_i32 s49, s89, 1792
          s_add_u32 m0, s46, {W(0)}
          s_add_u32 s49, s49, s45""")
    a.wait_smem()
    st()
    def x0q(k):
        a(f"s_xor_b32 s54, s63, {k}")
        a(f"s_lshl_b32 s64, s54, 10")
        a(f"s_mul_i32 s54, s54, {8*28672}")
        a(f"s_add_u32 s64, s64, s44")
        a(f"s_add_u32 s54, s54, s65")
        a(f"s_add_u32 m0, s64, {X(0)}")
        a.raw("    s_nop 0")
        a(f"buffer_load_dwordx4 {v(xa[k&1][1])}, s[4:7], s54 offen lds", tag=('x', 0))
    a(f"buffer_load_dwordx4 {v(vw)}, s[8:11], s49 offen lds", tag=('x', 0))
    a(f"s_add_u32 m0, s46, {W(0) + 1024}")
    a.raw("    s_nop 0")
    a(f"buffer_load_dwordx4 {v(vw)}, s[12:15], s49 offen lds", tag=('x', 0))
    x0q(0)
    CW = {c: wdma(c) for c in range(1, 7)}
    CX = {c: xdma(c) for c in range(1, 7)}
    R1 = opt('r1', 'x')
    if R1 == 'w': CW[1].pop(0)()
    if R1 == 'x': x0q(1)
    if 'fs' in OPT: st()
    for i in range(1, 4): a(f"s_add_u32 s{40+i}, s40, {i*(8*28672-1024)}")
    rot = lambda i: L(f"s_add_u32 s{89+i}, s{88+i}, 128\ns_cmp_eq_u32 s{89+i}, 896\ns_cselect_b32 s{89+i}, 0, s{89+i}")
    for i in range(2, 5):
        for x in rot(i): a(x)
    a(f"""v_lshlrev_b32 {v(vd)}, 1, {v(t2)}
          v_xor_b32 {v(vd)}, {v(vd)}, {v(t1)}
          v_lshlrev_b32 {v(vd)}, 4, {v(vd)}
          v_mul_u32_u24 {v(t0)}, 896, {v(t0)}
          v_add_u32 {v(vd)}, {v(vd)}, {v(t0)}""")
    a(f"""v_and_b32 {v(t0)}, 15, v1
          v_bfe_u32 {v(t1)}, v1, 1, 3
          v_xor_b32 {v(t1)}, {v(t1)}, {v(t2)}
          s_and_b32 s49, s38, 2
          s_lshl_b32 s49, s49, 1
          v_xor_b32 {v(t1)}, s49, {v(t1)}
          v_lshlrev_b32 {v(t1)}, 4, {v(t1)}
          v_lshl_add_u32 {v(t1)}, {v(t0)}, 7, {v(t1)}
          s_lshl_b32 s49, s38, 13
          s_add_u32 s49, s49, {XB}
          v_add_u32 {v(xa[0][0])}, s49, {v(t1)}
          v_xor_b32 {v(xa[1][0])}, 64, {v(xa[0][0])}""")
    a(f"""v_bfe_u32 {v(t0)}, v1, 3, 2
          s_lshl_b32 s49, s39, 1
          s_and_b32 s54, s38, 1
          s_or_b32 s58, s49, s54
          v_xor_b32 {v(t0)}, s58, {v(t0)}
          v_lshlrev_b32 {v(t0)}, 5, {v(t0)}
          v_bfe_u32 {v(t1)}, v1, 2, 2
          v_lshl_add_u32 {v(t0)}, {v(t1)}, 7, {v(t0)}
          v_and_b32 {v(t1)}, 3, v1
          v_lshl_add_u32 {v(t0)}, {v(t1)}, 3, {v(t0)}
          v_lshl_add_u32 {v(t0)}, {v(t2)}, 11, {v(t0)}
          s_and_b32 s49, s38, 2
          s_lshl_b32 s49, s49, 12
          s_add_u32 s49, s49, {WB}
          v_add_u32 {v(wa[0][0])}, s49, {v(t0)}
          v_xor_b32 {v(wa[0][1])}, 32, {v(wa[0][0])}
          v_xor_b32 {v(wa[1][0])}, 0x2000, {v(wa[0][0])}
          v_xor_b32 {v(wa[1][1])}, 0x2000, {v(wa[0][1])}""")
    for i in range(4): a(f"v_mov_b32 {v(ones+i)}, 0x3f803f80")
    a(f"""v_min_u32 {v(sp+5)}, 6, v1
          v_lshlrev_b32 {v(sp+5)}, 7, {v(sp+5)}
          s_lshl_b32 s49, s2, 3
          s_add_u32 s49, s49, s3
          s_sub_u32 s49, s49, 256
          s_mul_i32 s55, s49, 896
          s_mov_b32 s22, 1605632
          s_mov_b32 s23, 0x00020000""")
    FIL = {}
    FIL[0] = L(f"""v_add_u32 {v(xa[0][1])}, 0x10000, {v(xa[0][0])}
          v_add_u32 {v(xa[1][1])}, 0x10000, {v(xa[1][0])}""")
    FIL[1] = L(f"""s_mul_i32 s35, s34, 5
          s_lshr_b32 s54, s89, 7
          s_add_u32 s35, s35, s54
          s_mul_i32 s54, s35, 37
          s_lshr_b32 s54, s54, 8
          s_mul_i32 s54, s54, 7
          s_sub_u32 s35, s35, s54
          s_lshl_b32 s50, s33, 2
          s_add_u32 s50, s50, s34
          s_mul_i32 s51, s38, {224*896}
          s_mul_i32 s54, s61, {896*896}
          s_add_u32 s51, s51, s54
          s_mul_i32 s54, s39, {16*896}
          s_add_u32 s51, s51, s54
          {'s_mov_b32 s54, 0' if 'hitd' in OPT else 's_lshl_b32 s54, s35, 7'}
          s_add_u32 s51, s51, s54
          s_add_u32 s52, s51, {8*896-1024}
          s_xor_b32 s54, s39, s50
          s_and_b32 s54, s54, 1
          s_lshl_b32 s54, s54, 11
          s_lshl_b32 s53, s38, 12
          s_add_u32 s53, s53, s54""")
    def ddma(u):
        out = []
        for i in range(2):
            def f(i=i):
                a(f"s_mul_i32 s49, s{89+u%7}, 224")
                if u == 7: a(f"s_mul_i32 s64, s65, {896*896}\ns_add_u32 s{51+i}, s{51+i}, s64")
                a(f"s_add_u32 m0, s53, {USLOT[u]}")
                a(f"s_add_u32 s49, s49, s{51+i}")
                a(f"buffer_load_dwordx4 {v(vd)}, s[20:23], s49 offen offset:{i*1024} lds", tag=('d', u))
            out.append(f)
        return out
    FIL[2] = ["\n".join(rot(5)), "\n".join(rot(6))] + L(f"""v_bfe_u32 {v(t0)}, v1, 3, 2
          s_and_b32 s54, s38, 2
          v_xor_b32 {v(t0)}, s54, {v(t0)}
          v_lshlrev_b32 {v(t0)}, 5, {v(t0)}
          v_lshl_add_u32 {v(t0)}, {v(t1)}, 3, {v(t0)}
          v_lshrrev_b32 {v(t1)}, 2, v1
          v_lshl_add_u32 {v(t0)}, {v(t1)}, 7, {v(t0)}
          s_lshl_b32 s54, s38, 12
          v_add_u32 {v(da[0])}, s54, {v(t0)}""") + [f"v_xor_b32 {v(da[i])}, {32*i}, {v(da[0])}" for i in range(1, 4)]
    dbase = [USLOT[0]]
    def dreads(u):
        out = []
        if UBASE[u] != dbase[0]:
            off = UBASE[u] - dbase[0]
            for i in range(4): out.append(f"v_add_u32 {v(da[i])}, {off & 0xffffffff:#x}, {v(da[i])}")
            dbase[0] = UBASE[u]
        off = USLOT[u] - dbase[0]
        for i in range(4):
            for h in range(2):
                out.append(f"ds_read_b64_tr_b16 {v(wd[u%5]+4*i+2*h,2)}, {v(da[i])} offset:{off + h*2048}")
        return out
    dbg = sp + 1; pv = sp + 2; sta = sp + 3
    FIL[3] = L(f"""v_and_b32 {v(dbg)}, 31, v1
          v_lshlrev_b32 {v(dbg)}, 3, {v(dbg)}
          v_and_b32 {v(sta)}, 15, v1
          v_lshlrev_b32 {v(sta)}, 4, {v(sta)}
          s_lshl_b32 s56, s48, 8
          s_add_u32 s56, s56, {OFF_ST}
          s_mul_i32 s57, s48, 56
          s_lshl_b32 s54, s37, 1
          s_add_u32 s57, s57, s54
          s_add_u32 s57, s57, s39
          s_lshl_b32 s57, s57, 12
          s_lshl_b32 s65, s61, 1
          s_sub_u32 s65, 1, s65
          s_mov_b32 s26, 1835008
          s_mov_b32 s27, 0x00020000""")
    FIL[4] = L(f"""s_mul_i32 s59, s50, 56
          s_mul_i32 s54, s38, 7
          s_add_u32 s59, s59, s54
          s_mul_i32 s54, s61, 28
          s_add_u32 s59, s59, s54
          s_lshl_b32 s59, s59, 12
          s_lshl_b32 s54, s39, 11
          s_add_u32 s59, s59, s54
          s_add_u32 s60, s60, s39
          s_mul_i32 s54, s60, 37
          s_lshr_b32 s54, s54, 8
          s_add_u32 s54, s54, 1
          s_lshl_b32 s54, s54, 4
          s_and_b32 s61, s38, 2
          s_mul_i32 s54, s54, s61
          s_add_u32 s60, s60, s54
          s_lshl_b32 s54, s48, 8
          s_add_u32 s60, s60, s54
          s_lshl_b32 s60, s60, 2
          s_add_u32 s60, s60, {OFF_F2}
          s_lshl_b32 s61, s50, 10
          s_add_u32 s61, s61, {OFF_F2}""")
    FIL[5] = L(f"""s_mul_i32 s36, s38, 7
          s_lshl_b32 s36, 0x7f, s36
          s_lshl_b32 s62, s3, 15
          s_lshl_b32 s54, s33, 10
          s_add_u32 s62, s62, s54
          s_add_u32 s62, s62, {OFF_FL + 900}
          s_lshl_b32 s63, s58, 9
          s_add_u32 s63, s63, s50
          s_mul_i32 s63, s63, 896
          s_lshl_b32 s54, s35, 7
          s_add_u32 s63, s63, s54
          s_and_b32 s54, s38, 2
          s_lshl_b32 s54, s54, 5
          s_add_u32 s63, s63, s54""")
    FIL[7] = L(f"""s_lshl_b32 s32, s50, 16
          s_lshl_b32 s54, s3, 13
          s_add_u32 s32, s32, s54
          s_add_u32 s32, s32, {OFF_V2}
          s_add_u32 s47, s32, 3072
          v_mov_b32 {v(sp)}, 0""")
    def wreads(S):
        c, e = divmod(S, 2)
        return [f"ds_read_b64_tr_b16 {v(wf[S&1][2*mat+F]+2*u,2)}, {v(wa[e][F])} offset:{(c%3)*16384 + mat*1024 + u*512}"
                for F in range(2) for mat in range(2) for u in range(2)]
    def xreads(S):
        c, e = divmod(S, 2); s = c % 3
        return [f"ds_read_b128 {v(xf[S&1][nt],4)}, {v(xa[e][s>>1])} offset:{(s&1)*32768 + nt*2048}" for nt in range(4)]
    def reads(S):
        w = wreads(S); x = xreads(S)
        return [x[0]] + w[0:4] + [x[1]] + w[4:8] + [x[2], x[3]]
    tou = [] if 'nomall' in OPT else [f"buffer_load_dword {v(sp+4)}, {v(sp+5)}, s[20:23], s55 offen"]
    SCH = opt('sch', 'w1x14,Tw2x22,x22w3,x34,Dw4,x44,w5x51,x53,Ew6,x64').split(',')
    def sched(S):
        out = []; t = SCH[S + 1] if S + 1 < len(SCH) else ''; i = 0
        while i < len(t):
            if t[i] == 'T': out += tou; i += 1
            elif t[i] == 'D': assert S < 5; out += ddma(0); i += 1
            elif t[i] == 'E': assert 7 <= S < 9; out += ddma(1); i += 1
            else:
                c = int(t[i + 1]); assert S >= 2 * (c - 3) + 1 and S < 2 * c - 1
                if t[i] == 'w': out += CW[c]; CW[c] = []; i += 2
                else:
                    for _ in range(int(t[i + 2])): out.append(CX[c].pop(0))
                    i += 3
        return out
    for x in FIL.pop(1): a(x)
    if 'fs' in OPT: st()
    if 'nob0' not in OPT: a("s_barrier")
    for k in range(2 if R1 == 'x' else 1, 4): x0q(k)
    if 'fs' in OPT: st()
    if 'b1' in OPT: a("s_barrier")
    for f in sched(-1): em(a, f)
    if 'fs' in OPT: st()
    a.raw(";@WARM F")
    a.wait_tag(('x', 0))
    if 'fs' in OPT: st()
    a("s_barrier")
    st()
    for x in reads(0): a(x)
    for S in range(14):
        c, e = divmod(S, 2)
        mains = []
        for nt in range(4):
            for F in range(2):
                for mat in range(2):
                    mains.append(m16(acc[mat][F][nt], wf[S & 1][2 * mat + F], xf[S & 1][nt], '0' if S == 0 else None))
        if e == 0:
            for mat in range(2):
                mains.insert(2 + mat, m16(cs[mat], wf[S & 1][2 * mat], ones, '0' if S == 0 else None))
        pre = []; rd = []; dm = []; ex = []
        if e == 1:
            def sync(c=c):
                if 'fine' in OPT: st()
                if c < 6: a.wait_tag(('x', c + 1))
                if c == 2: a.wait_tag(('d', 0))
                if c == 4: a.wait_tag(('d', 1))
                if c == 5: a.wait_tag(('d', 4))
                a.wait(lg=0)
                a("s_barrier")
                if 'fine' in OPT: st()
                if c == 6 and PRIO:
                    a("s_cmp_ge_u32 s38, 2\ns_cbranch_scc1 NOPR\ns_setprio 2")
                    a.raw("NOPR:")
            pre = [sync]
        dm = sched(S) if not ('d9' in OPT and S in (9, 10)) else []
        if S >= 9: dm = dm + {9: lambda: ddma(2) + ddma(3), 10: lambda: ddma(4), 11: lambda: ddma(5) + ddma(6), 12: lambda: ddma(7),
                    13: lambda: ddma(8) + ddma(9) + ddma(10)}[S]()
        if 'd9' in OPT and S in (9, 10): dm = sched(S) + (ddma(2) + ddma(3) + ddma(4) if S == 9 else [])
        if 'nodma' in OPT: dm = []
        if S < 13: rd = reads(S + 1)
        if S == 8: dm = dm + [f"buffer_load_dword {v(pv)}, {v(dbg)}, s[28:31], 0 offen sc1"]
        if S == 10:
            def chk():
                spin(a, pv, dbg, 's[28:31]', '0', '-1', first=False)
                a(f"buffer_load_dwordx4 {v(stv,4)}, {v(sta)}, s[16:19], s56 offen sc1")
                a(f"buffer_load_dword {v(sp+4)}, {v(sp)}, s[16:19], s61 offen sc1")
            dm = dm + [chk]
        if S == 6: ex = dreads(0)
        if S == 10: ex = dreads(1)
        if S == 11:
            ex = dreads(2); d3 = dreads(3); ex += d3[:8]
        if S == 12:
            ex = d3[8:] + dreads(4)
            ex += [f"s_lshl_b32 s54, s3, 11", f"v_add_u32 {v(t0)}, s54, v2",
                   f"ds_write_b128 {v(t0)}, {v(cs[0],4)}", f"ds_write_b128 {v(t0)}, {v(cs[1],4)} offset:1024"]
        if S == 13:
            ex = [f"s_and_b32 s54, s3, 5", f"s_lshl_b32 s54, s54, 11", f"v_add_u32 {v(t0)}, s54, v2", f"v_xor_b32 {v(t1)}, 0x800, {v(t0)}"]
            for F in range(2):
                for mat in range(2):
                    for hp in range(2):
                        dst = (wf[0][0] if hp == 0 else xf[0][0]) + 8 * mat + 4 * F
                        ex.append(f"ds_read_b128 {v(dst,4)}, {v(t1 if F else t0)} offset:{hp*4096 + mat*1024}")
        ex = ex + FIL.get(S, [])
        fills = pre + merge(*[l for l in (rd, dm) if l]) + ex
        weave(a, mains, fills)
    assert all(not l for l in CW.values()) and all(not l for l in CX.values())
    st()
    a.raw(";@BEG F")
    cv = wf[0][0]
    nm = wf[1][0]; c1 = nm + 4; d2 = nm + 8
    for i in range(4):
        a(f"v_lshlrev_b32 {v(d2+i)}, 16, {v(stv+i)}")
        a(f"v_and_b32 {v(nm+i)}, 0xffff0000, {v(stv+i)}")
        a(f"v_rcp_f32 {v(c1+i)}, {v(d2+i)}")
    for i in range(0, 16, 2): a(pk('add', cv + i, cv + i, xf[0][0] + i))
    for i in range(4):
        a(f"v_mul_f32 {v(d2+i)}, {v(d2+i)}, {v(d2+i)}")
        a(f"v_mul_f32 {v(c1+i)}, {lit(-math.log2(math.e))}, {v(c1+i)}")
    late = ddma(11) + ddma(12) + ddma(13)
    for nt in range(4):
        e = xf[0][0] + 8 * (nt & 1); hp = xf[1][nt]
        idx = [(F, r) for F in range(2) for r in range(4)]
        G = lambda F, r: acc[0][F][nt] + r
        U = lambda F, r: acc[1][F][nt] + r
        pi = [(F, r) for F in range(2) for r in (0, 2)]
        for F, r in pi: a(pk('fma', G(F,r), cv+4*F+r, ('b', nm+nt), G(F,r)))
        for F, r in pi: a(pk('mul', e+4*F+r, G(F,r), ('b', c1+nt)))
        if nt < 3: late[2 * nt]()
        for F, r in pi: a(pk('fma', U(F,r), cv+8+4*F+r, ('b', nm+nt), U(F,r)))
        for F, r in idx: a(f"v_exp_f32 {v(e+4*F+r)}, {v(e+4*F+r)}")
        for F, r in pi: a(pk('mul', U(F,r), U(F,r), G(F,r)))
        for F, r in pi: a(pk('fma', e+4*F+r, e+4*F+r, ('b', d2+nt), ('b', d2+nt)))
        if nt < 3: late[2 * nt + 1]()
        for F, r in idx: a(f"v_rcp_f32 {v(e+4*F+r)}, {v(e+4*F+r)}")
        for F, r in pi: a(pk('mul', U(F,r), U(F,r), e+4*F+r))
        for i in range(4): a(f"v_cvt_pk_bf16_f32 {v(hp+i)}, {v(U(i>>1,2*(i&1)))}, {v(U(i>>1,2*(i&1)+1))}")
        a(f"buffer_store_dwordx4 {v(hp,4)}, v2, s[16:19], s57 offen offset:{nt*1024} sc1", tag='hs')
    st()
    T2 = sp
    vh = vx; pa = vw; pv = xa[0][0]; vo = xa[0][1]; v2a = xa[1][0]; one = xa[1][1]
    xv = wa[0][0]
    assert xv % 2 == 0 and wa[1][1] == xv + 3
    hf = [[big + 8 * s + 4 * N for N in range(2)] for s in range(14)]
    ab = [[big + 112 + 16 * N + 4 * i for i in range(4)] for N in range(2)]
    T2o = big + 40
    va = [da[0], da[1]]
    a(f"""s_and_b32 s49, s38, 1
          s_lshl_b32 s49, s49, 10
          v_add_u32 {v(vh[0])}, s49, v2
          v_xor_b32 {v(vh[1])}, 0x400, {v(vh[0])}
          v_mov_b32 {v(one)}, 1""")
    def hloads(u0, u1):
        for u in range(u0, u1):
            a(f"s_lshl_b32 s49, s{89+u%7}, 5")
            if u == 7: a(f"s_mul_i32 s64, s65, {28*4096}\ns_add_u32 s59, s59, s64")
            a(f"s_add_u32 s49, s49, s59")
            for N in range(2):
                a(f"buffer_load_dwordx4 {v(hf[u][N],4)}, {v(vh[N])}, s[16:19], s49 offen sc1")
    tmp = hf[7][0]
    F1 = L(f"""v_and_b32 {v(t0)}, 15, v1
          v_mul_u32_u24 {v(vo)}, 28672, {v(t0)}
          v_lshl_add_u32 {v(vo)}, {v(t2)}, 3, {v(vo)}
          s_lshl_b32 s54, s58, 4
          v_add_u32 {v(t0)}, s54, {v(t0)}
          v_cvt_f32_u32 {v(t0)}, {v(t0)}
          v_mul_f32 {v(t0)}, {lit(1/64)}, {v(t0)}
          v_cvt_f32_u32 {v(t1)}, {v(t2)}
          v_mul_f32 {v(t1)}, 4.0, {v(t1)}
          v_mul_f32 {v(tmp)}, {v(t1)}, {v(t0)}""")
    F1 += [f"v_fmamk_f32 {v(tmp+k)}, {v(t0)}, {lit(float(16*(k>>2)+(k&3)))}, {v(tmp)}" for k in range(1, 8)]
    F1 += [f"v_cos_f32 {v(tmp+8+k)}, {v(tmp+k)}" for k in range(8)]
    F1 += [f"v_sin_f32 {v(tmp+k)}, {v(tmp+k)}" for k in range(8)]
    F1 += L(f"""v_lshlrev_b32 {v(t1)}, 31, v1
          v_or_b32 {v(t1)}, 1.0, {v(t1)}
          v_cmp_gt_u32 vcc, 16, v1
          v_cndmask_b32 {v(tmp)}, {v(tmp)}, {v(t1)}, vcc""")
    F1 += [f"v_cvt_pk_bf16_f32 {v(T2+k)}, {v(tmp+8+k)}, {v(tmp+k)}" for k in range(8)]
    F1 += L(f"""v_bfe_u32 {v(t0)}, v1, 2, 2
          s_and_b32 s54, s3, 1
          v_xor_b32 {v(t0)}, s54, {v(t0)}
          s_lshl_b32 s54, s35, 2
          v_add_u32 {v(t0)}, s54, {v(t0)}
          v_subrev_u32 {v(t1)}, 14, {v(t0)}
          v_min_u32 {v(t0)}, {v(t0)}, {v(t1)}
          v_lshlrev_b32 {v(t0)}, 6, {v(t0)}
          v_sub_u32 {v(t1)}, 1344, {v(t0)}
          v_cmp_gt_u32 vcc, 448, {v(t0)}
          v_cndmask_b32 {v(t0)}, {v(t1)}, {v(t0)}, vcc
          v_lshl_add_u32 {v(t0)}, {v(t2)}, 10, {v(t0)}
          v_and_b32 {v(t1)}, 3, v1
          v_lshl_add_u32 {v(v2a)}, {v(t1)}, 4, {v(t0)}""")
    xld = [f"buffer_load_dwordx2 {v(xv+2*cl,2)}, {v(vo)}, s[4:7], s63 offen offset:{cl*32}" for cl in range(2)]
    F2 = []
    for cl in range(2):
        F2 += [f"""s_and_b32 s0, s38, 2
              s_add_u32 s0, s0, {cl}
              s_lshl_b32 s54, s35, 2
              s_add_u32 s54, s54, s0""", f"""s_cmp_ge_u32 s54, 14
              s_cselect_b32 s64, 14, 0
              s_cselect_b32 s65, 0x80008000, 0
              s_sub_u32 s54, s54, s64""", f"""s_cmp_ge_u32 s54, 7
              s_cselect_b32 s64, 15, 0
              s_cselect_b32 s54, 0x80008000, 0
              s_xor_b32 s65, s65, s54"""] + L(f"""v_and_b32 {v(t1)}, 1, {v(t2)}
              v_xor_b32 {v(t1)}, s0, {v(t1)}
              v_lshlrev_b32 {v(t1)}, 6, {v(t1)}
              v_lshl_add_u32 {v(t1)}, {v(t2)}, 11, {v(t1)}
              v_and_b32 {v(va[cl])}, 15, v1
              v_xor_b32 {v(va[cl])}, s64, {v(va[cl])}
              v_lshl_add_u32 {v(va[cl])}, {v(va[cl])}, 2, {v(t1)}""")
        F2 += [f"v_xor_b32 {v(T2o+8*cl+k)}, s65, {v(T2+k)}" for k in range(8)]
    ra = [da[2], da[3], vd, t0]
    for k in range(1, 5):
        F2 += [f"s_xor_b32 s54, s3, {k&3}\ns_mul_i32 s54, s54, 6144\ns_add_u32 s54, s54, {RB}", f"v_add_u32 {v(ra[k-1])}, s54, v2"]
    flag = lambda off, sc: f"buffer_store_dword {v(one)}, off, s[16:19], s60 offset:{off}{sc}"
    back = None if 'noback' in OPT else f"buffer_load_dword {v(t1)}, {v(t0)}, s[16:19], s57 offen sc1"
    a(f"v_lshlrev_b32 {v(pa)}, 2, v1")
    a(f"v_lshlrev_b32 {v(t0)}, 7, v1")
    a(f"s_mov_b32 exec_hi, 0\nbuffer_load_dword {v(pv)}, {v(pa)}, s[16:19], s61 offen sc1\ns_mov_b32 exec_lo, 1")
    a.wait_tag('hs')
    st()
    a("s_cmp_ge_u32 s38, 2")
    a("s_cbranch_scc0 BX")
    a.raw("    " + flag(128, ' sc1'))
    a("s_branch BY")
    a.raw("BX:")
    a(flag(0, ''))
    a("s_mov_b32 exec_lo, -1")
    spinh(a, pv, pa, 0, '0x0fffffff', flag(128, ' sc1'), back)
    a.raw("BY:")
    a("s_mov_b64 exec, -1")
    a("s_barrier")
    st()
    LA = int(opt('la', 3))
    hloads(0, LA)
    a("s_lshl_b32 s54, s38, 7\ns_add_u32 s61, s61, s54")
    if PRIO: a("s_setprio 0")
    a.vmq.insert(0, dict(w={('v', t1)}, tag=None))
    F1 = [x.replace(v(t1), v(tmp+16)) for x in F1]
    for x in F1 + xld: a(x)
    PS = int(opt('ps', 1)); B2 = int(opt('b2', 11))
    for s in range(14):
        dr = dreads(s + 5) if s + 5 < 14 else []
        pre = dr[:len(dr) - 8]; dr = dr[len(pre):]
        fl = F2[len(F2) * (s - 9) // 5: len(F2) * (s - 8) // 5] if s >= 9 else []
        for x in pre: a(x)
        for i in range(4):
            for N in range(2):
                a(m16(ab[N][i], wd[s % 5] + 4 * i, hf[s][N], '0' if s == 0 else None))
                k = 2 * i + N
                for x in fl[len(fl) * k // 8: len(fl) * (k + 1) // 8]: a(x)
            for x in dr[2 * i: 2 * i + 2]: a(x)
            if i == 0:
                if s + LA == 7:
                    st()
                    spinh(a, pv, pa, 256, 's36', flag(128, ' sc1'))
                    st()
                    a(f"v_and_b32 {v(pa)}, 3, v1")
                    a(f"v_lshlrev_b32 {v(pa)}, 13, {v(pa)}")
                if s == PS: a(f"s_mov_b32 exec_hi, 0\nbuffer_load_dword {v(pv)}, {v(pa)}, s[16:19], s61 offen offset:256 sc1\ns_mov_b32 exec_hi, -1")
                if s + LA < 14: hloads(s + LA, s + LA + 1)
                if s + LA == 13:
                    a(f"buffer_load_dword {v(pv)}, {v(pa)}, s[16:19], s62 offen sc1")
                    a("s_mov_b64 exec, 1\n" + flag(128, ' sc1') + "\ns_mov_b64 exec, -1")
        if s == 0: st()
        if s == B2:
            assert s + LA >= 13
            a.wait(lg=0)
            a("s_barrier")
    def v2dma():
        a("s_lshl_b32 m0, s3, 11")
        a.raw("    s_nop 0")
        a.raw(f"    buffer_load_dwordx4 {v(v2a)}, s[16:19], s32 offen sc1 lds")
        a.raw(f"    buffer_load_dwordx4 {v(v2a)}, s[16:19], s47 offen offset:1024 sc1 lds")
    a(f"v_cmp_ne_u32 vcc, 1, {v(pv)}")
    a(f"s_and_b32 s98, vcc_lo, 15")
    a(f"s_cbranch_scc1 V2LATE")
    v2dma()
    if 'nv2' not in OPT:
        a("s_branch V2L2")
        a.raw("V2LATE:")
        a.raw(f"    buffer_load_dword {v(pv)}, {v(pa)}, s[16:19], s62 offen sc1")
        a.raw("V2L2:")
    else: a.raw("V2LATE:")
    st()
    for k in range(1, 4):
        C, N = k >> 1, k & 1
        for cl in range(2):
            a(f"ds_write_b128 {v(ra[k-1])}, {v(ab[N][2*C+cl],4)} offset:{(k-1)*2048 + cl*1024}")
    pr = big; e = big + 24; xs = big + 32
    for i in range(4):
        a(f"v_lshlrev_b32 {v(xs+2*i)}, 16, {v(xv+i)}")
        a(f"v_and_b32 {v(xs+2*i+1)}, 0xffff0000, {v(xv+i)}")
    a(f"v_mov_b32 {v(t1)}, {lit(2048*448/2)}")
    a(f"v_mov_b32 {v(t2)}, {lit(-math.log2(math.e))}")
    a.wait(lg=0)
    a("s_barrier")
    for k in range(3):
        for cl in range(2):
            a(f"ds_read_b128 {v(pr+8*k+4*cl,4)}, {v(t0)} offset:{k*2048 + cl*1024}")
    y = ab[0][0]
    def chk2(n):
        a("s_cmp_eq_u32 s98, 0")
        a(f"s_cbranch_scc1 V2M{n}")
        a.raw("    s_waitcnt vmcnt(0)")
        a(f"v_cmp_ne_u32 vcc, 1, {v(pv)}")
        a(f"s_and_b32 s98, vcc_lo, 15")
        a(f"s_cbranch_scc1 V2N{n}")
        v2dma()
        a(f"s_branch V2M{n}")
        a.raw(f"V2N{n}:")
        a.raw(f"    buffer_load_dword {v(pv)}, {v(pa)}, s[16:19], s62 offen sc1")
        a.raw(f"V2M{n}:")
    if 'nv2' not in OPT: chk2(0)
    for i in range(0, 8, 2): a(pk('add', y+i, y+i, pr+i))
    for i in range(0, 8, 2): a(pk('add', pr+8+i, pr+8+i, pr+16+i))
    for i in range(0, 8, 2): a(pk('add', y+i, y+i, pr+8+i))
    for i in range(0, 8, 2): a(pk('mul', e+i, y+i, ('b', t2)))
    for i in range(8): a(f"v_exp_f32 {v(e+i)}, {v(e+i)}")
    for i in range(0, 8, 2): a(pk('fma', e+i, e+i, ('b', t1), ('b', t1)))
    for i in range(8): a(f"v_rcp_f32 {v(e+i)}, {v(e+i)}")
    for i in range(0, 8, 2): a(pk('mul', y+i, y+i, e+i))
    st()
    a("s_cmp_eq_u32 s98, 0")
    a("s_cbranch_scc1 V2OK")
    if 'nv2' not in OPT:
        a.raw("    s_waitcnt vmcnt(0)")
        spin(a, pv, pa, 's[16:19]', 's62', '0xf', first=False)
        a.vmq = []
    else: spin(a, pv, pa, 's[16:19]', 's62', '0xf')
    v2dma()
    a.raw("V2OK:")
    st()
    a.raw("    s_waitcnt vmcnt(0)")
    a("s_barrier")
    st()
    vf = big + 56; so = big + 88
    n = 0
    for cl in range(2):
        for par in range(2):
            for kk in range(2):
                for hh in range(2):
                    o = (16 * kk + 2 * hh) * 2 + par
                    a(f"ds_read2st64_b32 {v(vf+4*n+2*hh,2)}, {v(va[cl])} offset0:{o} offset1:{o+2}")
                n += 1
    n = 0
    for cl in range(2):
        for par in range(2):
            for kk in range(2):
                b = (T2 if par == 0 else T2o + 8 * cl) + 4 * kk
                a(m16(so + 4 * cl, vf + 4 * n, b, '0' if (par == 0 and kk == 0) else None)); n += 1
    OST = ' nt' if 'ont' in OPT else ''
    for cl in range(2):
        for i in (0, 2): a(pk('fma', xs+4*cl+i, so+4*cl+i, y+4*cl+i, xs+4*cl+i))
        for i in range(2): a(f"v_cvt_pk_bf16_f32 {v(xv+2*cl+i)}, {v(xs+4*cl+2*i)}, {v(xs+4*cl+2*i+1)}")
        a(f"buffer_store_dwordx2 {v(xv+2*cl,2)}, {v(vo)}, s[24:27], s63 offen offset:{cl*32}{OST}")
    a.raw(";@END F")
    st.dump(t0)
    a("s_endpgm")
    return R.maxv

def spec(a, st):
    XS = 928; VS = 1032
    WB = 66560; TB = WB + 65536; SB = TB + 16384
    a("""s_load_dwordx2 s[20:21], s[0:1], 8
         s_load_dwordx2 s[24:25], s[0:1], 16
         s_mov_b32 s22, 921600
         s_mov_b32 s23, 0x00020000
         s_mov_b32 s26, 921600
         s_mov_b32 s27, 0x00020000""")
    R = RegAlloc(start=3, limit=256)
    t0 = R.get(); t1 = R.get(); t2 = R.get(); t3 = R.get(); t4 = R.get()
    mi = R.get(8, 2)
    IT = R.get(56, 2); FT = R.get(56, 2); AC = R.get(64, 2); AF = R.get(32, 2); TF = R.get(32, 2)
    a.vmq = [dict(w={('v', 255)}, tag=None)] + [dict(w=set(), tag='x') for _ in range(8)]
    st()
    a(f"""s_and_b32 s33, s3, 3
          s_lshr_b32 s34, s3, 2
          s_lshr_b32 s44, s33, 1
          s_and_b32 s45, s3, 1
          s_lshl_b32 s37, s2, 13
          s_add_u32 s37, s37, {OFF_FL}
          s_lshl_b32 s49, s2, 10
          s_add_u32 s49, s49, {OFF_F2}
          v_lshlrev_b32 {v(t0)}, 10, v1""")
    for i in range(4): a(f"v_mov_b32 {v(AF+i)}, 0")
    wave0(a, [f"buffer_store_dwordx4 {v(AF,4)}, v2, s[16:19], s49 offen sc1", "s_mov_b64 exec, 0xff",
              f"buffer_store_dwordx2 {v(AF,2)}, {v(t0)}, s[16:19], s37 offen offset:896 sc1", "s_mov_b64 exec, -1"])
    a(f"""v_and_b32 {v(t0)}, 15, v1
          s_lshl_b32 s49, s33, 4
          v_add_u32 {v(t0)}, s49, {v(t0)}
          v_cmp_eq_u32 vcc, 1, {v(t0)}
          v_cndmask_b32 {v(t0)}, {v(t0)}, 64, vcc
          v_and_b32 {v(t1)}, 1, {v(t0)}
          v_cvt_f32_u32 {v(t1)}, {v(t1)}
          v_mul_f32 {v(t1)}, {lit(-0.25)}, {v(t1)}
          v_lshrrev_b32 {v(t0)}, 1, {v(t0)}
          v_cvt_f32_u32 {v(t0)}, {v(t0)}
          v_mul_f32 {v(t0)}, {lit(1/64)}, {v(t0)}
          v_lshrrev_b32 {v(t4)}, 4, v1
          v_lshlrev_b32 {v(t2)}, 2, {v(t4)}
          v_cvt_f32_u32 {v(t2)}, {v(t2)}
          v_fma_f32 {v(TF)}, {v(t2)}, {v(t0)}, {v(t1)}""")
    for k in range(1, 16): a(f"v_fmamk_f32 {v(TF+k)}, {v(t0)}, {lit(float(16*(k>>2)+(k&3)))}, {v(TF)}")
    for k in range(16): a(f"v_cos_f32 {v(TF+k)}, {v(TF+k)}")
    a(f"""v_lshrrev_b32 {v(t0)}, 2, v1
          v_mul_u32_u24 {v(t0)}, {XS}, {v(t0)}
          v_and_b32 {v(t1)}, 3, v1
          v_lshlrev_b32 {v(t1)}, 3, {v(t1)}
          v_add_u32 {v(t2)}, {v(t0)}, {v(t1)}
          v_sub_u32 {v(t3)}, {v(t0)}, {v(t1)}
          s_lshl_b32 s42, s34, 7
          s_lshl_b32 s49, s34, 3
          s_sub_u32 s43, 32, s49""")
    for t in range(4):
        if t: a("s_add_u32 s42, s42, s43")
        a(f"v_add_u32 {v(mi+t)}, s42, {v(t2)}")
        a(f"s_sub_u32 s49, 440, s42")
        a(f"v_add_u32 {v(mi+4+t)}, s49, {v(t3)}")
    a(f"""v_lshrrev_b32 {v(t0)}, 3, v1
          v_mul_u32_u24 {v(t1)}, {XS}, {v(t0)}
          v_and_b32 {v(t2)}, 7, v1
          v_lshl_add_u32 {v(t1)}, {v(t2)}, 4, {v(t1)}
          v_add_u32 {v(t1)}, s36, {v(t1)}""")
    s1 = [AF, AF + 1]; s2 = [AF + 2, AF + 3]
    a(f"""s_lshl_b32 s49, s3, 5
          s_add_u32 s49, s49, {SB}
          v_lshl_add_u32 {v(t2)}, {v(t0)}, 2, s49
          s_lshl_b32 s49, s34, 6
          s_lshl_b32 s46, s45, 5
          s_add_u32 s49, s49, s46
          s_lshl_b32 s46, s44, 3
          s_add_u32 s49, s49, s46
          s_add_u32 s49, s49, {SB + 256}
          v_lshrrev_b32 {v(t3)}, 5, v1
          v_lshl_add_u32 {v(t3)}, {v(t3)}, 4, s49
          v_and_b32 {v(AF+4)}, 3, {v(t0)}
          v_lshl_add_u32 {v(t3)}, {v(AF+4)}, 1, {v(t3)}
          s_lshl_b32 s46, s45, 7
          s_lshr_b32 s49, s3, 1
          s_lshl_b32 s49, s49, 2
          s_add_u32 s46, s46, s49
          s_add_u32 s46, s46, {SB + 512}
          v_lshl_add_u32 {v(AF+4)}, {v(t0)}, 4, s46
          v_lshlrev_b32 {v(t0)}, 2, v1
          v_add_u32 {v(AF+20)}, {SB + 512}, {v(t0)}
          s_lshl_b32 s46, s2, 8
          s_add_u32 s46, s46, {OFF_ST}
          v_lshlrev_b32 {v(t4)}, 4, {v(t4)}
          v_add_u32 {v(t4)}, {SB}, {v(t4)}""")
    tv = AC + 32; u0, u1, u2, u3 = AC + 48, AC + 49, AC + 50, AC + 51
    a(f"""v_and_b32 {v(u0)}, 31, v1
          v_lshrrev_b32 {v(u1)}, 5, v1
          v_lshlrev_b32 {v(u1)}, 2, {v(u1)}
          s_lshl_b32 s49, s44, 4
          v_add_u32 {v(u1)}, s49, {v(u1)}
          s_cmp_eq_u32 s34, 0
          s_cselect_b64 vcc, -1, 0
          v_cndmask_b32 {v(u2)}, {v(u1)}, {v(u0)}, vcc
          v_cndmask_b32 {v(u3)}, {v(u0)}, {v(u1)}, vcc""")
    a(f"""v_cmp_le_u32 s[62:63], 16, {v(u2)}
          v_cmp_eq_u32 s[50:51], 0, {v(u2)}
          s_cmp_eq_u32 s2, 0
          s_cselect_b64 s[52:53], -1, 0
          s_and_b64 s[54:55], s[62:63], s[52:53]
          s_and_b64 s[50:51], s[50:51], s[52:53]
          s_cmp_eq_u32 s45, 1
          s_cselect_b64 s[50:51], s[50:51], 0
          s_and_b64 s[56:57], s[50:51], vcc
          v_lshlrev_b32 {v(u2)}, 6, {v(u2)}
          v_add_u32 {v(u2)}, s2, {v(u2)}
          v_subrev_u32 {v(u0)}, 992, {v(u2)}
          v_cndmask_b32 {v(u2)}, {v(u2)}, {v(u0)}, s[54:55]
          v_mov_b32 {v(u0)}, 1024
          v_cndmask_b32 {v(u2)}, {v(u2)}, {v(u0)}, s[56:57]
          v_cvt_f32_u32 {v(u2)}, {v(u2)}
          v_cvt_f32_u32 {v(u3)}, {v(u3)}
          v_mul_f32 {v(u2)}, {lit(1/2048)}, {v(u2)}
          v_mul_f32 {v(u0)}, {lit(1/32)}, {v(u3)}
          v_cndmask_b32 {v(u0)}, {v(u0)}, {v(u2)}, vcc
          s_cmp_eq_u32 s45, 1
          s_cselect_b32 s49, {lit(-0.25)}, 0
          v_mov_b32 {v(u1)}, s49
          v_cndmask_b32 {v(u1)}, {v(u1)}, 0, s[56:57]
          v_fma_f32 {v(tv)}, {v(u2)}, {v(u3)}, {v(u1)}""")
    for i in range(1, 8): a(f"v_fmamk_f32 {v(tv+i)}, {v(u0)}, {lit(float(8*(i>>2)+(i&3)))}, {v(tv)}")
    a(f"v_mul_f32 {v(u3)}, 0.5, {v(u3)}")
    a(f"v_cndmask_b32 {v(tv)}, {v(tv)}, {v(u3)}, s[50:51]")
    for i in range(8): a(f"v_cos_f32 {v(tv+i)}, {v(tv+i)}")
    for i in range(4): a(f"v_cvt_pk_bf16_f32 {v(tv+8+i)}, {v(tv+2*i)}, {v(tv+2*i+1)}")
    a(f"""s_andn2_b64 s[58:59], s[52:53], s[62:63]
          s_cmp_lg_u32 s2, 0
          s_cselect_b32 s49, s45, 0
          s_mul_i32 s49, s49, 0x80008000""")
    for i in range(4): a(f"v_xor_b32 {v(tv+12+i)}, s49, {v(tv+8+i)}")
    for i in range(4): a(f"v_cndmask_b32 {v(tv+12+i)}, {v(tv+12+i)}, 0, s[58:59]")
    for i in range(4): a(f"v_cndmask_b32 {v(tv+8+i)}, {v(tv+8+i)}, 0, s[54:55]")
    a(f"""s_lshl_b32 s60, s34, 3
          s_add_u32 s60, s60, s44
          s_lshl_b32 s60, s60, 10
          s_add_u32 s60, s60, {TB}
          s_mul_i32 s49, s45, 6144
          s_add_u32 s49, s49, s60
          v_add_u32 {v(u0)}, s49, v2
          s_cmp_eq_u32 s2, 0
          s_cselect_b32 s49, 0, 1
          s_xor_b32 s49, s49, s45
          s_lshl_b32 s49, s49, 11
          s_add_u32 s49, s49, s60
          v_add_u32 {v(u1)}, s49, v2""")
    a(f"ds_write_b128 {v(u0)}, {v(tv+8,4)}")
    a(f"ds_write_b128 {v(u1)}, {v(tv+12,4)} offset:2048")
    w0, w1, w2, w3 = FT + 52, FT + 53, FT + 54, FT + 55
    a(f"""s_lshl_b32 s38, s3, 8
          s_add_u32 s38, s38, s2
          s_mul_i32 s49, s34, 992
          s_cmp_eq_u32 s2, 0
          s_cselect_b32 s49, s49, 0
          s_sub_u32 s38, s38, s49
          s_sub_u32 s39, 2048, s38
          s_cmp_eq_u32 s38, 0
          s_cselect_b32 s40, 1024, s39
          v_and_b32 {v(w0)}, 31, v1
          v_lshlrev_b32 {v(w0)}, 4, {v(w0)}
          v_cmp_gt_u32 vcc, 32, v1
          v_mov_b32 {v(w1)}, s38
          v_mov_b32 {v(w2)}, s39
          v_mov_b32 {v(w3)}, s40
          v_cndmask_b32 {v(w2)}, {v(w2)}, {v(w1)}, vcc
          v_cndmask_b32 {v(w3)}, {v(w3)}, {v(w1)}, vcc
          v_mul_u32_u24 {v(w2)}, 450, {v(w2)}
          v_mul_u32_u24 {v(w3)}, 450, {v(w3)}
          v_and_b32 {v(w2)}, 0xffffffc0, {v(w2)}
          v_and_b32 {v(w3)}, 0xffffffc0, {v(w3)}
          v_add_u32 {v(w2)}, {v(w2)}, {v(w0)}
          v_add_u32 {v(w3)}, {v(w3)}, {v(w0)}
          v_mov_b32 {v(w0)}, {(-28800) & 0xffffffff:#x}
          v_mov_b32 {v(w1)}, 28800
          v_cndmask_b32 {v(w0)}, {v(w0)}, {v(w1)}, vcc
          s_lshl_b32 s41, s3, 13""")
    wdm = []
    for i in range(4):
        for mat in range(2):
            wdm.append((f"v_add_u32 {v(w2)}, {v(w2)}, {v(w0)}\n" if i and not mat else "") +
                       f"s_add_u32 m0, s41, {WB + i*2048 + mat*1024}\n" +
                       f"buffer_load_dwordx4 {v(w2 if i else w3)}, s[{20+4*mat}:{23+4*mat}], 0 offen lds")
    NW0 = int(OPT[OPT.index('nw0') + 1]) if 'nw0' in OPT else 4
    a.wait_smem()
    if NW0:
        a("s_barrier")
        for x in wdm[:NW0]: a(x)
    wdm = wdm[NW0:]
    st()
    if PRIO: a("s_setprio 3")
    a.wait_tag('x')
    st()
    for i in range(7): a(f"ds_read_b128 {v(AC+4*i,4)}, {v(t1)} offset:{i*128}")
    for i in range(28):
        a(f"v_dot2c_f32_bf16 {v(s1[i&1])}, 0x3f803f80, {v(AC+i)}")
        a(f"v_dot2c_f32_bf16 {v(s2[i&1])}, {v(AC+i)}, {v(AC+i)}")
    mean = s1[0]; var = s2[0]
    a(f"v_add_f32 {v(mean)}, {v(s1[0])}, {v(s1[1])}")
    a(f"v_add_f32 {v(var)}, {v(s2[0])}, {v(s2[1])}")
    for m in ("quad_perm:[1,0,3,2]", "quad_perm:[2,3,0,1]", "row_half_mirror"):
        for r in (mean, var): a(f"v_add_f32_dpp {v(r)}, {v(r)}, {v(r)} {m} row_mask:0xf bank_mask:0xf")
    nm = s1[1]; rs = s2[1]
    a(f"""v_mul_f32 {v(mean)}, {lit(1/448)}, {v(mean)}
          v_mul_f32 {v(var)}, {lit(1/448)}, {v(var)}
          v_fma_f32 {v(var)}, -{v(mean)}, {v(mean)}, {v(var)}
          v_max_f32 {v(var)}, 0, {v(var)}
          v_cvt_pk_bf16_f32 {v(var)}, {v(var)}, {v(var)}
          v_lshlrev_b32 {v(var)}, 16, {v(var)}
          v_add_f32 {v(var)}, {lit(1e-5)}, {v(var)}
          v_cvt_pk_bf16_f32 {v(var)}, {v(var)}, {v(var)}
          v_lshlrev_b32 {v(var)}, 16, {v(var)}
          v_sqrt_f32 {v(var)}, {v(var)}
          v_cvt_pk_bf16_f32 {v(nm)}, {v(var)}, -{v(mean)}
          v_lshlrev_b32 {v(var)}, 16, {v(nm)}
          v_rcp_f32 {v(rs)}, {v(var)}""")
    a("s_mov_b32 exec_lo, 0x01010101\ns_mov_b32 exec_hi, 0x01010101")
    a(f"ds_write_b16_d16_hi {v(t3)}, {v(nm)}")
    a(f"ds_write_b32 {v(t2)}, {v(rs)}")
    a(f"ds_write_b32 {v(AF+4)}, {v(nm)}")
    a("s_mov_b64 exec, -1")
    a.wait(lg=0)
    a("s_barrier")
    st()
    rsv = TF + 16; nmf = AF; Tp = AF + 8; cin = AF + 16
    a(f"ds_read_b32 {v(t2)}, {v(AF+20)}")
    for k in range(4): a(f"ds_read_b128 {v(rsv+4*k,4)}, {v(t4)} offset:{64*k}")
    for ks in range(2): a(f"ds_read_b128 {v(nmf+4*ks,4)}, {v(t4)} offset:{256 + 64*ks}")
    seq = [(t, arr, ks) for t in range(4) for arr in range(4) for ks in range(2)]
    def xr(n):
        t, arr, ks = seq[n]
        return [f"ds_read_b64_tr_b16 {v(IT+4*(n%14)+2*u,2)}, {v(mi+4*(arr>>1)+t)} offset:{(32*ks+16*u)*XS + 448*(arr&1)}" for u in range(2)]
    for n in range(4):
        for x in xr(n): a(x)
    for k in range(0, 16, 2): a(pk('mul', TF+k, TF+k, rsv+k))
    wave0(a, [f"buffer_store_dword {v(t2)}, {v(t0)}, s[16:19], s46 offen sc1"])
    nv0 = a.nvm
    for n in range(4, 10):
        for x in xr(n): a(x)
    for k in range(8): a(f"v_cvt_pk_bf16_f32 {v(Tp+k)}, {v(TF+2*k)}, {v(TF+2*k+1)}")
    a(m16(cin, Tp, nmf, '0')); a(m16(cin, Tp + 4, nmf + 4))
    for n in range(10, 14):
        for x in xr(n): a(x)
    A = lambda t, arr: AC + 16 * t + 4 * arr
    def fold(t):
        out = []
        d1 = TF + 8 * (t & 1); d2 = d1 + 4
        for r in (0, 2):
            out += [pk('add', d1+r, A(t,0)+r, A(t,1)+r, neg=[1]), pk('add', A(t,0)+r, A(t,0)+r, A(t,1)+r)]
        for r in (0, 2):
            out += [pk('add', d2+r, A(t,2)+r, A(t,3)+r, neg=[1]), pk('add', A(t,2)+r, A(t,2)+r, A(t,3)+r)]
        q = "quad_perm:[3,2,1,0] row_mask:0xf bank_mask:0xf"
        for r in range(4):
            out += [f"v_subrev_f32_dpp {v(A(t,1)+r)}, {v(A(t,2)+r)}, {v(A(t,0)+r)} {q}",
                    f"v_add_f32_dpp {v(A(t,0)+r)}, {v(A(t,2)+r)}, {v(A(t,0)+r)} {q}"]
        for r in range(4):
            out += [f"v_subrev_f32_dpp {v(A(t,2)+r)}, {v(d2+r)}, {v(d1+r)} {q}",
                    f"v_add_f32_dpp {v(A(t,3)+r)}, {v(d2+r)}, {v(d1+r)} {q}"]
        return out
    for t in range(4):
        mains = []; fills = []
        for n in range(8 * t, 8 * t + 8):
            _, arr, ks = seq[n]
            mains.append(m16(A(t, arr), Tp + 4 * ks, IT + 4 * (n % 14), v(cin, 4) if ks == 0 else None))
        fl = fold(t - 1) if t else []
        for i, m in enumerate(mains):
            a(m)
            n = 8 * t + i + 14
            if n < 32:
                for x in xr(n): a(x)
            if t < 2 and i & 1 and wdm: a(wdm.pop(0))
            if i >= 2:
                for x in fl[(i - 2) * 4:(i - 1) * 4]: a(x)
    a(f"v_mov_b32 {v(t0)}, 1")
    a(f"s_lshl_b32 s49, s2, 3")
    wave0(a, [f"s_waitcnt vmcnt({a.nvm - nv0})", "s_mov_b64 exec, 1", f"buffer_store_dword {v(t0)}, off, s[28:31], s49 sc1", "s_mov_b64 exec, -1"])
    a(f"""v_lshrrev_b32 {v(t1)}, 4, v1
          v_lshlrev_b32 {v(t1)}, 17, {v(t1)}
          v_and_b32 {v(t2)}, 15, v1
          v_lshl_add_u32 {v(t1)}, {v(t2)}, 4, {v(t1)}
          s_lshl_b32 s46, s33, 19
          s_lshl_b32 s49, s2, 11
          s_add_u32 s46, s46, s49
          s_lshl_b32 s49, s34, 10
          s_add_u32 s46, s46, s49
          s_add_u32 s46, s46, {OFF_V1}
          s_add_u32 s47, s46, 65536""")
    for x in fold(3): a(x)
    st()
    for r in range(4):
        for par in range(2):
            o = AF + 4 * (2 * r + par)
            for cs_ in range(2):
                for th in range(2):
                    a(f"v_cvt_pk_bf16_f32 {v(o+2*cs_+th)}, {v(A(2*th,2*par+cs_)+r)}, {v(A(2*th+1,2*par+cs_)+r)}")
            a(f"buffer_store_dwordx4 {v(o,4)}, {v(t1)}, s[16:19], s{46+(r>>1)} offen offset:{(r&1)*512 + par*256} sc1", tag='v1s')
    st()
    fa = mi + 1; wr = mi + 2; ga = mi + 3; gr = mi + 4; vo = mi + 5; tb = mi + 6; pv = mi + 7
    a(f"v_and_b32 {v(t4)}, 31, v1")
    a(f"v_lshlrev_b32 {v(t4)}, 3, {v(t4)}")
    a(f"buffer_load_dword {v(pv)}, {v(t4)}, s[28:31], 0 offen sc1", tag='dp')
    if PRIO: a("s_setprio 0")
    K = mi
    a(f"""v_and_b32 {v(t2)}, 31, v1
          s_lshl_b32 s49, s33, 6
          s_add_u32 s49, s49, 2
          s_sub_u32 s49, s49, s34
          v_lshl_add_u32 {v(t2)}, {v(t2)}, 1, s49
          v_cvt_f32_u32 {v(t2)}, {v(t2)}
          v_mul_f32 {v(t2)}, {lit(1/448)}, {v(t2)}
          v_lshrrev_b32 {v(t1)}, 5, v1
          v_cvt_f32_u32 {v(t3)}, {v(t1)}
          v_mul_f32 {v(K)}, 4.0, {v(t2)}
          v_fma_f32 {v(t3)}, {v(t3)}, 2.0, 0.5
          v_cos_f32 {v(K)}, {v(K)}
          v_mul_f32 {v(t3)}, {v(t3)}, {v(t2)}
          v_add_f32 {v(K)}, {v(K)}, {v(K)}""")
    def f1chain(P0, n, d, ks0):
        out = []
        sl = lambda P: AC + 4 * (P % 8)
        for P in range(P0, P0 + n):
            if P < P0 + 2:
                for u in range(2):
                    k = 4 * P + u
                    out.append(f"v_fmamk_f32 {v(sl(P)+2+u)}, {v(t2)}, {lit(float(k))}, {v(t3)}" if k else f"v_mov_b32 {v(sl(P)+2+u)}, {v(t3)}")
                for u in range(2): out.append(f"v_cos_f32 {v(sl(P)+u)}, {v(sl(P)+2+u)}")
                for u in range(2): out.append(f"v_sin_f32 {v(sl(P)+2+u)}, {v(sl(P)+2+u)}")
            else:
                for c in (0, 2): out.append(pk('fma', sl(P)+c, sl(P-1)+c, ('b', K), sl(P-2)+c, neg=[2]))
            Pc = P - 1
            for Pc in ([P - 1, P] if P == P0 + n - 1 else [P - 1]):
                t, q = divmod(Pc - P0, d)
                if Pc >= P0 and t & 1:
                    for c in range(2):
                        for u in range(2):
                            out.append(f"v_cvt_pk_bf16_f32 {v(FT+8*(ks0+q)+4*c+2*u+(t>>1))}, {v(sl(Pc-d)+2*c+u)}, {v(sl(Pc)+2*c+u)}")
        return out
    for x in f1chain(0, 16, 4, 0): a(x)
    a(f"""s_lshl_b32 s49, s3, 10
          s_add_u32 s49, s49, s37
          v_and_b32 {v(tb)}, 3, v1
          v_lshlrev_b32 {v(tb)}, 13, {v(tb)}
          v_and_b32 {v(vo)}, 4, v1
          v_lshl_add_u32 {v(tb)}, {v(vo)}, 10, {v(tb)}
          s_lshl_b32 s50, s3, 15
          s_lshr_b32 s51, s2, 3
          s_lshl_b32 s51, s51, 10
          s_add_u32 s50, s50, s51
          s_add_u32 s50, s50, {OFF_FL + 896}""")
    if PRIO: a("s_setprio 3")
    st()
    a.wait_tag('v1s')
    a(f"s_mov_b64 exec, 1\nbuffer_store_dword {v(t0)}, off, s[16:19], s49 offset:896 sc1\ns_mov_b64 exec, -1")
    st()
    spin(a, pv, t4, 's[28:31]', '0', '-1', first=False)
    I1P = int(opt('i1p', 11)); I1L = int(opt('i1l', 5)); BP = opt('bp', 'flag')
    if BP == 'flag': a("s_barrier")
    if PRIO: a("s_setprio 0")
    for x in f1chain(16, 12, 3, 4): a(x)
    a(f"""s_lshl_b32 s51, s2, 16
          s_lshl_b32 s49, s3, 13
          s_add_u32 s51, s51, s49
          s_add_u32 s51, s51, {OFF_V1}
          s_mul_i32 s52, s3, {4*VS}""")
    def v1get():
        if PRIO: a("s_setprio 3")
        st()
        if BP == 'pre': a("s_barrier")
        spin(a, pv, tb, 's[16:19]', 's50', '0xff', first=False)
        if BP == 'post': a("s_barrier")
        st()
        for hh in range(2):
            for i in range(4):
                a(f"s_add_u32 m0, s52, {(hh*32+i)*VS}")
                a(f"s_add_u32 s49, s51, {i*2048 + hh*1024}")
                a(f"buffer_load_dwordx4 v2, s[16:19], s49 offen sc1 lds", tag=('v', hh))
        if PRIO: a("s_setprio 0")
    a(f"""v_and_b32 {v(t2)}, 31, v1
          s_lshl_b32 s49, s33, 5
          v_add_u32 {v(t2)}, s49, {v(t2)}
          v_cvt_f32_u32 {v(t3)}, {v(t2)}
          v_add_f32 {v(t3)}, 0.5, {v(t3)}
          v_mul_f32 {v(t3)}, {lit(1/448)}, {v(t3)}
          s_sub_u32 s49, 2, s34
          v_lshl_add_u32 {v(t4)}, {v(t1)}, 3, s49
          v_mul_f32 {v(K)}, {lit(16.0)}, {v(t3)}
          v_cmp_eq_u32 vcc, 10, {v(t4)}
          v_cvt_f32_u32 {v(t4)}, {v(t4)}
          v_cos_f32 {v(K)}, {v(K)}
          v_mul_f32 {v(t4)}, {v(t4)}, {v(t3)}
          v_cndmask_b32 {v(AF)}, 1.0, 0.5, vcc
          v_add_f32 {v(K)}, {v(K)}, {v(K)}""")
    sl = lambda Q: AC + 8 * (Q % 4)
    def i1cvt(Q):
        for c in range(2):
            for h in range(2):
                a(f"v_cvt_pk_bf16_f32 {v(IT+8*(Q>>1)+4*c+2*(Q&1)+h)}, {v(sl(Q)+4*c+2*h)}, {v(sl(Q)+4*c+2*h+1)}")
    for Q in range(14):
        if Q == I1L: a(f"buffer_load_dword {v(pv)}, {v(tb)}, s[16:19], s50 offen sc1")
        if Q == I1P: v1get()
        if Q < 2:
            for r in range(4):
                k = 16 * Q + 2 * r
                a(f"v_fmamk_f32 {v(sl(Q)+4+r)}, {v(t3)}, {lit(float(k))}, {v(t4)}" if k else f"v_mov_b32 {v(sl(Q)+4+r)}, {v(t4)}")
            for r in range(4): a(f"v_cos_f32 {v(sl(Q)+r)}, {v(sl(Q)+4+r)}")
            for r in range(4): a(f"v_sin_f32 {v(sl(Q)+4+r)}, {v(sl(Q)+4+r)}")
        else:
            for c in range(0, 8, 2): a(pk('fma', sl(Q)+c, sl(Q-1)+c, ('b', K), sl(Q-2)+c, neg=[2]))
        if Q: i1cvt(Q - 1)
    a(f"v_mul_f32 {v(sl(13)+7)}, {v(sl(13)+7)}, {v(AF)}")
    a(f"""v_and_b32 {v(t3)}, 31, v1
          v_mul_u32_u24 {v(fa)}, {VS}, {v(t3)}
          v_lshl_add_u32 {v(fa)}, {v(t1)}, 5, {v(fa)}
          s_lshl_b32 s49, s34, 8
          v_add_u32 {v(fa)}, s49, {v(fa)}
          v_lshlrev_b32 {v(vo)}, 2, {v(t2)}
          s_lshl_b32 s49, s34, 1
          s_sub_u32 s49, {WB + 4}, s49
          v_lshl_add_u32 {v(wr)}, {v(t1)}, 13, s49
          v_add_u32 {v(wr)}, {v(wr)}, {v(vo)}
          s_lshl_b32 s49, s2, 1
          s_sub_u32 s54, 64, s49
          s_and_b32 s54, s54, 63
          v_add_u32 {v(K)}, s54, {v(wr)}
          v_add_u32 {v(wr)}, s49, {v(wr)}
          v_lshl_add_u32 {v(vo)}, {v(t1)}, 18, {v(vo)}
          s_lshl_b32 s49, s34, 15
          v_add_u32 {v(gr)}, s49, v2
          s_lshl_b32 s49, s33, 11
          v_add_u32 {v(ga)}, s49, {v(gr)}
          v_add_u32 {v(tb)}, {TB}, v2
          s_lshl_b32 s53, s2, 11
          s_lshl_b32 s49, s34, 10
          s_add_u32 s53, s53, s49
          s_add_u32 s53, s53, {OFF_V2}""")
    i1cvt(13)
    for k in range(8): a(f"ds_read_b128 {v(TF+4*k,4)}, {v(tb)} offset:{k*1024}")
    st()
    def f1r(ks):
        hh, q = (0, ks) if ks < 4 else (1, ks - 4)
        return [f"ds_read_b64 {v(AF+16*(ks&1)+4*(2*d+c)+2*u,2)}, {v(fa)} offset:{hh*32*VS + c*512 + (4*q+u)*16 + 8*d}"
                for d in range(2) for c in range(2) for u in range(2)]
    STG = 'nostg' not in OPT
    def rbar(role, pre=()):
        NLAB[0] += 1; Lb = f"RB{NLAB[0]}"
        a.raw(f"    s_cmp_lg_u32 s34, {role}")
        a.raw(f"    s_cbranch_scc1 {Lb}")
        for x in pre: a.raw("    " + x)
        a.raw("    s_barrier")
        a.raw(f"{Lb}:")
    a.raw(";@WARM S")
    a.wait_tag(('v', 0))
    a("s_barrier")
    st()
    if STG: rbar(1, ["s_waitcnt vmcnt(0)"])
    for x in f1r(0): a(x)
    for ks in range(7):
        mains = [m32(AC + 16 * i, AF + 16 * (ks & 1) + 4 * i, FT + 8 * ks + 4 * (i >> 1), '0' if ks == 0 else None) for i in range(4)]
        fills = f1r(ks + 1) if ks < 6 else []
        if ks == int(opt('sk', 3)):
            def sy():
                a.wait_tag(('v', 1))
                if STG: rbar(0)
                else: a("s_barrier")
            fills = [sy] + fills
        weave(a, mains, fills, span=3)
    def wrd(r):
        return [f"ds_read_u16_d16_hi {v(FT+8*((r%14)>>1)+2*(2*pm+mat)+(r&1))}, {v(K if pm else wr)} offset:{(8*(r>>2)+(r&3))*2048 + mat*1024 + pm*512}"
                for pm in range(2) for mat in range(2)]
    BF = lambda i: AF + 8 * ((i + 2) & 3)
    Tf = lambda T, s: TF + 8 * T + 4 * s
    cvt = lambda i: [f"v_cvt_pk_bf16_f32 {v(BF(i)+k)}, {v(AC+16*i+2*k)}, {v(AC+16*i+2*k+1)}" for k in range(8)]
    a.raw(";@BEG S")
    for x in cvt(0) + cvt(1): a(x)
    def f2(i0):
        o0, o1 = AC + 16 * i0, AC + 16 * i0 + 16
        C, S = BF(i0), BF(i0 + 1)
        return [m32(o0, Tf(0, 0), C, '0'), m32(o1, Tf(3, 0), C, '0'), m32(o0, Tf(0, 1), C + 4), m32(o1, Tf(3, 1), C + 4),
                m32(o0, Tf(1, 0), S), m32(o1, Tf(2, 0), S), m32(o0, Tf(1, 1), S + 4), m32(o1, Tf(2, 1), S + 4)]
    wl = [x for r in range(14) for x in wrd(r)]
    weave(a, f2(0), cvt(2) + cvt(3) + wl[:16])
    weave(a, f2(2), wl[16:])
    st()
    for k in range(8): a(f"ds_read_b128 {v(TF+4*k,4)}, {v(tb)} offset:{8192 + k*1024}")
    if not STG: a("s_barrier")
    al, de, gm, be = AC, AC + 16, AC + 32, AC + 48
    assert t1 % 2 == 0 and t2 == t1 + 1 and t3 == t1 + 2 and t4 == t1 + 3
    if STG and 'noyp' not in OPT: a("s_cmp_lg_u32 s34, 1\ns_cbranch_scc1 NOYP\ns_setprio 1"); a.raw("NOYP:")
    for r in range(0, 16, 2):
        if STG and r == int(opt('yb2', 2)): rbar(1)
        if STG and r == int(opt('yb3', 10)): rbar(1)
        Pr, Pi, Mr, Mi = [FT + 4 * (r % 14) + 2 * k for k in range(4)]
        a1, b1 = t1, t3
        A_, D_, G_, B_ = al + r, de + r, gm + r, be + r
        if r == 0:
            for k, x in enumerate((A_, D_, G_, B_)): a(f"v_mov_b32 {v(AF+k)}, {v(x)}")
        for q in range(2):
            a(f"""v_sub_f32 {v(a1+q)}, {v(A_+q)}, {v(B_+q)}
              v_add_f32 {v(b1+q)}, {v(G_+q)}, {v(D_+q)}
              v_add_f32 {v(A_+q)}, {v(A_+q)}, {v(B_+q)}
              v_sub_f32 {v(G_+q)}, {v(G_+q)}, {v(D_+q)}
              v_mul_f32 {v(B_+q)}, {v(a1+q)}, {v(Pr+q)}
              v_mul_f32 {v(D_+q)}, {v(a1+q)}, {v(Pi+q)}
              v_fmac_f32 {v(B_+q)}, {v(b1+q)}, {v(Pi+q)}
              v_fma_f32 {v(D_+q)}, -{v(b1+q)}, {v(Pr+q)}, {v(D_+q)}
              v_fma_f32 {v(a1+q)}, {v(A_+q)}, {v(Mr+q)}, {v(B_+q)}
              v_fma_f32 {v(b1+q)}, {v(A_+q)}, {v(Mi+q)}, {v(D_+q)}
              v_fma_f32 {v(A_+q)}, {v(G_+q)}, {v(Mi+q)}, {v(a1+q)}
              v_fma_f32 {v(G_+q)}, -{v(G_+q)}, {v(Mr+q)}, {v(b1+q)}
              v_fma_f32 {v(B_+q)}, {v(B_+q)}, 2.0, -{v(A_+q)}
              v_fma_f32 {v(D_+q)}, {v(D_+q)}, -2.0, {v(G_+q)}""")
        if r == 0:
            a("s_cmp_lg_u32 s2, 0")
            a("s_cbranch_scc1 NOFIX")
            a("s_mov_b32 exec_hi, 0")
            a(f"""v_mul_f32 {v(A_)}, {v(AF)}, {v(Pr)}
                  v_mul_f32 {v(G_)}, {v(AF)}, {v(Pi)}
                  v_mul_f32 {v(D_)}, {v(AF+1)}, {v(Mr)}
                  v_mul_f32 {v(B_)}, {v(AF+1)}, {v(Mi)}
                  v_fmac_f32 {v(A_)}, {v(AF+2)}, {v(Pi)}
                  v_fma_f32 {v(G_)}, -{v(AF+2)}, {v(Pr)}, {v(G_)}
                  v_fmac_f32 {v(D_)}, {v(AF+3)}, {v(Mi)}
                  v_fma_f32 {v(B_)}, -{v(AF+3)}, {v(Mr)}, {v(B_)}""")
            a("s_mov_b32 exec_hi, -1")
            a.raw("NOFIX:")
        if r == 0:
            for x in wrd(14) + wrd(15): a(x)
        for i in (0, 2, 3, 1): a(f"v_cvt_pk_bf16_f32 {v(AF+8*i+(r>>1))}, {v(AC+16*i+r)}, {v(AC+16*i+r+1)}")
    st()
    def i2(i0):
        o0, o1 = AC + 16 * i0, AC + 16 * i0 + 16
        S, D = AF + 8 * i0, AF + 8 * i0 + 8
        return [m32(o0, S, Tf(0, 0), '0'), m32(o0, S + 4, Tf(0, 1)), m32(o0, D, Tf(3, 0)), m32(o0, D + 4, Tf(3, 1)),
                m32(o1, S, Tf(1, 0), '0'), m32(o1, S + 4, Tf(1, 1)), m32(o1, D, Tf(2, 0)), m32(o1, D + 4, Tf(2, 1))]
    def gout(i):
        out = []
        for s_ in range(2):
            o = FT + 8 * i + 4 * s_
            out += [f"v_cvt_pk_bf16_f32 {v(o+k)}, {v(AC+16*i+8*s_+2*k)}, {v(AC+16*i+8*s_+2*k+1)}" for k in range(4)]
            out.append(f"ds_write_b128 {v(ga)}, {v(o,4)} offset:{i*8192 + s_*1024}")
        return out
    mm = i2(0) + i2(2)
    for x in mm[:6]: a(x)
    if STG: rbar(0)
    weave(a, mm[6:], gout(0) + gout(1) + gout(2)[:5])
    for x in gout(2)[5:] + gout(3): a(x)
    a.wait(lg=0)
    a("s_barrier")
    st()
    ring = [AF, AF + 16, TF]
    def i1r(ks):
        return [f"ds_read_b128 {v(ring[ks%3]+4*i,4)}, {v(gr)} offset:{i*8192 + ks*1024}" for i in range(4)]
    for x in i1r(0) + i1r(1): a(x)
    for ks in range(7):
        mains = [m32(AC + 16 * i, ring[ks % 3] + 4 * i, IT + 8 * ks + 4 * (i >> 1), '0' if ks == 0 else None) for i in range(4)]
        weave(a, mains, i1r(ks + 2) if ks < 5 else [])
        if STG and ks - 7 == int(opt('rx', 2)): rbar(0)
    st()
    for r in range(0, 16, 2):
        if STG and r == int(opt('rx', 2)): rbar(0)
        for q in (r, r + 1):
            a(f"""v_sub_f32 {v(t1+q-r)}, {v(AC+q)}, {v(AC+32+q)}
              v_sub_f32 {v(t3+q-r)}, {v(AC+16+q)}, {v(AC+48+q)}
              v_add_f32 {v(AC+q)}, {v(AC+q)}, {v(AC+32+q)}
              v_add_f32 {v(AC+16+q)}, {v(AC+16+q)}, {v(AC+48+q)}
              v_cvt_pk_bf16_f32 {v(AC+32+q)}, {v(t1+q-r)}, {v(t3+q-r)}
              v_cvt_pk_bf16_f32 {v(AC+48+q)}, {v(AC+q)}, {v(AC+16+q)}
              s_add_u32 s49, s53, {(8*(q>>2)+(q&3))*65536}
              buffer_store_dword {v(AC+32+q)}, {v(vo)}, s[16:19], s49 offen sc1
              buffer_store_dword {v(AC+48+q)}, {v(vo)}, s[16:19], s49 offen offset:512 sc1""")
    st()
    a(f"v_lshlrev_b32 {v(t1)}, 10, v1")
    a.wait(vm=0)
    a("s_barrier")
    wave0(a, ["s_mov_b64 exec, 0xff", f"buffer_store_dword {v(t0)}, {v(t1)}, s[16:19], s37 offen offset:900 sc1", "s_mov_b64 exec, -1"])
    a.raw(";@END S")
    st.dump(t1)
    return R.maxv

def kern(a):
    st = Stamp(a)
    a("s_cmp_ge_u32 s2, 0x100")
    a("s_cbranch_scc1 KEND")
    st()
    a("""s_load_dwordx2 s[4:5], s[0:1], 0
         s_load_dwordx2 s[8:9], s[0:1], 32
         s_load_dwordx2 s[12:13], s[0:1], 40
         s_load_dwordx2 s[16:17], s[0:1], 72
         s_load_dwordx2 s[28:29], s[0:1], 64""")
    a("s_getpc_b64 s[100:101]")
    a.raw("PCREF:")
    a("""v_lshrrev_b32 v2, 6, v0
         s_lshr_b32 s47, s2, 3
         v_lshl_add_u32 v255, s47, 3, v2
         v_readfirstlane_b32 s3, v2
         v_lshlrev_b32 v255, 7, v255
         v_and_b32 v1, 63, v0
         v_min_u32 v255, KEND-PCREF, v255
         v_lshlrev_b32 v2, 4, v1""")
    if 'notouch' not in OPT: a("global_load_dword v255, v255, s[100:101]")
    a("""s_and_b32 s33, s2, 7
         s_mov_b32 s6, 1835008
         s_mov_b32 s7, 0x00020000
         s_mov_b32 s18, 0x10000000
         s_mov_b32 s19, 0x00020000
         s_mov_b32 s30, 256
         s_mov_b32 s31, 0x00020000""")
    a("s_cmp_ge_u32 s2, 32")
    a("s_cbranch_scc1 FFN")
    for t in L(f"""s_lshl_b32 s2, s33, 2
         s_add_u32 s2, s2, s47
         s_mul_i32 s35, s2, 896
         s_mul_i32 s49, s3, {8*28672}
         s_add_u32 s35, s35, s49
         s_mul_i32 s36, s3, {8*928}
         s_mov_b32 m0, s36
         s_add_u32 s49, s36, {8*928}
         s_mov_b32 exec_hi, 0x00ffffff
         s_waitcnt lgkmcnt(0)
         XL:
         buffer_load_dwordx4 v2, s[4:7], s35 offen lds
         s_add_u32 m0, m0, 928
         s_add_u32 s35, s35, 28672
         s_cmp_lt_u32 m0, s49
         s_cbranch_scc1 XL
         s_mov_b32 exec_hi, -1
         s_branch SPEC
         FFN:
         s_mov_b32 s11, 0x00020000
         s_mov_b32 s15, 0x00020000"""): a.raw(t if t.endswith(':') else "    " + t)
    n0 = st.n
    m1 = ffn(a, st)
    a.raw(".p2align 6")
    a.label("SPEC")
    a.reset_state()
    st.n = n0
    m2 = spec(a, st)
    a.label("KEND")
    a("s_endpgm")
    return max(m1, m2)

def build():
    label = NAME + "_kernel"
    a = Asm()
    a.raw(f"; @launch grid=(256,1,1) block=(512,1,1) lds=163840")
    a.raw('.amdgcn_target "amdgcn-amd-amdhsa--gfx950"\n.text')
    a.raw(f".globl {label}\n.p2align 8\n.type {label},@function\n{label}:")
    nv = kern(a)
    print("vgprs", nv, "instrs", a.nins, file=sys.stderr)
    nv = (nv + 7) // 8 * 8
    a.raw(f""".section .rodata,"a"
.p2align 6
.amdhsa_kernel {label}
  .amdhsa_next_free_vgpr {nv}
  .amdhsa_next_free_sgpr 102
  .amdhsa_accum_offset {nv}
  .amdhsa_group_segment_fixed_size 0
  .amdhsa_kernarg_size 80
  .amdhsa_user_sgpr_count 2
  .amdhsa_user_sgpr_kernarg_segment_ptr 1
  .amdhsa_system_sgpr_workgroup_id_x 1
.end_amdhsa_kernel""")
    return a.text()

def pads(txt):
    import subprocess, re
    open('_p.s', 'w').write(txt)
    subprocess.check_call(['clang', '-target', 'amdgcn-amd-amdhsa', '-mcpu=gfx950', '-c', '_p.s', '-o', '_p.o'])
    dis = subprocess.check_output(['llvm-objdump', '-d', '_p.o']).decode()
    sz = [len(m.group(1).split()) * 4 for m in re.finditer(r'// [0-9A-F]{12}: ([0-9A-F ]+)', dis)]
    lines = txt.split('\n'); out = []; n = 0; addr = 0; cur = None; P = {'F': [], 'S': []}
    SPC = {'F': int(opt('pf', 128)), 'S': int(opt('psp', 128))}; NWV = {'F': 8, 'S': int(opt('psw', 4))}
    last = None
    for l in lines:
        t = l.strip()
        if t.startswith(';@WARM'):
            if SPC[t[-1]]: out.append(t); addr += 8 * NWV[t[-1]] + 8
            continue
        if t.startswith(';@BEG'): cur = t[-1] if SPC[t[-1]] else None; last = None; continue
        if t.startswith(';@END'): cur = None; continue
        if t == '.p2align 6' and n < len(sz):
            while sum(sz[:n]) % 64: n += 1
            addr = (addr + 63) // 64 * 64
        if l.startswith('    ') and t and not t.startswith(('.', ';', '/')) and n < len(sz):
            if cur and addr // SPC[cur] != last:
                last = addr // SPC[cur]; P[cur].append(len(out)); out.append(None); addr += 4
            addr += sz[n]; n += 1
        out.append(l)
    assert n == len(sz) or all(x == 4 for x in sz[n:]), (n, len(sz))
    for c in 'FS':
        if not SPC[c]: continue
        N = len(P[c]); w = NWV[c]; cut = [N * i // w for i in range(w + 1)]
        for k, i in enumerate(P[c]):
            out[i] = f"PAD{c}{k}:\n    s_cbranch_execz " + (f"RET{c}" if k + 1 in cut else f"PAD{c}{k+1}")
        e = "    s_mov_b64 exec, 0\n"
        for i in range(w): e += f"    s_cmp_eq_u32 s3, {i}\n    s_cbranch_scc1 PAD{c}{cut[i]}\n"
        e += f"RET{c}:\n    s_mov_b64 exec, -1"
        out[out.index(';@WARM ' + c)] = e
        print(c, 'pads', N, file=sys.stderr)
    return '\n'.join(out)

if __name__ == "__main__":
    open(sys.argv[1], "w").write(pads(build()))
```

```python
import sys, struct, math
sys.path.insert(0, 'work')
from asmlib import *

NAME = "recurrent_scan__spectral_gfnet__swiglu_ffn__prompt"
OFF_H = 0
OFF_V1 = 0x800000
OFF_V2 = 0xA00000
OFF_ST = 0xC00000
OFF_FL = 0xC10000
OFF_F2 = 0xC60000
OFF_DIAG = 0x2000000
NFAST = 24
OPT = sys.argv[2:]
DIAG = 'diag' in OPT
STAMP_OP = 's_memtime' if 'cyc' in OPT else 's_memrealtime'
LIMIT = 0x20000
PRIO = 'noprio' not in OPT

def lit(x):
    return "0x%08x" % struct.unpack('<I', struct.pack('<f', x))[0]
def m32(d, a, b, c=None):
    return f"v_mfma_f32_32x32x16_bf16 {v(d,16)}, {v(a,4)}, {v(b,4)}, {v(d,16) if c is None else c}"
def m16(d, a, b, c=None):
    return f"v_mfma_f32_16x16x32_bf16 {v(d,4)}, {v(a,4)}, {v(b,4)}, {v(d,4) if c is None else c}"

def bc(r):
    return v(r & ~1, 2), r & 1
def pk(op, d, *srcs, neg=None):
    ops = []; lo = []; hi = []
    for x in srcs:
        if isinstance(x, tuple):
            p, b = bc(x[1]); ops.append(p); lo.append(b); hi.append(b)
        else:
            assert x % 2 == 0
            ops.append(v(x, 2)); lo.append(0); hi.append(1)
    assert d % 2 == 0
    t = f"v_pk_{op}_f32 {v(d,2)}, " + ", ".join(ops)
    if any(lo): t += f" op_sel:[{','.join(map(str, lo))}]"
    if not all(hi): t += f" op_sel_hi:[{','.join(map(str, hi))}]"
    if neg:
        m = ','.join('1' if i in neg else '0' for i in range(len(srcs)))
        t += f" neg_lo:[{m}] neg_hi:[{m}]"
    return t

def em(a, x):
    if callable(x): x()
    elif isinstance(x, tuple): a(x[0], tag=x[1])
    else: a(x)
def weave(a, mains, fills, span=None):
    n = len(mains) if span is None else min(span, len(mains)); k = len(fills); done = 0
    for i, m in enumerate(mains):
        em(a, m)
        upto = min(k, (k * (i + 1) + n - 1) // n)
        while done < upto:
            em(a, fills[done]); done += 1
def merge(*lists):
    items = []
    for li, l in enumerate(lists):
        for i, x in enumerate(l):
            items.append(((i + 0.5) / len(l), li, i, x))
    items.sort(key=lambda t: (t[0], t[1], t[2]))
    return [t[3] for t in items]

NLAB = [0]
class Stamp:
    def __init__(self, a):
        self.a = a; self.n = 0
    def __call__(self, last=False):
        if not DIAG: return
        if self.n >= 22 and not last: return
        self.a.raw(f"    {STAMP_OP} s[96:97]")
        self.a.raw("    s_waitcnt lgkmcnt(0)")
        self.a.raw(f"    s_mov_b32 s{66+self.n}, s96")
        self.a.lgq = []
        self.n += 1
        assert self.n <= 23
    def dump(self, vt):
        if not DIAG: return
        a = self.a
        self(True)
        if 'probe' in OPT:
            NLAB[0] += 1; L = f"PR{NLAB[0]}"
            wgp = int(OPT[OPT.index('probe')+1]); ip = int(OPT[OPT.index('probe')+2])
            if ip < 0: ip += self.n
            a(f"s_lshl_b32 s98, s2, 3\ns_add_u32 s98, s98, s3")
            a(f"s_cmp_lg_u32 s98, {8*wgp+7}")
            a(f"s_cbranch_scc1 {L}")
            a(f"s_sub_u32 s98, s{66+min(ip, self.n-1)}, s66")
            a(f"s_add_u32 s98, s98, {int(OPT[OPT.index('probe')+3])}")
            a(f"s_mov_b32 s99, 0")
            a.raw(f"{L}_L:")
            a.raw(f"    s_memrealtime s[96:97]\n    s_add_u32 s99, s99, 1\n    s_waitcnt lgkmcnt(0)\n    s_sub_u32 s96, s96, s66\n    s_cmp_ge_u32 s96, s98\n    s_cbranch_scc1 {L}\n    s_cmp_lt_u32 s99, 100000\n    s_cbranch_scc1 {L}_L")
            a.raw(f"{L}:")
            return
        if 'dbgdiag' in OPT:
            NLAB[0] += 1; L = f"DD{NLAB[0]}"
            a(f"s_lshl_b32 s98, s2, 3\ns_add_u32 s98, s98, s3")
            a(f"s_cmp_lg_u32 s98, {8*int(OPT[OPT.index('dbgdiag')+1])+7}")
            a(f"s_cbranch_scc1 {L}")
            for i in range(1, min(17, self.n)):
                a(f"s_sub_u32 s98, s{66+i}, s66")
                a(f"v_mov_b32 {v(vt)}, s98")
                a(f"buffer_store_dword {v(vt)}, off, s[28:31], 0 offset:{4*i-4}")
                a.wait(vm=0)
            a.raw(f"{L}:")
            return
        a(f"s_lshl_b32 s98, s2, 3\ns_add_u32 s98, s98, s3\ns_lshl_b32 s98, s98, 7")
        a(f"s_add_u32 s98, s98, {OFF_DIAG}")
        for i in range(self.n):
            a(f"v_mov_b32 {v(vt)}, s{66+i}")
            a(f"buffer_store_dword {v(vt)}, off, s[16:19], s98 offset:{4*i}")
            a.wait(vm=0)

def spin(a, vdst, vaddr, srd, soff, mask, first=True, val='1'):
    NLAB[0] += 1; L = f"SP{NLAB[0]}"
    a("s_mov_b32 s99, 0")
    if not first:
        a(f"v_cmp_ne_u32 vcc, {val}, {v(vdst)}")
        a(f"s_and_b64 vcc, vcc, {mask}")
        a(f"s_cbranch_scc0 {L}_D")
    a(f"s_mov_b64 exec, {mask}")
    a.raw(f"{L}:")
    a.raw(f"    buffer_load_dword {v(vdst)}, {v(vaddr)}, {srd}, {soff} offen sc1")
    a.raw("    s_add_u32 s99, s99, 1")
    a.raw("    s_waitcnt vmcnt(0)")
    a.raw(f"    v_cmp_ne_u32 vcc, {val}, {v(vdst)}")
    a.raw("    s_nop 1")
    a.raw("    s_cmp_eq_u64 vcc, 0")
    a.raw(f"    s_cbranch_scc1 {L}_E")
    a.raw(f"    s_cmp_lt_u32 s99, {LIMIT}")
    a.raw(f"    s_cbranch_scc1 {L}")
    a.raw(f"{L}_E:")
    a.raw("    s_mov_b64 exec, -1")
    a.raw(f"{L}_D:")
    if first: a.vmq = []

def wave0(a, lines):
    NLAB[0] += 1; L = f"W0_{NLAB[0]}"
    a("s_cmp_lg_u32 s3, 0")
    a(f"s_cbranch_scc1 {L}")
    for l in lines: a.raw("    " + l)
    a.raw(f"{L}:")

def opt(name, dflt):
    return OPT[OPT.index(name) + 1] if name in OPT else dflt
def L(text):
    return [t.strip() for t in text.split('\n') if t.strip()]

def spinh(a, vdst, vaddr, off, mask, slow=None, back=None):
    NLAB[0] += 1; Lb = f"SP{NLAB[0]}"
    a(f"v_cmp_eq_u32 vcc, 1, {v(vdst)}")
    a(f"s_andn2_b32 s54, {mask}, vcc_lo")
    a(f"s_cbranch_scc0 {Lb}_D")
    r = lambda t: a.raw("    " + t)
    r("s_mov_b32 s99, 0")
    r("s_mov_b32 exec_hi, 0")
    if back: r(back)
    a.raw(f"{Lb}:")
    r(f"buffer_load_dword {v(vdst)}, {v(vaddr)}, s[16:19], s61 offen offset:{off} sc1")
    r("s_add_u32 s99, s99, 1")
    r("s_waitcnt vmcnt(0)")
    r(f"v_cmp_eq_u32 vcc, 1, {v(vdst)}")
    r("s_nop 1")
    r("s_or_b32 s54, vcc_lo, vcc_hi")
    r(f"s_andn2_b32 s54, {mask}, s54")
    r(f"s_cbranch_scc0 {Lb}_E")
    r(f"s_cmp_lg_u32 s99, {NFAST}")
    r(f"s_cbranch_scc1 {Lb}_C")
    if slow:
        r("s_mov_b32 exec_lo, 1")
        r(slow)
    r("s_mov_b64 exec, -1")
    a.raw(f"{Lb}_C:")
    r(f"s_cmp_lt_u32 s99, {LIMIT}")
    r(f"s_cbranch_scc1 {Lb}")
    a.raw(f"{Lb}_E:")
    r("s_mov_b64 exec, -1")
    a.raw(f"{Lb}_D:")

def ffn(a, st):
    XB = 16384; WB = 114688
    X = lambda s: XB + 32768 * s
    W = lambda s: WB + 16384 * s
    USLOT = [1024 * k for k in (0, 0, 48, 64, 128, 144, 96, 80, 112, 128, 16, 32, 48, 64)]
    UBASE = [1024 * k for k in (0, 0, 0, 64, 96, 96, 96, 80, 80, 80, 16, 16, 16, 16)]
    RB = 81920
    a("""s_load_dwordx2 s[20:21], s[0:1], 48
         s_load_dwordx2 s[24:25], s[0:1], 56""")
    R = RegAlloc(start=3, limit=256)
    t0 = R.get(); t1 = R.get(); t2 = R.get()
    vx = [R.get(), R.get()]; vw = R.get(); vd = R.get()
    xa = [[R.get(), R.get()] for _ in range(2)]
    wa = [[R.get(), R.get()] for _ in range(2)]
    da = [R.get() for _ in range(4)]
    big = R.get(144, 2)
    acc = [[[big + 32 * mat + 16 * F + 4 * nt for nt in range(4)] for F in range(2)] for mat in range(2)]
    wf = [[big + 64 + 16 * b + 4 * i for i in range(4)] for b in range(2)]
    xf = [[big + 96 + 16 * b + 4 * i for i in range(4)] for b in range(2)]
    cs = [big + 128, big + 132]; ones = big + 136; stv = big + 140
    wd = [R.get(16, 2) for _ in range(5)]
    sp = R.get(8, 2)
    a(f"""s_sub_u32 s37, s47, 4
         v_lshrrev_b32 {v(t0)}, 3, v1
         s_mul_i32 s34, s37, 37
         v_and_b32 {v(t1)}, 7, v1
         s_lshr_b32 s34, s34, 8
         v_lshrrev_b32 {v(t2)}, 4, v1
         s_lshl_b32 s3, s3, 2
         s_lshr_b32 s3, 0x76325410, s3
         s_and_b32 s3, s3, 7
         s_and_b32 s38, s3, 3
         v_and_b32 {v(vw)}, 1, {v(t2)}
         s_lshr_b32 s39, s3, 2
         s_and_b32 s62, s34, 2
         s_mul_i32 s63, s62, 7
         s_sub_u32 s37, s37, s63
         s_lshl_b32 s60, s37, 1
         s_and_b32 s89, s33, 6
         s_add_u32 s89, s89, s37
         s_mul_i32 s63, s62, {int(opt('dq', 0)) * 4 % 7}
         s_add_u32 s89, s89, s63
         s_and_b32 s61, s33, 1
         s_mul_i32 s63, s61, 14
         s_add_u32 s37, s37, s63
         s_and_b32 s63, s34, 1
         s_lshl_b32 s63, s63, 1
         s_and_b32 s49, s3, 1
         s_lshl_b32 s49, s49, 1
         v_or_b32 {v(vw)}, s49, {v(vw)}
         s_mul_i32 s90, s89, 37
         v_lshlrev_b32 {v(vw)}, 1, {v(vw)}
         s_lshr_b32 s90, s90, 8
         v_xor_b32 {v(vw)}, {v(vw)}, {v(t1)}
         s_mul_i32 s90, s90, 7
         v_lshlrev_b32 {v(vw)}, 4, {v(vw)}
         s_sub_u32 s89, s89, s90
         v_mul_u32_u24 {v(vd)}, 3584, {v(t0)}
         s_lshl_b32 s89, s89, 7
         v_add_u32 {v(vw)}, {v(vw)}, {v(vd)}
         s_mul_i32 s45, s3, {8*3584}
         v_xor_b32 {v(vx[1])}, {v(t1)}, {v(t2)}
         {'s_mov_b32 s49, 0' if 'hit' in OPT else 's_lshl_b32 s49, s37, 7'}
         v_lshlrev_b32 {v(vx[1])}, 4, {v(vx[1])}
         s_add_u32 s45, s45, s49
         v_mul_u32_u24 {v(vx[0])}, 28672, {v(t0)}
         s_lshl_b32 s46, s3, 11
         v_add_u32 {v(vx[0])}, {v(vx[0])}, {v(vx[1])}
         s_mov_b32 s10, 1605632
         v_xor_b32 {v(vx[1])}, 64, {v(vx[0])}
         s_mov_b32 s14, 1605632
         s_lshr_b32 s48, s38, 1
         s_xor_b32 s48, s48, s33
         s_lshl_b32 s48, s48, 2
         s_add_u32 s48, s48, s62
         s_and_b32 s49, s38, 1
         s_add_u32 s48, s48, s49
         s_mul_i32 s40, s48, 896
         s_mul_i32 s49, s39, {32*28672}
         s_add_u32 s40, s40, s49
         s_lshl_b32 s44, s38, 13
         s_lshl_b32 s49, s39, 12
         s_add_u32 s44, s44, s49
         s_add_u32 s90, s89, 128
         s_cmp_eq_u32 s90, 896
         s_cselect_b32 s90, 0, s90
         s_and_b32 s54, s63, 1
         s_lshl_b32 s54, s54, 6
         v_xor_b32 {v(xa[0][1])}, s54, {v(vx[0])}
         v_xor_b32 {v(xa[1][1])}, s54, {v(vx[1])}
         s_add_u32 s65, s89, s40""")
    def xdma(c):
        out = []
        for i in range(4):
            def f(i=i):
                a(f"s_add_u32 m0, s44, {X(c%3)}")
                a(f"s_add_u32 s49, s{40+i}, s{89+c}")
                a(f"buffer_load_dwordx4 {v(vx[i&1])}, s[4:7], s49 offen offset:{i*1024} lds", tag=('x', c))
            out.append(f)
        return out
    def wdma(c):
        out = []
        for mat in range(2):
            def f(mat=mat):
                a(f"s_mul_i32 s49, s{89+c}, 1792")
                a(f"s_add_u32 m0, s46, {W(c%3) + mat*1024}")
                a(f"s_add_u32 s49, s49, s45")
                a(f"buffer_load_dwordx4 {v(vw)}, s[{8+4*mat}:{11+4*mat}], s49 offen lds", tag=('x', c))
            out.append(f)
        return out
    a(f"""s_mul_i32 s49, s89, 1792
          s_add_u32 m0, s46, {W(0)}
          s_add_u32 s49, s49, s45""")
    a.wait_smem()
    st()
    def x0q(k):
        a(f"s_xor_b32 s54, s63, {k}")
        a(f"s_lshl_b32 s64, s54, 10")
        a(f"s_mul_i32 s54, s54, {8*28672}")
        a(f"s_add_u32 s64, s64, s44")
        a(f"s_add_u32 s54, s54, s65")
        a(f"s_add_u32 m0, s64, {X(0)}")
        a.raw("    s_nop 0")
        a(f"buffer_load_dwordx4 {v(xa[k&1][1])}, s[4:7], s54 offen lds", tag=('x', 0))
    a(f"buffer_load_dwordx4 {v(vw)}, s[8:11], s49 offen lds", tag=('x', 0))
    a(f"s_add_u32 m0, s46, {W(0) + 1024}")
    a.raw("    s_nop 0")
    a(f"buffer_load_dwordx4 {v(vw)}, s[12:15], s49 offen lds", tag=('x', 0))
    x0q(0)
    CW = {c: wdma(c) for c in range(1, 7)}
    CX = {c: xdma(c) for c in range(1, 7)}
    R1 = opt('r1', 'x')
    if R1 == 'w': CW[1].pop(0)()
    if R1 == 'x': x0q(1)
    if 'fs' in OPT: st()
    for i in range(1, 4): a(f"s_add_u32 s{40+i}, s40, {i*(8*28672-1024)}")
    rot = lambda i: L(f"s_add_u32 s{89+i}, s{88+i}, 128\ns_cmp_eq_u32 s{89+i}, 896\ns_cselect_b32 s{89+i}, 0, s{89+i}")
    for i in range(2, 5):
        for x in rot(i): a(x)
    a(f"""v_lshlrev_b32 {v(vd)}, 1, {v(t2)}
          v_xor_b32 {v(vd)}, {v(vd)}, {v(t1)}
          v_lshlrev_b32 {v(vd)}, 4, {v(vd)}
          v_mul_u32_u24 {v(t0)}, 896, {v(t0)}
          v_add_u32 {v(vd)}, {v(vd)}, {v(t0)}""")
    a(f"""v_and_b32 {v(t0)}, 15, v1
          v_bfe_u32 {v(t1)}, v1, 1, 3
          v_xor_b32 {v(t1)}, {v(t1)}, {v(t2)}
          s_and_b32 s49, s38, 2
          s_lshl_b32 s49, s49, 1
          v_xor_b32 {v(t1)}, s49, {v(t1)}
          v_lshlrev_b32 {v(t1)}, 4, {v(t1)}
          v_lshl_add_u32 {v(t1)}, {v(t0)}, 7, {v(t1)}
          s_lshl_b32 s49, s38, 13
          s_add_u32 s49, s49, {XB}
          v_add_u32 {v(xa[0][0])}, s49, {v(t1)}
          v_xor_b32 {v(xa[1][0])}, 64, {v(xa[0][0])}""")
    a(f"""v_bfe_u32 {v(t0)}, v1, 3, 2
          s_lshl_b32 s49, s39, 1
          s_and_b32 s54, s38, 1
          s_or_b32 s58, s49, s54
          v_xor_b32 {v(t0)}, s58, {v(t0)}
          v_lshlrev_b32 {v(t0)}, 5, {v(t0)}
          v_bfe_u32 {v(t1)}, v1, 2, 2
          v_lshl_add_u32 {v(t0)}, {v(t1)}, 7, {v(t0)}
          v_and_b32 {v(t1)}, 3, v1
          v_lshl_add_u32 {v(t0)}, {v(t1)}, 3, {v(t0)}
          v_lshl_add_u32 {v(t0)}, {v(t2)}, 11, {v(t0)}
          s_and_b32 s49, s38, 2
          s_lshl_b32 s49, s49, 12
          s_add_u32 s49, s49, {WB}
          v_add_u32 {v(wa[0][0])}, s49, {v(t0)}
          v_xor_b32 {v(wa[0][1])}, 32, {v(wa[0][0])}
          v_xor_b32 {v(wa[1][0])}, 0x2000, {v(wa[0][0])}
          v_xor_b32 {v(wa[1][1])}, 0x2000, {v(wa[0][1])}""")
    for i in range(4): a(f"v_mov_b32 {v(ones+i)}, 0x3f803f80")
    a(f"""v_min_u32 {v(sp+5)}, 6, v1
          v_lshlrev_b32 {v(sp+5)}, 7, {v(sp+5)}
          s_lshl_b32 s49, s2, 3
          s_add_u32 s49, s49, s3
          s_sub_u32 s49, s49, 256
          s_mul_i32 s55, s49, 896
          s_mov_b32 s22, 1605632
          s_mov_b32 s23, 0x00020000""")
    FIL = {}
    FIL[0] = L(f"""v_add_u32 {v(xa[0][1])}, 0x10000, {v(xa[0][0])}
          v_add_u32 {v(xa[1][1])}, 0x10000, {v(xa[1][0])}""")
    FIL[1] = L(f"""s_mul_i32 s35, s34, 5
          s_lshr_b32 s54, s89, 7
          s_add_u32 s35, s35, s54
          s_mul_i32 s54, s35, 37
          s_lshr_b32 s54, s54, 8
          s_mul_i32 s54, s54, 7
          s_sub_u32 s35, s35, s54
          s_lshl_b32 s50, s33, 2
          s_add_u32 s50, s50, s34
          s_mul_i32 s51, s38, {224*896}
          s_mul_i32 s54, s61, {896*896}
          s_add_u32 s51, s51, s54
          s_mul_i32 s54, s39, {16*896}
          s_add_u32 s51, s51, s54
          {'s_mov_b32 s54, 0' if 'hitd' in OPT else 's_lshl_b32 s54, s35, 7'}
          s_add_u32 s51, s51, s54
          s_add_u32 s52, s51, {8*896-1024}
          s_xor_b32 s54, s39, s50
          s_and_b32 s54, s54, 1
          s_lshl_b32 s54, s54, 11
          s_lshl_b32 s53, s38, 12
          s_add_u32 s53, s53, s54""")
    def ddma(u):
        out = []
        for i in range(2):
            def f(i=i):
                a(f"s_mul_i32 s49, s{89+u%7}, 224")
                if u == 7: a(f"s_mul_i32 s64, s65, {896*896}\ns_add_u32 s{51+i}, s{51+i}, s64")
                a(f"s_add_u32 m0, s53, {USLOT[u]}")
                a(f"s_add_u32 s49, s49, s{51+i}")
                a(f"buffer_load_dwordx4 {v(vd)}, s[20:23], s49 offen offset:{i*1024} lds", tag=('d', u))
            out.append(f)
        return out
    FIL[2] = ["\n".join(rot(5)), "\n".join(rot(6))] + L(f"""v_bfe_u32 {v(t0)}, v1, 3, 2
          s_and_b32 s54, s38, 2
          v_xor_b32 {v(t0)}, s54, {v(t0)}
          v_lshlrev_b32 {v(t0)}, 5, {v(t0)}
          v_lshl_add_u32 {v(t0)}, {v(t1)}, 3, {v(t0)}
          v_lshrrev_b32 {v(t1)}, 2, v1
          v_lshl_add_u32 {v(t0)}, {v(t1)}, 7, {v(t0)}
          s_lshl_b32 s54, s38, 12
          v_add_u32 {v(da[0])}, s54, {v(t0)}""") + [f"v_xor_b32 {v(da[i])}, {32*i}, {v(da[0])}" for i in range(1, 4)]
    dbase = [USLOT[0]]
    def dreads(u):
        out = []
        if UBASE[u] != dbase[0]:
            off = UBASE[u] - dbase[0]
            for i in range(4): out.append(f"v_add_u32 {v(da[i])}, {off & 0xffffffff:#x}, {v(da[i])}")
            dbase[0] = UBASE[u]
        off = USLOT[u] - dbase[0]
        for i in range(4):
            for h in range(2):
                out.append(f"ds_read_b64_tr_b16 {v(wd[u%5]+4*i+2*h,2)}, {v(da[i])} offset:{off + h*2048}")
        return out
    dbg = sp + 1; pv = sp + 2; sta = sp + 3
    FIL[3] = L(f"""v_and_b32 {v(dbg)}, 31, v1
          v_lshlrev_b32 {v(dbg)}, 3, {v(dbg)}
          v_and_b32 {v(sta)}, 15, v1
          v_lshlrev_b32 {v(sta)}, 4, {v(sta)}
          s_lshl_b32 s56, s48, 8
          s_add_u32 s56, s56, {OFF_ST}
          s_mul_i32 s57, s48, 56
          s_lshl_b32 s54, s37, 1
          s_add_u32 s57, s57, s54
          s_add_u32 s57, s57, s39
          s_lshl_b32 s57, s57, 12
          s_lshl_b32 s65, s61, 1
          s_sub_u32 s65, 1, s65
          s_mov_b32 s26, 1835008
          s_mov_b32 s27, 0x00020000""")
    FIL[4] = L(f"""s_mul_i32 s59, s50, 56
          s_mul_i32 s54, s38, 7
          s_add_u32 s59, s59, s54
          s_mul_i32 s54, s61, 28
          s_add_u32 s59, s59, s54
          s_lshl_b32 s59, s59, 12
          s_lshl_b32 s54, s39, 11
          s_add_u32 s59, s59, s54
          s_add_u32 s60, s60, s39
          s_mul_i32 s54, s60, 37
          s_lshr_b32 s54, s54, 8
          s_add_u32 s54, s54, 1
          s_lshl_b32 s54, s54, 4
          s_and_b32 s61, s38, 2
          s_mul_i32 s54, s54, s61
          s_add_u32 s60, s60, s54
          s_lshl_b32 s54, s48, 8
          s_add_u32 s60, s60, s54
          s_lshl_b32 s60, s60, 2
          s_add_u32 s60, s60, {OFF_F2}
          s_lshl_b32 s61, s50, 10
          s_add_u32 s61, s61, {OFF_F2}""")
    FIL[5] = L(f"""s_mul_i32 s36, s38, 7
          s_lshl_b32 s36, 0x7f, s36
          s_lshl_b32 s62, s3, 15
          s_lshl_b32 s54, s33, 10
          s_add_u32 s62, s62, s54
          s_add_u32 s62, s62, {OFF_FL + 900}
          s_lshl_b32 s63, s58, 9
          s_add_u32 s63, s63, s50
          s_mul_i32 s63, s63, 896
          s_lshl_b32 s54, s35, 7
          s_add_u32 s63, s63, s54
          s_and_b32 s54, s38, 2
          s_lshl_b32 s54, s54, 5
          s_add_u32 s63, s63, s54""")
    FIL[7] = L(f"""s_lshl_b32 s32, s50, 16
          s_lshl_b32 s54, s3, 13
          s_add_u32 s32, s32, s54
          s_add_u32 s32, s32, {OFF_V2}
          s_add_u32 s47, s32, 3072
          v_mov_b32 {v(sp)}, 0""")
    def wreads(S):
        c, e = divmod(S, 2)
        return [f"ds_read_b64_tr_b16 {v(wf[S&1][2*mat+F]+2*u,2)}, {v(wa[e][F])} offset:{(c%3)*16384 + mat*1024 + u*512}"
                for F in range(2) for mat in range(2) for u in range(2)]
    def xreads(S):
        c, e = divmod(S, 2); s = c % 3
        return [f"ds_read_b128 {v(xf[S&1][nt],4)}, {v(xa[e][s>>1])} offset:{(s&1)*32768 + nt*2048}" for nt in range(4)]
    def reads(S):
        w = wreads(S); x = xreads(S)
        return [x[0]] + w[0:4] + [x[1]] + w[4:8] + [x[2], x[3]]
    tou = [] if 'nomall' in OPT else [f"buffer_load_dword {v(sp+4)}, {v(sp+5)}, s[20:23], s55 offen"]
    SCH = opt('sch', 'w1x14,Tw2x22,x22w3,x34,Dw4,x44,w5x51,x53,Ew6,x64').split(',')
    def sched(S):
        out = []; t = SCH[S + 1] if S + 1 < len(SCH) else ''; i = 0
        while i < len(t):
            if t[i] == 'T': out += tou; i += 1
            elif t[i] == 'D': assert S < 5; out += ddma(0); i += 1
            elif t[i] == 'E': assert 7 <= S < 9; out += ddma(1); i += 1
            else:
                c = int(t[i + 1]); assert S >= 2 * (c - 3) + 1 and S < 2 * c - 1
                if t[i] == 'w': out += CW[c]; CW[c] = []; i += 2
                else:
                    for _ in range(int(t[i + 2])): out.append(CX[c].pop(0))
                    i += 3
        return out
    for x in FIL.pop(1): a(x)
    if 'fs' in OPT: st()
    if 'nob0' not in OPT: a("s_barrier")
    for k in range(2 if R1 == 'x' else 1, 4): x0q(k)
    if 'fs' in OPT: st()
    if 'b1' in OPT: a("s_barrier")
    for f in sched(-1): em(a, f)
    if 'fs' in OPT: st()
    a.raw(";@WARM F")
    a.wait_tag(('x', 0))
    if 'fs' in OPT: st()
    a("s_barrier")
    st()
    for x in reads(0): a(x)
    if 'pa' in OPT: a.raw(";@BEG F")
    for S in range(14):
        c, e = divmod(S, 2)
        mains = []
        for nt in range(4):
            for F in range(2):
                for mat in range(2):
                    mains.append(m16(acc[mat][F][nt], wf[S & 1][2 * mat + F], xf[S & 1][nt], '0' if S == 0 else None))
        if e == 0:
            for mat in range(2):
                mains.insert(2 + mat, m16(cs[mat], wf[S & 1][2 * mat], ones, '0' if S == 0 else None))
        pre = []; rd = []; dm = []; ex = []
        if e == 1:
            def sync(c=c):
                if 'fine' in OPT: st()
                if c < 6: a.wait_tag(('x', c + 1))
                if c == 2: a.wait_tag(('d', 0))
                if c == 4: a.wait_tag(('d', 1))
                if c == 5: a.wait_tag(('d', 4))
                a.wait(lg=0)
                a("s_barrier")
                if 'fine' in OPT: st()
                if c == 6 and PRIO:
                    a("s_cmp_ge_u32 s38, 2\ns_cbranch_scc1 NOPR\ns_setprio 2")
                    a.raw("NOPR:")
            pre = [sync]
        dm = sched(S) if not ('d9' in OPT and S in (9, 10)) else []
        if S >= 9: dm = dm + {9: lambda: ddma(2) + ddma(3), 10: lambda: ddma(4), 11: lambda: ddma(5) + ddma(6), 12: lambda: ddma(7),
                    13: lambda: ddma(8) + ddma(9) + ddma(10)}[S]()
        if 'd9' in OPT and S in (9, 10): dm = sched(S) + (ddma(2) + ddma(3) + ddma(4) if S == 9 else [])
        if 'nodma' in OPT: dm = []
        if S < 13: rd = reads(S + 1)
        if S == 8: dm = dm + [f"buffer_load_dword {v(pv)}, {v(dbg)}, s[28:31], 0 offen sc1"]
        if S == 10:
            def chk():
                spin(a, pv, dbg, 's[28:31]', '0', '-1', first=False)
                a(f"buffer_load_dwordx4 {v(stv,4)}, {v(sta)}, s[16:19], s56 offen sc1")
                a(f"buffer_load_dword {v(sp+4)}, {v(sp)}, s[16:19], s61 offen sc1")
            dm = dm + [chk]
        if S == 6: ex = dreads(0)
        if S == 10: ex = dreads(1)
        if S == 11:
            ex = dreads(2); d3 = dreads(3); ex += d3[:8]
        if S == 12:
            ex = d3[8:] + dreads(4)
            ex += [f"s_lshl_b32 s54, s3, 11", f"v_add_u32 {v(t0)}, s54, v2",
                   f"ds_write_b128 {v(t0)}, {v(cs[0],4)}", f"ds_write_b128 {v(t0)}, {v(cs[1],4)} offset:1024"]
        if S == 13:
            ex = [f"s_and_b32 s54, s3, 5", f"s_lshl_b32 s54, s54, 11", f"v_add_u32 {v(t0)}, s54, v2", f"v_xor_b32 {v(t1)}, 0x800, {v(t0)}"]
            for F in range(2):
                for mat in range(2):
                    for hp in range(2):
                        dst = (wf[0][0] if hp == 0 else xf[0][0]) + 8 * mat + 4 * F
                        ex.append(f"ds_read_b128 {v(dst,4)}, {v(t1 if F else t0)} offset:{hp*4096 + mat*1024}")
        ex = ex + FIL.get(S, [])
        fills = pre + merge(*[l for l in (rd, dm) if l]) + ex
        weave(a, mains, fills)
    assert all(not l for l in CW.values()) and all(not l for l in CX.values())
    st()
    if 'pa' not in OPT: a.raw(";@BEG F")
    NPK = [int(opt('npk', 0))]
    def epk(op, d, *srcs):
        if NPK[0] <= 0: return pk(op, d, *srcs)
        NPK[0] -= 1
        return "\n".join(f"v_{op}_f32 {v(d+h)}, " + ", ".join(v(x[1]) if isinstance(x, tuple) else v(x+h) for x in srcs) for h in range(2))
    cv = wf[0][0]
    nm = wf[1][0]; c1 = nm + 4; d2 = nm + 8
    for i in range(4):
        a(f"v_lshlrev_b32 {v(d2+i)}, 16, {v(stv+i)}")
        a(f"v_and_b32 {v(nm+i)}, 0xffff0000, {v(stv+i)}")
        a(f"v_rcp_f32 {v(c1+i)}, {v(d2+i)}")
    for i in range(0, 16, 2): a(epk('add', cv + i, cv + i, xf[0][0] + i))
    for i in range(4):
        a(f"v_mul_f32 {v(d2+i)}, {v(d2+i)}, {v(d2+i)}")
        a(f"v_mul_f32 {v(c1+i)}, {lit(-math.log2(math.e))}, {v(c1+i)}")
    late = ddma(11) + ddma(12) + ddma(13)
    for nt in range(4):
        e = xf[0][0] + 8 * (nt & 1); hp = xf[1][nt]
        idx = [(F, r) for F in range(2) for r in range(4)]
        G = lambda F, r: acc[0][F][nt] + r
        U = lambda F, r: acc[1][F][nt] + r
        pi = [(F, r) for F in range(2) for r in (0, 2)]
        for F, r in pi: a(epk('fma', G(F,r), cv+4*F+r, ('b', nm+nt), G(F,r)))
        for F, r in pi: a(epk('mul', e+4*F+r, G(F,r), ('b', c1+nt)))
        if nt < 3: late[2 * nt]()
        for F, r in pi: a(epk('fma', U(F,r), cv+8+4*F+r, ('b', nm+nt), U(F,r)))
        for F, r in idx: a(f"v_exp_f32 {v(e+4*F+r)}, {v(e+4*F+r)}")
        for F, r in pi: a(epk('mul', U(F,r), U(F,r), G(F,r)))
        for F, r in pi: a(epk('fma', e+4*F+r, e+4*F+r, ('b', d2+nt), ('b', d2+nt)))
        if nt < 3: late[2 * nt + 1]()
        for F, r in idx: a(f"v_rcp_f32 {v(e+4*F+r)}, {v(e+4*F+r)}")
        for F, r in pi: a(epk('mul', U(F,r), U(F,r), e+4*F+r))
        for i in range(4): a(f"v_cvt_pk_bf16_f32 {v(hp+i)}, {v(U(i>>1,2*(i&1)))}, {v(U(i>>1,2*(i&1)+1))}")
        a(f"buffer_store_dwordx4 {v(hp,4)}, v2, s[16:19], s57 offen offset:{nt*1024} {opt('hm', 'sc1').replace('+', ' ')}", tag='hs')
    st()
    T2 = sp
    vh = vx; pa = vw; pv = xa[0][0]; vo = xa[0][1]; v2a = xa[1][0]; one = xa[1][1]
    xv = wa[0][0]
    assert xv % 2 == 0 and wa[1][1] == xv + 3
    hf = [[big + 8 * s + 4 * N for N in range(2)] for s in range(14)]
    ab = [[big + 112 + 16 * N + 4 * i for i in range(4)] for N in range(2)]
    T2o = big + 40
    va = [da[0], da[1]]
    a(f"""s_and_b32 s49, s38, 1
          s_lshl_b32 s49, s49, 10
          v_add_u32 {v(vh[0])}, s49, v2
          v_xor_b32 {v(vh[1])}, 0x400, {v(vh[0])}
          v_mov_b32 {v(one)}, 1""")
    def hloads(u0, u1):
        for u in range(u0, u1):
            a(f"s_lshl_b32 s49, s{89+u%7}, 5")
            if u == 7: a(f"s_mul_i32 s64, s65, {28*4096}\ns_add_u32 s59, s59, s64")
            a(f"s_add_u32 s49, s49, s59")
            for N in range(2):
                a(f"buffer_load_dwordx4 {v(hf[u][N],4)}, {v(vh[N])}, s[16:19], s49 offen sc1")
    tmp = hf[7][0]
    F1 = L(f"""v_and_b32 {v(t0)}, 15, v1
          v_mul_u32_u24 {v(vo)}, 28672, {v(t0)}
          v_lshl_add_u32 {v(vo)}, {v(t2)}, 3, {v(vo)}
          s_lshl_b32 s54, s58, 4
          v_add_u32 {v(t0)}, s54, {v(t0)}
          v_cvt_f32_u32 {v(t0)}, {v(t0)}
          v_mul_f32 {v(t0)}, {lit(1/64)}, {v(t0)}
          v_cvt_f32_u32 {v(t1)}, {v(t2)}
          v_mul_f32 {v(t1)}, 4.0, {v(t1)}
          v_mul_f32 {v(tmp)}, {v(t1)}, {v(t0)}""")
    F1 += [f"v_fmamk_f32 {v(tmp+k)}, {v(t0)}, {lit(float(16*(k>>2)+(k&3)))}, {v(tmp)}" for k in range(1, 8)]
    F1 += [f"v_cos_f32 {v(tmp+8+k)}, {v(tmp+k)}" for k in range(8)]
    F1 += [f"v_sin_f32 {v(tmp+k)}, {v(tmp+k)}" for k in range(8)]
    F1 += L(f"""v_lshlrev_b32 {v(t1)}, 31, v1
          v_or_b32 {v(t1)}, 1.0, {v(t1)}
          v_cmp_gt_u32 vcc, 16, v1
          v_cndmask_b32 {v(tmp)}, {v(tmp)}, {v(t1)}, vcc""")
    F1 += [f"v_cvt_pk_bf16_f32 {v(T2+k)}, {v(tmp+8+k)}, {v(tmp+k)}" for k in range(8)]
    F1 += L(f"""v_bfe_u32 {v(t0)}, v1, 2, 2
          s_and_b32 s54, s3, 1
          v_xor_b32 {v(t0)}, s54, {v(t0)}
          s_lshl_b32 s54, s35, 2
          v_add_u32 {v(t0)}, s54, {v(t0)}
          v_subrev_u32 {v(t1)}, 14, {v(t0)}
          v_min_u32 {v(t0)}, {v(t0)}, {v(t1)}
          v_lshlrev_b32 {v(t0)}, 6, {v(t0)}
          v_sub_u32 {v(t1)}, 1344, {v(t0)}
          v_cmp_gt_u32 vcc, 448, {v(t0)}
          v_cndmask_b32 {v(t0)}, {v(t1)}, {v(t0)}, vcc
          v_lshl_add_u32 {v(t0)}, {v(t2)}, 10, {v(t0)}
          v_and_b32 {v(t1)}, 3, v1
          v_lshl_add_u32 {v(v2a)}, {v(t1)}, 4, {v(t0)}""")
    xld = [f"buffer_load_dwordx2 {v(xv+2*cl,2)}, {v(vo)}, s[4:7], s63 offen offset:{cl*32}" for cl in range(2)]
    F2 = []
    for cl in range(2):
        F2 += [f"""s_and_b32 s0, s38, 2
              s_add_u32 s0, s0, {cl}
              s_lshl_b32 s54, s35, 2
              s_add_u32 s54, s54, s0""", f"""s_cmp_ge_u32 s54, 14
              s_cselect_b32 s64, 14, 0
              s_cselect_b32 s65, 0x80008000, 0
              s_sub_u32 s54, s54, s64""", f"""s_cmp_ge_u32 s54, 7
              s_cselect_b32 s64, 15, 0
              s_cselect_b32 s54, 0x80008000, 0
              s_xor_b32 s65, s65, s54"""] + L(f"""v_and_b32 {v(t1)}, 1, {v(t2)}
              v_xor_b32 {v(t1)}, s0, {v(t1)}
              v_lshlrev_b32 {v(t1)}, 6, {v(t1)}
              v_lshl_add_u32 {v(t1)}, {v(t2)}, 11, {v(t1)}
              v_and_b32 {v(va[cl])}, 15, v1
              v_xor_b32 {v(va[cl])}, s64, {v(va[cl])}
              v_lshl_add_u32 {v(va[cl])}, {v(va[cl])}, 2, {v(t1)}""")
        F2 += [f"v_xor_b32 {v(T2o+8*cl+k)}, s65, {v(T2+k)}" for k in range(8)]
    ra = [da[2], da[3], vd, t0]
    for k in range(1, 5):
        F2 += [f"s_xor_b32 s54, s3, {k&3}\ns_mul_i32 s54, s54, 6144\ns_add_u32 s54, s54, {RB}", f"v_add_u32 {v(ra[k-1])}, s54, v2"]
    flag = lambda off, sc: f"buffer_store_dword {v(one)}, off, s[16:19], s60 offset:{off}{sc}"
    back = None if 'noback' in OPT else f"buffer_load_dword {v(t1)}, {v(t0)}, s[16:19], s57 offen sc1"
    a(f"v_lshlrev_b32 {v(pa)}, 2, v1")
    a(f"v_lshlrev_b32 {v(t0)}, 7, v1")
    a(f"s_mov_b32 exec_hi, 0\nbuffer_load_dword {v(pv)}, {v(pa)}, s[16:19], s61 offen sc1\ns_mov_b32 exec_lo, 1")
    a.wait_tag('hs')
    st()
    a("s_cmp_ge_u32 s38, 2")
    a("s_cbranch_scc0 BX")
    a.raw("    " + flag(128, ' sc1'))
    a("s_branch BY")
    a.raw("BX:")
    a(flag(0, ''))
    a("s_mov_b32 exec_lo, -1")
    spinh(a, pv, pa, 0, '0x0fffffff', flag(128, ' sc1'), back)
    a.raw("BY:")
    a("s_mov_b64 exec, -1")
    a("s_barrier")
    st()
    LA = int(opt('la', 3))
    hloads(0, LA)
    a("s_lshl_b32 s54, s38, 7\ns_add_u32 s61, s61, s54")
    if PRIO: a("s_setprio 0")
    a.vmq.insert(0, dict(w={('v', t1)}, tag=None))
    F1 = [x.replace(v(t1), v(tmp+16)) for x in F1]
    for x in F1 + xld: a(x)
    PS = int(opt('ps', 1)); B2 = int(opt('b2', 11))
    for s in range(14):
        dr = dreads(s + 5) if s + 5 < 14 else []
        pre = dr[:len(dr) - 8]; dr = dr[len(pre):]
        fl = F2[len(F2) * (s - 9) // 5: len(F2) * (s - 8) // 5] if s >= 9 else []
        for x in pre: a(x)
        for i in range(4):
            for N in range(2):
                a(m16(ab[N][i], wd[s % 5] + 4 * i, hf[s][N], '0' if s == 0 else None))
                k = 2 * i + N
                for x in fl[len(fl) * k // 8: len(fl) * (k + 1) // 8]: a(x)
            for x in dr[2 * i: 2 * i + 2]: a(x)
            if i == 0:
                if s + LA == 7:
                    st()
                    spinh(a, pv, pa, 256, 's36', flag(128, ' sc1'))
                    st()
                    a(f"v_and_b32 {v(pa)}, 3, v1")
                    a(f"v_lshlrev_b32 {v(pa)}, 13, {v(pa)}")
                if s == PS: a(f"s_mov_b32 exec_hi, 0\nbuffer_load_dword {v(pv)}, {v(pa)}, s[16:19], s61 offen offset:256 sc1\ns_mov_b32 exec_hi, -1")
                if s + LA < 14: hloads(s + LA, s + LA + 1)
                if s + LA == 13:
                    a(f"buffer_load_dword {v(pv)}, {v(pa)}, s[16:19], s62 offen sc1")
                    a("s_mov_b64 exec, 1\n" + flag(128, ' sc1') + "\ns_mov_b64 exec, -1")
        if s == 0: st()
        if s == B2:
            assert s + LA >= 13
            a.wait(lg=0)
            a("s_barrier")
    def v2dma():
        a("s_lshl_b32 m0, s3, 11")
        a.raw("    s_nop 0")
        a.raw(f"    buffer_load_dwordx4 {v(v2a)}, s[16:19], s32 offen sc1 lds")
        a.raw(f"    buffer_load_dwordx4 {v(v2a)}, s[16:19], s47 offen offset:1024 sc1 lds")
    a(f"v_cmp_ne_u32 vcc, 1, {v(pv)}")
    a(f"s_and_b32 s98, vcc_lo, 15")
    a(f"s_cbranch_scc1 V2LATE")
    v2dma()
    if 'nv2' not in OPT:
        a("s_branch V2L2")
        a.raw("V2LATE:")
        a.raw(f"    buffer_load_dword {v(pv)}, {v(pa)}, s[16:19], s62 offen sc1")
        a.raw("V2L2:")
    else: a.raw("V2LATE:")
    st()
    for k in range(1, 4):
        C, N = k >> 1, k & 1
        for cl in range(2):
            a(f"ds_write_b128 {v(ra[k-1])}, {v(ab[N][2*C+cl],4)} offset:{(k-1)*2048 + cl*1024}")
    pr = big; e = big + 24; xs = big + 32
    for i in range(4):
        a(f"v_lshlrev_b32 {v(xs+2*i)}, 16, {v(xv+i)}")
        a(f"v_and_b32 {v(xs+2*i+1)}, 0xffff0000, {v(xv+i)}")
    a(f"v_mov_b32 {v(t1)}, {lit(2048*448/2)}")
    a(f"v_mov_b32 {v(t2)}, {lit(-math.log2(math.e))}")
    a.wait(lg=0)
    a("s_barrier")
    for k in range(3):
        for cl in range(2):
            a(f"ds_read_b128 {v(pr+8*k+4*cl,4)}, {v(t0)} offset:{k*2048 + cl*1024}")
    y = ab[0][0]
    def chk2(n):
        a("s_cmp_eq_u32 s98, 0")
        a(f"s_cbranch_scc1 V2M{n}")
        a.raw("    s_waitcnt vmcnt(0)")
        a(f"v_cmp_ne_u32 vcc, 1, {v(pv)}")
        a(f"s_and_b32 s98, vcc_lo, 15")
        a(f"s_cbranch_scc1 V2N{n}")
        v2dma()
        a(f"s_branch V2M{n}")
        a.raw(f"V2N{n}:")
        a.raw(f"    buffer_load_dword {v(pv)}, {v(pa)}, s[16:19], s62 offen sc1")
        a.raw(f"V2M{n}:")
    if 'nv2' not in OPT: chk2(0)
    for i in range(0, 8, 2): a(pk('add', y+i, y+i, pr+i))
    for i in range(0, 8, 2): a(pk('add', pr+8+i, pr+8+i, pr+16+i))
    for i in range(0, 8, 2): a(pk('add', y+i, y+i, pr+8+i))
    for i in range(0, 8, 2): a(pk('mul', e+i, y+i, ('b', t2)))
    for i in range(8): a(f"v_exp_f32 {v(e+i)}, {v(e+i)}")
    for i in range(0, 8, 2): a(pk('fma', e+i, e+i, ('b', t1), ('b', t1)))
    for i in range(8): a(f"v_rcp_f32 {v(e+i)}, {v(e+i)}")
    for i in range(0, 8, 2): a(pk('mul', y+i, y+i, e+i))
    st()
    a("s_cmp_eq_u32 s98, 0")
    a("s_cbranch_scc1 V2OK")
    if 'nv2' not in OPT:
        a.raw("    s_waitcnt vmcnt(0)")
        spin(a, pv, pa, 's[16:19]', 's62', '0xf', first=False)
        a.vmq = []
    else: spin(a, pv, pa, 's[16:19]', 's62', '0xf')
    v2dma()
    a.raw("V2OK:")
    st()
    a.raw("    s_waitcnt vmcnt(0)")
    a("s_barrier")
    st()
    vf = big + 56; so = big + 88
    n = 0
    for cl in range(2):
        for par in range(2):
            for kk in range(2):
                for hh in range(2):
                    o = (16 * kk + 2 * hh) * 2 + par
                    a(f"ds_read2st64_b32 {v(vf+4*n+2*hh,2)}, {v(va[cl])} offset0:{o} offset1:{o+2}")
                n += 1
    n = 0
    for cl in range(2):
        for par in range(2):
            for kk in range(2):
                b = (T2 if par == 0 else T2o + 8 * cl) + 4 * kk
                a(m16(so + 4 * cl, vf + 4 * n, b, '0' if (par == 0 and kk == 0) else None)); n += 1
    OST = ' nt' if 'ont' in OPT else ''
    for cl in range(2):
        for i in (0, 2): a(pk('fma', xs+4*cl+i, so+4*cl+i, y+4*cl+i, xs+4*cl+i))
        for i in range(2): a(f"v_cvt_pk_bf16_f32 {v(xv+2*cl+i)}, {v(xs+4*cl+2*i)}, {v(xs+4*cl+2*i+1)}")
        a(f"buffer_store_dwordx2 {v(xv+2*cl,2)}, {v(vo)}, s[24:27], s63 offen offset:{cl*32}{OST}")
    a.raw(";@END F")
    st.dump(t0)
    a("s_endpgm")
    return R.maxv

def spec(a, st):
    XS = 928; VS = 1032
    WB = 66560; TB = WB + 65536; SB = TB + 16384
    a("""s_load_dwordx2 s[20:21], s[0:1], 8
         s_load_dwordx2 s[24:25], s[0:1], 16
         s_mov_b32 s22, 921600
         s_mov_b32 s23, 0x00020000
         s_mov_b32 s26, 921600
         s_mov_b32 s27, 0x00020000""")
    R = RegAlloc(start=3, limit=256)
    t0 = R.get(); t1 = R.get(); t2 = R.get(); t3 = R.get(); t4 = R.get()
    mi = R.get(8, 2)
    IT = R.get(56, 2); FT = R.get(56, 2); AC = R.get(64, 2); AF = R.get(32, 2); TF = R.get(32, 2)
    a.vmq = [dict(w={('v', 255)}, tag=None)] + [dict(w=set(), tag='x') for _ in range(8)]
    st()
    a(f"""s_and_b32 s33, s3, 3
          s_lshr_b32 s34, s3, 2
          s_lshr_b32 s44, s33, 1
          s_and_b32 s45, s3, 1
          s_lshl_b32 s37, s2, 13
          s_add_u32 s37, s37, {OFF_FL}
          s_lshl_b32 s49, s2, 10
          s_add_u32 s49, s49, {OFF_F2}
          v_lshlrev_b32 {v(t0)}, 10, v1""")
    for i in range(4): a(f"v_mov_b32 {v(AF+i)}, 0")
    wave0(a, [f"buffer_store_dwordx4 {v(AF,4)}, v2, s[16:19], s49 offen sc1", "s_mov_b64 exec, 0xff",
              f"buffer_store_dwordx2 {v(AF,2)}, {v(t0)}, s[16:19], s37 offen offset:896 sc1", "s_mov_b64 exec, -1"])
    a(f"""v_and_b32 {v(t0)}, 15, v1
          s_lshl_b32 s49, s33, 4
          v_add_u32 {v(t0)}, s49, {v(t0)}
          v_cmp_eq_u32 vcc, 1, {v(t0)}
          v_cndmask_b32 {v(t0)}, {v(t0)}, 64, vcc
          v_and_b32 {v(t1)}, 1, {v(t0)}
          v_cvt_f32_u32 {v(t1)}, {v(t1)}
          v_mul_f32 {v(t1)}, {lit(-0.25)}, {v(t1)}
          v_lshrrev_b32 {v(t0)}, 1, {v(t0)}
          v_cvt_f32_u32 {v(t0)}, {v(t0)}
          v_mul_f32 {v(t0)}, {lit(1/64)}, {v(t0)}
          v_lshrrev_b32 {v(t4)}, 4, v1
          v_lshlrev_b32 {v(t2)}, 2, {v(t4)}
          v_cvt_f32_u32 {v(t2)}, {v(t2)}
          v_fma_f32 {v(TF)}, {v(t2)}, {v(t0)}, {v(t1)}""")
    for k in range(1, 16): a(f"v_fmamk_f32 {v(TF+k)}, {v(t0)}, {lit(float(16*(k>>2)+(k&3)))}, {v(TF)}")
    for k in range(16): a(f"v_cos_f32 {v(TF+k)}, {v(TF+k)}")
    a(f"""v_lshrrev_b32 {v(t0)}, 2, v1
          v_mul_u32_u24 {v(t0)}, {XS}, {v(t0)}
          v_and_b32 {v(t1)}, 3, v1
          v_lshlrev_b32 {v(t1)}, 3, {v(t1)}
          v_add_u32 {v(t2)}, {v(t0)}, {v(t1)}
          v_sub_u32 {v(t3)}, {v(t0)}, {v(t1)}
          s_lshl_b32 s42, s34, 7
          s_lshl_b32 s49, s34, 3
          s_sub_u32 s43, 32, s49""")
    for t in range(4):
        if t: a("s_add_u32 s42, s42, s43")
        a(f"v_add_u32 {v(mi+t)}, s42, {v(t2)}")
        a(f"s_sub_u32 s49, 440, s42")
        a(f"v_add_u32 {v(mi+4+t)}, s49, {v(t3)}")
    a(f"""v_lshrrev_b32 {v(t0)}, 3, v1
          v_mul_u32_u24 {v(t1)}, {XS}, {v(t0)}
          v_and_b32 {v(t2)}, 7, v1
          v_lshl_add_u32 {v(t1)}, {v(t2)}, 4, {v(t1)}
          v_add_u32 {v(t1)}, s36, {v(t1)}""")
    s1 = [AF, AF + 1]; s2 = [AF + 2, AF + 3]
    a(f"""s_lshl_b32 s49, s3, 5
          s_add_u32 s49, s49, {SB}
          v_lshl_add_u32 {v(t2)}, {v(t0)}, 2, s49
          s_lshl_b32 s49, s34, 6
          s_lshl_b32 s46, s45, 5
          s_add_u32 s49, s49, s46
          s_lshl_b32 s46, s44, 3
          s_add_u32 s49, s49, s46
          s_add_u32 s49, s49, {SB + 256}
          v_lshrrev_b32 {v(t3)}, 5, v1
          v_lshl_add_u32 {v(t3)}, {v(t3)}, 4, s49
          v_and_b32 {v(AF+4)}, 3, {v(t0)}
          v_lshl_add_u32 {v(t3)}, {v(AF+4)}, 1, {v(t3)}
          s_lshl_b32 s46, s45, 7
          s_lshr_b32 s49, s3, 1
          s_lshl_b32 s49, s49, 2
          s_add_u32 s46, s46, s49
          s_add_u32 s46, s46, {SB + 512}
          v_lshl_add_u32 {v(AF+4)}, {v(t0)}, 4, s46
          v_lshlrev_b32 {v(t0)}, 2, v1
          v_add_u32 {v(AF+20)}, {SB + 512}, {v(t0)}
          s_lshl_b32 s46, s2, 8
          s_add_u32 s46, s46, {OFF_ST}
          v_lshlrev_b32 {v(t4)}, 4, {v(t4)}
          v_add_u32 {v(t4)}, {SB}, {v(t4)}""")
    tv = AC + 32; u0, u1, u2, u3 = AC + 48, AC + 49, AC + 50, AC + 51
    a(f"""v_and_b32 {v(u0)}, 31, v1
          v_lshrrev_b32 {v(u1)}, 5, v1
          v_lshlrev_b32 {v(u1)}, 2, {v(u1)}
          s_lshl_b32 s49, s44, 4
          v_add_u32 {v(u1)}, s49, {v(u1)}
          s_cmp_eq_u32 s34, 0
          s_cselect_b64 vcc, -1, 0
          v_cndmask_b32 {v(u2)}, {v(u1)}, {v(u0)}, vcc
          v_cndmask_b32 {v(u3)}, {v(u0)}, {v(u1)}, vcc""")
    a(f"""v_cmp_le_u32 s[62:63], 16, {v(u2)}
          v_cmp_eq_u32 s[50:51], 0, {v(u2)}
          s_cmp_eq_u32 s2, 0
          s_cselect_b64 s[52:53], -1, 0
          s_and_b64 s[54:55], s[62:63], s[52:53]
          s_and_b64 s[50:51], s[50:51], s[52:53]
          s_cmp_eq_u32 s45, 1
          s_cselect_b64 s[50:51], s[50:51], 0
          s_and_b64 s[56:57], s[50:51], vcc
          v_lshlrev_b32 {v(u2)}, 6, {v(u2)}
          v_add_u32 {v(u2)}, s2, {v(u2)}
          v_subrev_u32 {v(u0)}, 992, {v(u2)}
          v_cndmask_b32 {v(u2)}, {v(u2)}, {v(u0)}, s[54:55]
          v_mov_b32 {v(u0)}, 1024
          v_cndmask_b32 {v(u2)}, {v(u2)}, {v(u0)}, s[56:57]
          v_cvt_f32_u32 {v(u2)}, {v(u2)}
          v_cvt_f32_u32 {v(u3)}, {v(u3)}
          v_mul_f32 {v(u2)}, {lit(1/2048)}, {v(u2)}
          v_mul_f32 {v(u0)}, {lit(1/32)}, {v(u3)}
          v_cndmask_b32 {v(u0)}, {v(u0)}, {v(u2)}, vcc
          s_cmp_eq_u32 s45, 1
          s_cselect_b32 s49, {lit(-0.25)}, 0
          v_mov_b32 {v(u1)}, s49
          v_cndmask_b32 {v(u1)}, {v(u1)}, 0, s[56:57]
          v_fma_f32 {v(tv)}, {v(u2)}, {v(u3)}, {v(u1)}""")
    for i in range(1, 8): a(f"v_fmamk_f32 {v(tv+i)}, {v(u0)}, {lit(float(8*(i>>2)+(i&3)))}, {v(tv)}")
    a(f"v_mul_f32 {v(u3)}, 0.5, {v(u3)}")
    a(f"v_cndmask_b32 {v(tv)}, {v(tv)}, {v(u3)}, s[50:51]")
    for i in range(8): a(f"v_cos_f32 {v(tv+i)}, {v(tv+i)}")
    for i in range(4): a(f"v_cvt_pk_bf16_f32 {v(tv+8+i)}, {v(tv+2*i)}, {v(tv+2*i+1)}")
    a(f"""s_andn2_b64 s[58:59], s[52:53], s[62:63]
          s_cmp_lg_u32 s2, 0
          s_cselect_b32 s49, s45, 0
          s_mul_i32 s49, s49, 0x80008000""")
    for i in range(4): a(f"v_xor_b32 {v(tv+12+i)}, s49, {v(tv+8+i)}")
    for i in range(4): a(f"v_cndmask_b32 {v(tv+12+i)}, {v(tv+12+i)}, 0, s[58:59]")
    for i in range(4): a(f"v_cndmask_b32 {v(tv+8+i)}, {v(tv+8+i)}, 0, s[54:55]")
    a(f"""s_lshl_b32 s60, s34, 3
          s_add_u32 s60, s60, s44
          s_lshl_b32 s60, s60, 10
          s_add_u32 s60, s60, {TB}
          s_mul_i32 s49, s45, 6144
          s_add_u32 s49, s49, s60
          v_add_u32 {v(u0)}, s49, v2
          s_cmp_eq_u32 s2, 0
          s_cselect_b32 s49, 0, 1
          s_xor_b32 s49, s49, s45
          s_lshl_b32 s49, s49, 11
          s_add_u32 s49, s49, s60
          v_add_u32 {v(u1)}, s49, v2""")
    a(f"ds_write_b128 {v(u0)}, {v(tv+8,4)}")
    a(f"ds_write_b128 {v(u1)}, {v(tv+12,4)} offset:2048")
    w0, w1, w2, w3 = FT + 52, FT + 53, FT + 54, FT + 55
    a(f"""s_lshl_b32 s38, s3, 8
          s_add_u32 s38, s38, s2
          s_mul_i32 s49, s34, 992
          s_cmp_eq_u32 s2, 0
          s_cselect_b32 s49, s49, 0
          s_sub_u32 s38, s38, s49
          s_sub_u32 s39, 2048, s38
          s_cmp_eq_u32 s38, 0
          s_cselect_b32 s40, 1024, s39
          v_and_b32 {v(w0)}, 31, v1
          v_lshlrev_b32 {v(w0)}, 4, {v(w0)}
          v_cmp_gt_u32 vcc, 32, v1
          v_mov_b32 {v(w1)}, s38
          v_mov_b32 {v(w2)}, s39
          v_mov_b32 {v(w3)}, s40
          v_cndmask_b32 {v(w2)}, {v(w2)}, {v(w1)}, vcc
          v_cndmask_b32 {v(w3)}, {v(w3)}, {v(w1)}, vcc
          v_mul_u32_u24 {v(w2)}, 450, {v(w2)}
          v_mul_u32_u24 {v(w3)}, 450, {v(w3)}
          v_and_b32 {v(w2)}, 0xffffffc0, {v(w2)}
          v_and_b32 {v(w3)}, 0xffffffc0, {v(w3)}
          v_add_u32 {v(w2)}, {v(w2)}, {v(w0)}
          v_add_u32 {v(w3)}, {v(w3)}, {v(w0)}
          v_mov_b32 {v(w0)}, {(-28800) & 0xffffffff:#x}
          v_mov_b32 {v(w1)}, 28800
          v_cndmask_b32 {v(w0)}, {v(w0)}, {v(w1)}, vcc
          s_lshl_b32 s41, s3, 13""")
    wdm = []
    for i in range(4):
        for mat in range(2):
            wdm.append((f"v_add_u32 {v(w2)}, {v(w2)}, {v(w0)}\n" if i and not mat else "") +
                       f"s_add_u32 m0, s41, {WB + i*2048 + mat*1024}\n" +
                       f"buffer_load_dwordx4 {v(w2 if i else w3)}, s[{20+4*mat}:{23+4*mat}], 0 offen lds")
    NW0 = int(OPT[OPT.index('nw0') + 1]) if 'nw0' in OPT else 4
    a.wait_smem()
    if NW0:
        a("s_barrier")
        for x in wdm[:NW0]: a(x)
    wdm = wdm[NW0:]
    st()
    if PRIO: a("s_setprio 3")
    a.wait_tag('x')
    st()
    for i in range(7): a(f"ds_read_b128 {v(AC+4*i,4)}, {v(t1)} offset:{i*128}")
    for i in range(28):
        a(f"v_dot2c_f32_bf16 {v(s1[i&1])}, 0x3f803f80, {v(AC+i)}")
        a(f"v_dot2c_f32_bf16 {v(s2[i&1])}, {v(AC+i)}, {v(AC+i)}")
    mean = s1[0]; var = s2[0]
    a(f"v_add_f32 {v(mean)}, {v(s1[0])}, {v(s1[1])}")
    a(f"v_add_f32 {v(var)}, {v(s2[0])}, {v(s2[1])}")
    for m in ("quad_perm:[1,0,3,2]", "quad_perm:[2,3,0,1]", "row_half_mirror"):
        for r in (mean, var): a(f"v_add_f32_dpp {v(r)}, {v(r)}, {v(r)} {m} row_mask:0xf bank_mask:0xf")
    nm = s1[1]; rs = s2[1]
    a(f"""v_mul_f32 {v(mean)}, {lit(1/448)}, {v(mean)}
          v_mul_f32 {v(var)}, {lit(1/448)}, {v(var)}
          v_fma_f32 {v(var)}, -{v(mean)}, {v(mean)}, {v(var)}
          v_max_f32 {v(var)}, 0, {v(var)}
          v_cvt_pk_bf16_f32 {v(var)}, {v(var)}, {v(var)}
          v_lshlrev_b32 {v(var)}, 16, {v(var)}
          v_add_f32 {v(var)}, {lit(1e-5)}, {v(var)}
          v_cvt_pk_bf16_f32 {v(var)}, {v(var)}, {v(var)}
          v_lshlrev_b32 {v(var)}, 16, {v(var)}
          v_sqrt_f32 {v(var)}, {v(var)}
          v_cvt_pk_bf16_f32 {v(nm)}, {v(var)}, -{v(mean)}
          v_lshlrev_b32 {v(var)}, 16, {v(nm)}
          v_rcp_f32 {v(rs)}, {v(var)}""")
    a("s_mov_b32 exec_lo, 0x01010101\ns_mov_b32 exec_hi, 0x01010101")
    a(f"ds_write_b16_d16_hi {v(t3)}, {v(nm)}")
    a(f"ds_write_b32 {v(t2)}, {v(rs)}")
    a(f"ds_write_b32 {v(AF+4)}, {v(nm)}")
    a("s_mov_b64 exec, -1")
    a.wait(lg=0)
    a("s_barrier")
    st()
    rsv = TF + 16; nmf = AF; Tp = AF + 8; cin = AF + 16
    a(f"ds_read_b32 {v(t2)}, {v(AF+20)}")
    for k in range(4): a(f"ds_read_b128 {v(rsv+4*k,4)}, {v(t4)} offset:{64*k}")
    for ks in range(2): a(f"ds_read_b128 {v(nmf+4*ks,4)}, {v(t4)} offset:{256 + 64*ks}")
    seq = [(t, arr, ks) for t in range(4) for arr in range(4) for ks in range(2)]
    def xr(n):
        t, arr, ks = seq[n]
        return [f"ds_read_b64_tr_b16 {v(IT+4*(n%14)+2*u,2)}, {v(mi+4*(arr>>1)+t)} offset:{(32*ks+16*u)*XS + 448*(arr&1)}" for u in range(2)]
    for n in range(4):
        for x in xr(n): a(x)
    for k in range(0, 16, 2): a(pk('mul', TF+k, TF+k, rsv+k))
    wave0(a, [f"buffer_store_dword {v(t2)}, {v(t0)}, s[16:19], s46 offen sc1"])
    nv0 = a.nvm
    for n in range(4, 10):
        for x in xr(n): a(x)
    for k in range(8): a(f"v_cvt_pk_bf16_f32 {v(Tp+k)}, {v(TF+2*k)}, {v(TF+2*k+1)}")
    a(m16(cin, Tp, nmf, '0')); a(m16(cin, Tp + 4, nmf + 4))
    for n in range(10, 14):
        for x in xr(n): a(x)
    A = lambda t, arr: AC + 16 * t + 4 * arr
    def fold(t):
        out = []
        d1 = TF + 8 * (t & 1); d2 = d1 + 4
        for r in (0, 2):
            out += [pk('add', d1+r, A(t,0)+r, A(t,1)+r, neg=[1]), pk('add', A(t,0)+r, A(t,0)+r, A(t,1)+r)]
        for r in (0, 2):
            out += [pk('add', d2+r, A(t,2)+r, A(t,3)+r, neg=[1]), pk('add', A(t,2)+r, A(t,2)+r, A(t,3)+r)]
        q = "quad_perm:[3,2,1,0] row_mask:0xf bank_mask:0xf"
        for r in range(4):
            out += [f"v_subrev_f32_dpp {v(A(t,1)+r)}, {v(A(t,2)+r)}, {v(A(t,0)+r)} {q}",
                    f"v_add_f32_dpp {v(A(t,0)+r)}, {v(A(t,2)+r)}, {v(A(t,0)+r)} {q}"]
        for r in range(4):
            out += [f"v_subrev_f32_dpp {v(A(t,2)+r)}, {v(d2+r)}, {v(d1+r)} {q}",
                    f"v_add_f32_dpp {v(A(t,3)+r)}, {v(d2+r)}, {v(d1+r)} {q}"]
        return out
    for t in range(4):
        mains = []; fills = []
        for n in range(8 * t, 8 * t + 8):
            _, arr, ks = seq[n]
            mains.append(m16(A(t, arr), Tp + 4 * ks, IT + 4 * (n % 14), v(cin, 4) if ks == 0 else None))
        fl = fold(t - 1) if t else []
        for i, m in enumerate(mains):
            a(m)
            n = 8 * t + i + 14
            if n < 32:
                for x in xr(n): a(x)
            if t < 2 and i & 1 and wdm: a(wdm.pop(0))
            if i >= 2:
                for x in fl[(i - 2) * 4:(i - 1) * 4]: a(x)
    a(f"v_mov_b32 {v(t0)}, 1")
    a(f"s_lshl_b32 s49, s2, 3")
    wave0(a, [f"s_waitcnt vmcnt({a.nvm - nv0})", "s_mov_b64 exec, 1", f"buffer_store_dword {v(t0)}, off, s[28:31], s49 sc1", "s_mov_b64 exec, -1"])
    a(f"""v_lshrrev_b32 {v(t1)}, 4, v1
          v_lshlrev_b32 {v(t1)}, 17, {v(t1)}
          v_and_b32 {v(t2)}, 15, v1
          v_lshl_add_u32 {v(t1)}, {v(t2)}, 4, {v(t1)}
          s_lshl_b32 s46, s33, 19
          s_lshl_b32 s49, s2, 11
          s_add_u32 s46, s46, s49
          s_lshl_b32 s49, s34, 10
          s_add_u32 s46, s46, s49
          s_add_u32 s46, s46, {OFF_V1}
          s_add_u32 s47, s46, 65536""")
    for x in fold(3): a(x)
    st()
    for r in range(4):
        for par in range(2):
            o = AF + 4 * (2 * r + par)
            for cs_ in range(2):
                for th in range(2):
                    a(f"v_cvt_pk_bf16_f32 {v(o+2*cs_+th)}, {v(A(2*th,2*par+cs_)+r)}, {v(A(2*th+1,2*par+cs_)+r)}")
            a(f"buffer_store_dwordx4 {v(o,4)}, {v(t1)}, s[16:19], s{46+(r>>1)} offen offset:{(r&1)*512 + par*256} sc1", tag='v1s')
    st()
    fa = mi + 1; wr = mi + 2; ga = mi + 3; gr = mi + 4; vo = mi + 5; tb = mi + 6; pv = mi + 7
    a(f"v_and_b32 {v(t4)}, 31, v1")
    a(f"v_lshlrev_b32 {v(t4)}, 3, {v(t4)}")
    a(f"buffer_load_dword {v(pv)}, {v(t4)}, s[28:31], 0 offen sc1", tag='dp')
    if PRIO: a("s_setprio 0")
    K = mi
    a(f"""v_and_b32 {v(t2)}, 31, v1
          s_lshl_b32 s49, s33, 6
          s_add_u32 s49, s49, 2
          s_sub_u32 s49, s49, s34
          v_lshl_add_u32 {v(t2)}, {v(t2)}, 1, s49
          v_cvt_f32_u32 {v(t2)}, {v(t2)}
          v_mul_f32 {v(t2)}, {lit(1/448)}, {v(t2)}
          v_lshrrev_b32 {v(t1)}, 5, v1
          v_cvt_f32_u32 {v(t3)}, {v(t1)}
          v_mul_f32 {v(K)}, 4.0, {v(t2)}
          v_fma_f32 {v(t3)}, {v(t3)}, 2.0, 0.5
          v_cos_f32 {v(K)}, {v(K)}
          v_mul_f32 {v(t3)}, {v(t3)}, {v(t2)}
          v_add_f32 {v(K)}, {v(K)}, {v(K)}""")
    def f1chain(P0, n, d, ks0):
        out = []
        sl = lambda P: AC + 4 * (P % 8)
        for P in range(P0, P0 + n):
            if P < P0 + 2:
                for u in range(2):
                    k = 4 * P + u
                    out.append(f"v_fmamk_f32 {v(sl(P)+2+u)}, {v(t2)}, {lit(float(k))}, {v(t3)}" if k else f"v_mov_b32 {v(sl(P)+2+u)}, {v(t3)}")
                for u in range(2): out.append(f"v_cos_f32 {v(sl(P)+u)}, {v(sl(P)+2+u)}")
                for u in range(2): out.append(f"v_sin_f32 {v(sl(P)+2+u)}, {v(sl(P)+2+u)}")
            else:
                for c in (0, 2): out.append(pk('fma', sl(P)+c, sl(P-1)+c, ('b', K), sl(P-2)+c, neg=[2]))
            Pc = P - 1
            for Pc in ([P - 1, P] if P == P0 + n - 1 else [P - 1]):
                t, q = divmod(Pc - P0, d)
                if Pc >= P0 and t & 1:
                    for c in range(2):
                        for u in range(2):
                            out.append(f"v_cvt_pk_bf16_f32 {v(FT+8*(ks0+q)+4*c+2*u+(t>>1))}, {v(sl(Pc-d)+2*c+u)}, {v(sl(Pc)+2*c+u)}")
        return out
    for x in f1chain(0, 16, 4, 0): a(x)
    a(f"""s_lshl_b32 s49, s3, 10
          s_add_u32 s49, s49, s37
          v_and_b32 {v(tb)}, 3, v1
          v_lshlrev_b32 {v(tb)}, 13, {v(tb)}
          v_and_b32 {v(vo)}, 4, v1
          v_lshl_add_u32 {v(tb)}, {v(vo)}, 10, {v(tb)}
          s_lshl_b32 s50, s3, 15
          s_lshr_b32 s51, s2, 3
          s_lshl_b32 s51, s51, 10
          s_add_u32 s50, s50, s51
          s_add_u32 s50, s50, {OFF_FL + 896}""")
    if PRIO: a("s_setprio 3")
    st()
    a.wait_tag('v1s')
    a(f"s_mov_b64 exec, 1\nbuffer_store_dword {v(t0)}, off, s[16:19], s49 offset:896 sc1\ns_mov_b64 exec, -1")
    st()
    spin(a, pv, t4, 's[28:31]', '0', '-1', first=False)
    I1P = int(opt('i1p', 11)); I1L = int(opt('i1l', 5)); BP = opt('bp', 'flag')
    if BP == 'flag': a("s_barrier")
    if PRIO: a("s_setprio 0")
    for x in f1chain(16, 12, 3, 4): a(x)
    a(f"""s_lshl_b32 s51, s2, 16
          s_lshl_b32 s49, s3, 13
          s_add_u32 s51, s51, s49
          s_add_u32 s51, s51, {OFF_V1}
          s_mul_i32 s52, s3, {4*VS}""")
    I1Y = int(opt('i1y', 3))
    def v1get(role):
        assert BP == 'flag' and I1Y <= I1L
        if not role: st()
        sv = list(a.vmq)
        a.raw(f"    s_cmp_lg_u32 s34, {role}")
        a.raw(f"    s_cbranch_scc1 V1G{role}")
        if PRIO: a("s_setprio 3")
        spin(a, pv, tb, 's[16:19]', 's50', '0xff', first=bool(role))
        for hh in range(2):
            for i in range(4):
                a(f"s_add_u32 m0, s52, {(hh*32+i)*VS}")
                a(f"s_add_u32 s49, s51, {i*2048 + hh*1024}")
                a(f"buffer_load_dwordx4 v2, s[16:19], s49 offen sc1 lds", tag=('v', hh))
        if PRIO: a("s_setprio 0")
        a.raw(f"V1G{role}:")
        if role: a.vmq = sv
        else: st()
    a(f"""v_and_b32 {v(t2)}, 31, v1
          s_lshl_b32 s49, s33, 5
          v_add_u32 {v(t2)}, s49, {v(t2)}
          v_cvt_f32_u32 {v(t3)}, {v(t2)}
          v_add_f32 {v(t3)}, 0.5, {v(t3)}
          v_mul_f32 {v(t3)}, {lit(1/448)}, {v(t3)}
          s_sub_u32 s49, 2, s34
          v_lshl_add_u32 {v(t4)}, {v(t1)}, 3, s49
          v_mul_f32 {v(K)}, {lit(16.0)}, {v(t3)}
          v_cmp_eq_u32 vcc, 10, {v(t4)}
          v_cvt_f32_u32 {v(t4)}, {v(t4)}
          v_cos_f32 {v(K)}, {v(K)}
          v_mul_f32 {v(t4)}, {v(t4)}, {v(t3)}
          v_cndmask_b32 {v(AF)}, 1.0, 0.5, vcc
          v_add_f32 {v(K)}, {v(K)}, {v(K)}""")
    sl = lambda Q: AC + 8 * (Q % 4)
    def i1cvt(Q):
        for c in range(2):
            for h in range(2):
                a(f"v_cvt_pk_bf16_f32 {v(IT+8*(Q>>1)+4*c+2*(Q&1)+h)}, {v(sl(Q)+4*c+2*h)}, {v(sl(Q)+4*c+2*h+1)}")
    for Q in range(14):
        if Q == I1Y: v1get(1)
        if Q == I1L: a(f"buffer_load_dword {v(pv)}, {v(tb)}, s[16:19], s50 offen sc1")
        if Q == I1P: v1get(0)
        if Q < 2:
            for r in range(4):
                k = 16 * Q + 2 * r
                a(f"v_fmamk_f32 {v(sl(Q)+4+r)}, {v(t3)}, {lit(float(k))}, {v(t4)}" if k else f"v_mov_b32 {v(sl(Q)+4+r)}, {v(t4)}")
            for r in range(4): a(f"v_cos_f32 {v(sl(Q)+r)}, {v(sl(Q)+4+r)}")
            for r in range(4): a(f"v_sin_f32 {v(sl(Q)+4+r)}, {v(sl(Q)+4+r)}")
        else:
            for c in range(0, 8, 2): a(pk('fma', sl(Q)+c, sl(Q-1)+c, ('b', K), sl(Q-2)+c, neg=[2]))
        if Q: i1cvt(Q - 1)
    a(f"v_mul_f32 {v(sl(13)+7)}, {v(sl(13)+7)}, {v(AF)}")
    a(f"""v_and_b32 {v(t3)}, 31, v1
          v_mul_u32_u24 {v(fa)}, {VS}, {v(t3)}
          v_lshl_add_u32 {v(fa)}, {v(t1)}, 5, {v(fa)}
          s_lshl_b32 s49, s34, 8
          v_add_u32 {v(fa)}, s49, {v(fa)}
          v_lshlrev_b32 {v(vo)}, 2, {v(t2)}
          s_lshl_b32 s49, s34, 1
          s_sub_u32 s49, {WB + 4}, s49
          v_lshl_add_u32 {v(wr)}, {v(t1)}, 13, s49
          v_add_u32 {v(wr)}, {v(wr)}, {v(vo)}
          s_lshl_b32 s49, s2, 1
          s_sub_u32 s54, 64, s49
          s_and_b32 s54, s54, 63
          v_add_u32 {v(K)}, s54, {v(wr)}
          v_add_u32 {v(wr)}, s49, {v(wr)}
          v_lshl_add_u32 {v(vo)}, {v(t1)}, 18, {v(vo)}
          s_lshl_b32 s49, s34, 15
          v_add_u32 {v(gr)}, s49, v2
          s_lshl_b32 s49, s33, 11
          v_add_u32 {v(ga)}, s49, {v(gr)}
          v_add_u32 {v(tb)}, {TB}, v2
          s_lshl_b32 s53, s2, 11
          s_lshl_b32 s49, s34, 10
          s_add_u32 s53, s53, s49
          s_add_u32 s53, s53, {OFF_V2}""")
    i1cvt(13)
    for k in range(8): a(f"ds_read_b128 {v(TF+4*k,4)}, {v(tb)} offset:{k*1024}")
    st()
    def f1r(ks):
        hh, q = (0, ks) if ks < 4 else (1, ks - 4)
        return [f"ds_read_b64 {v(AF+16*(ks&1)+4*(2*d+c)+2*u,2)}, {v(fa)} offset:{hh*32*VS + c*512 + (4*q+u)*16 + 8*d}"
                for d in range(2) for c in range(2) for u in range(2)]
    STG = 'nostg' not in OPT
    def rbar(role, pre=()):
        NLAB[0] += 1; Lb = f"RB{NLAB[0]}"
        a.raw(f"    s_cmp_lg_u32 s34, {role}")
        a.raw(f"    s_cbranch_scc1 {Lb}")
        for x in pre: a.raw("    " + x)
        a.raw("    s_barrier")
        a.raw(f"{Lb}:")
    a.raw(";@WARM S")
    a.wait_tag(('v', 0))
    a("s_barrier")
    st()
    if STG: rbar(1, ["s_waitcnt vmcnt(0)"])
    for x in f1r(0): a(x)
    for ks in range(7):
        mains = [m32(AC + 16 * i, AF + 16 * (ks & 1) + 4 * i, FT + 8 * ks + 4 * (i >> 1), '0' if ks == 0 else None) for i in range(4)]
        fills = f1r(ks + 1) if ks < 6 else []
        if ks == int(opt('sk', 3)):
            def sy():
                a.wait_tag(('v', 1))
                if STG: rbar(0)
                else: a("s_barrier")
            fills = [sy] + fills
        weave(a, mains, fills, span=3)
    def wrd(r):
        return [f"ds_read_u16_d16_hi {v(FT+8*((r%14)>>1)+2*(2*pm+mat)+(r&1))}, {v(K if pm else wr)} offset:{(8*(r>>2)+(r&3))*2048 + mat*1024 + pm*512}"
                for pm in range(2) for mat in range(2)]
    BF = lambda i: AF + 8 * ((i + 2) & 3)
    Tf = lambda T, s: TF + 8 * T + 4 * s
    cvt = lambda i: [f"v_cvt_pk_bf16_f32 {v(BF(i)+k)}, {v(AC+16*i+2*k)}, {v(AC+16*i+2*k+1)}" for k in range(8)]
    a.raw(";@BEG S")
    for x in cvt(0) + cvt(1): a(x)
    def f2(i0):
        o0, o1 = AC + 16 * i0, AC + 16 * i0 + 16
        C, S = BF(i0), BF(i0 + 1)
        return [m32(o0, Tf(0, 0), C, '0'), m32(o1, Tf(3, 0), C, '0'), m32(o0, Tf(0, 1), C + 4), m32(o1, Tf(3, 1), C + 4),
                m32(o0, Tf(1, 0), S), m32(o1, Tf(2, 0), S), m32(o0, Tf(1, 1), S + 4), m32(o1, Tf(2, 1), S + 4)]
    wl = [x for r in range(14) for x in wrd(r)]
    weave(a, f2(0), cvt(2) + cvt(3) + wl[:16])
    weave(a, f2(2), wl[16:])
    st()
    for k in range(8): a(f"ds_read_b128 {v(TF+4*k,4)}, {v(tb)} offset:{8192 + k*1024}")
    if not STG: a("s_barrier")
    al, de, gm, be = AC, AC + 16, AC + 32, AC + 48
    assert t1 % 2 == 0 and t2 == t1 + 1 and t3 == t1 + 2 and t4 == t1 + 3
    if STG and 'noyp' not in OPT: a("s_cmp_lg_u32 s34, 1\ns_cbranch_scc1 NOYP\ns_setprio 1"); a.raw("NOYP:")
    for r in range(0, 16, 2):
        if STG and r == int(opt('yb2', 2)): rbar(1)
        if STG and r == int(opt('yb3', 10)): rbar(1)
        Pr, Pi, Mr, Mi = [FT + 4 * (r % 14) + 2 * k for k in range(4)]
        a1, b1 = t1, t3
        A_, D_, G_, B_ = al + r, de + r, gm + r, be + r
        if r == 0:
            for k, x in enumerate((A_, D_, G_, B_)): a(f"v_mov_b32 {v(AF+k)}, {v(x)}")
        for q in range(2):
            a(f"""v_sub_f32 {v(a1+q)}, {v(A_+q)}, {v(B_+q)}
              v_add_f32 {v(b1+q)}, {v(G_+q)}, {v(D_+q)}
              v_add_f32 {v(A_+q)}, {v(A_+q)}, {v(B_+q)}
              v_sub_f32 {v(G_+q)}, {v(G_+q)}, {v(D_+q)}
              v_mul_f32 {v(B_+q)}, {v(a1+q)}, {v(Pr+q)}
              v_mul_f32 {v(D_+q)}, {v(a1+q)}, {v(Pi+q)}
              v_fmac_f32 {v(B_+q)}, {v(b1+q)}, {v(Pi+q)}
              v_fma_f32 {v(D_+q)}, -{v(b1+q)}, {v(Pr+q)}, {v(D_+q)}
              v_fma_f32 {v(a1+q)}, {v(A_+q)}, {v(Mr+q)}, {v(B_+q)}
              v_fma_f32 {v(b1+q)}, {v(A_+q)}, {v(Mi+q)}, {v(D_+q)}
              v_fma_f32 {v(A_+q)}, {v(G_+q)}, {v(Mi+q)}, {v(a1+q)}
              v_fma_f32 {v(G_+q)}, -{v(G_+q)}, {v(Mr+q)}, {v(b1+q)}
              v_fma_f32 {v(B_+q)}, {v(B_+q)}, 2.0, -{v(A_+q)}
              v_fma_f32 {v(D_+q)}, {v(D_+q)}, -2.0, {v(G_+q)}""")
        if r == 0:
            a("s_cmp_lg_u32 s2, 0")
            a("s_cbranch_scc1 NOFIX")
            a("s_mov_b32 exec_hi, 0")
            a(f"""v_mul_f32 {v(A_)}, {v(AF)}, {v(Pr)}
                  v_mul_f32 {v(G_)}, {v(AF)}, {v(Pi)}
                  v_mul_f32 {v(D_)}, {v(AF+1)}, {v(Mr)}
                  v_mul_f32 {v(B_)}, {v(AF+1)}, {v(Mi)}
                  v_fmac_f32 {v(A_)}, {v(AF+2)}, {v(Pi)}
                  v_fma_f32 {v(G_)}, -{v(AF+2)}, {v(Pr)}, {v(G_)}
                  v_fmac_f32 {v(D_)}, {v(AF+3)}, {v(Mi)}
                  v_fma_f32 {v(B_)}, -{v(AF+3)}, {v(Mr)}, {v(B_)}""")
            a("s_mov_b32 exec_hi, -1")
            a.raw("NOFIX:")
        if r == 0:
            for x in wrd(14) + wrd(15): a(x)
        for i in (0, 2, 3, 1): a(f"v_cvt_pk_bf16_f32 {v(AF+8*i+(r>>1))}, {v(AC+16*i+r)}, {v(AC+16*i+r+1)}")
    st()
    def i2(i0):
        o0, o1 = AC + 16 * i0, AC + 16 * i0 + 16
        S, D = AF + 8 * i0, AF + 8 * i0 + 8
        return [m32(o0, S, Tf(0, 0), '0'), m32(o0, S + 4, Tf(0, 1)), m32(o0, D, Tf(3, 0)), m32(o0, D + 4, Tf(3, 1)),
                m32(o1, S, Tf(1, 0), '0'), m32(o1, S + 4, Tf(1, 1)), m32(o1, D, Tf(2, 0)), m32(o1, D + 4, Tf(2, 1))]
    def gout(i):
        out = []
        for s_ in range(2):
            o = FT + 8 * i + 4 * s_
            out += [f"v_cvt_pk_bf16_f32 {v(o+k)}, {v(AC+16*i+8*s_+2*k)}, {v(AC+16*i+8*s_+2*k+1)}" for k in range(4)]
            out.append(f"ds_write_b128 {v(ga)}, {v(o,4)} offset:{i*8192 + s_*1024}")
        return out
    mm = i2(0) + i2(2)
    for x in mm[:6]: a(x)
    if STG: rbar(0)
    weave(a, mm[6:], gout(0) + gout(1) + gout(2)[:5])
    for x in gout(2)[5:] + gout(3): a(x)
    a.wait(lg=0)
    a("s_barrier")
    st()
    ring = [AF, AF + 16, TF]
    def i1r(ks):
        return [f"ds_read_b128 {v(ring[ks%3]+4*i,4)}, {v(gr)} offset:{i*8192 + ks*1024}" for i in range(4)]
    for x in i1r(0) + i1r(1): a(x)
    for ks in range(7):
        mains = [m32(AC + 16 * i, ring[ks % 3] + 4 * i, IT + 8 * ks + 4 * (i >> 1), '0' if ks == 0 else None) for i in range(4)]
        weave(a, mains, i1r(ks + 2) if ks < 5 else [])
        if STG and ks - 7 == int(opt('rx', 2)): rbar(0)
    st()
    for r in range(0, 16, 2):
        if STG and r == int(opt('rx', 2)): rbar(0)
        for q in (r, r + 1):
            a(f"""v_sub_f32 {v(t1+q-r)}, {v(AC+q)}, {v(AC+32+q)}
              v_sub_f32 {v(t3+q-r)}, {v(AC+16+q)}, {v(AC+48+q)}
              v_add_f32 {v(AC+q)}, {v(AC+q)}, {v(AC+32+q)}
              v_add_f32 {v(AC+16+q)}, {v(AC+16+q)}, {v(AC+48+q)}
              v_cvt_pk_bf16_f32 {v(AC+32+q)}, {v(t1+q-r)}, {v(t3+q-r)}
              v_cvt_pk_bf16_f32 {v(AC+48+q)}, {v(AC+q)}, {v(AC+16+q)}
              s_add_u32 s49, s53, {(8*(q>>2)+(q&3))*65536}
              buffer_store_dword {v(AC+32+q)}, {v(vo)}, s[16:19], s49 offen sc1
              buffer_store_dword {v(AC+48+q)}, {v(vo)}, s[16:19], s49 offen offset:512 sc1""")
    st()
    a(f"v_lshlrev_b32 {v(t1)}, 10, v1")
    a.wait(vm=0)
    a("s_barrier")
    wave0(a, ["s_mov_b64 exec, 0xff", f"buffer_store_dword {v(t0)}, {v(t1)}, s[16:19], s37 offen offset:900 sc1", "s_mov_b64 exec, -1"])
    a.raw(";@END S")
    st.dump(t1)
    return R.maxv

def kern(a):
    st = Stamp(a)
    a("s_cmp_ge_u32 s2, 0x100")
    a("s_cbranch_scc1 KEND")
    st()
    a("""s_load_dwordx2 s[4:5], s[0:1], 0
         s_load_dwordx2 s[8:9], s[0:1], 32
         s_load_dwordx2 s[12:13], s[0:1], 40
         s_load_dwordx2 s[16:17], s[0:1], 72
         s_load_dwordx2 s[28:29], s[0:1], 64""")
    a("s_getpc_b64 s[100:101]")
    a.raw("PCREF:")
    a("""v_lshrrev_b32 v2, 6, v0
         s_lshr_b32 s47, s2, 3
         v_lshl_add_u32 v255, s47, 3, v2
         v_readfirstlane_b32 s3, v2
         v_lshlrev_b32 v255, 7, v255
         v_and_b32 v1, 63, v0
         v_min_u32 v255, KEND-PCREF, v255
         v_lshlrev_b32 v2, 4, v1""")
    if 'notouch' not in OPT: a("global_load_dword v255, v255, s[100:101]")
    a("""s_and_b32 s33, s2, 7
         s_mov_b32 s6, 1835008
         s_mov_b32 s7, 0x00020000
         s_mov_b32 s18, 0x10000000
         s_mov_b32 s19, 0x00020000
         s_mov_b32 s30, 256
         s_mov_b32 s31, 0x00020000""")
    a("s_cmp_ge_u32 s2, 32")
    a("s_cbranch_scc1 FFN")
    for t in L(f"""s_lshl_b32 s2, s33, 2
         s_add_u32 s2, s2, s47
         s_mul_i32 s35, s2, 896
         s_mul_i32 s49, s3, {8*28672}
         s_add_u32 s35, s35, s49
         s_mul_i32 s36, s3, {8*928}
         s_mov_b32 m0, s36
         s_add_u32 s49, s36, {8*928}
         s_mov_b32 exec_hi, 0x00ffffff
         s_waitcnt lgkmcnt(0)
         XL:
         buffer_load_dwordx4 v2, s[4:7], s35 offen lds
         s_add_u32 m0, m0, 928
         s_add_u32 s35, s35, 28672
         s_cmp_lt_u32 m0, s49
         s_cbranch_scc1 XL
         s_mov_b32 exec_hi, -1
         s_branch SPEC
         FFN:
         s_mov_b32 s11, 0x00020000
         s_mov_b32 s15, 0x00020000"""): a.raw(t if t.endswith(':') else "    " + t)
    n0 = st.n
    m1 = ffn(a, st)
    a.raw(".p2align 6")
    a.label("SPEC")
    a.reset_state()
    st.n = n0
    m2 = spec(a, st)
    a.label("KEND")
    a("s_endpgm")
    return max(m1, m2)

def build():
    label = NAME + "_kernel"
    a = Asm()
    a.raw(f"; @launch grid=(256,1,1) block=(512,1,1) lds=163840")
    a.raw('.amdgcn_target "amdgcn-amd-amdhsa--gfx950"\n.text')
    a.raw(f".globl {label}\n.p2align 8\n.type {label},@function\n{label}:")
    nv = kern(a)
    print("vgprs", nv, "instrs", a.nins, file=sys.stderr)
    nv = (nv + 7) // 8 * 8
    a.raw(f""".section .rodata,"a"
.p2align 6
.amdhsa_kernel {label}
  .amdhsa_next_free_vgpr {nv}
  .amdhsa_next_free_sgpr 102
  .amdhsa_accum_offset {nv}
  .amdhsa_group_segment_fixed_size 0
  .amdhsa_kernarg_size 80
  .amdhsa_user_sgpr_count 2
  .amdhsa_user_sgpr_kernarg_segment_ptr 1
  .amdhsa_system_sgpr_workgroup_id_x 1
.end_amdhsa_kernel""")
    return a.text()

def pads(txt):
    import subprocess, re
    open('_p.s', 'w').write(txt)
    subprocess.check_call(['clang', '-target', 'amdgcn-amd-amdhsa', '-mcpu=gfx950', '-c', '_p.s', '-o', '_p.o'])
    dis = subprocess.check_output(['llvm-objdump', '-d', '_p.o']).decode()
    sz = [len(m.group(1).split()) * 4 for m in re.finditer(r'// [0-9A-F]{12}: ([0-9A-F ]+)', dis)]
    lines = txt.split('\n'); out = []; n = 0; addr = 0; cur = None; P = {'F': [], 'S': []}
    SPC = {'F': int(opt('pf', 128)), 'S': int(opt('psp', 128))}; NWV = {'F': 8, 'S': int(opt('psw', 4))}
    last = None
    for l in lines:
        t = l.strip()
        if t.startswith(';@WARM'):
            if SPC[t[-1]]: out.append(t); addr += 8 * NWV[t[-1]] + 8
            continue
        if t.startswith(';@BEG'): cur = t[-1] if SPC[t[-1]] else None; last = None; continue
        if t.startswith(';@END'): cur = None; continue
        if t == '.p2align 6' and n < len(sz):
            while sum(sz[:n]) % 64: n += 1
            addr = (addr + 63) // 64 * 64
        if l.startswith('    ') and t and not t.startswith(('.', ';', '/')) and n < len(sz):
            if cur and addr // SPC[cur] != last:
                last = addr // SPC[cur]; P[cur].append(len(out)); out.append(None); addr += 4
            addr += sz[n]; n += 1
        out.append(l)
    assert n == len(sz) or all(x == 4 for x in sz[n:]), (n, len(sz))
    for c in 'FS':
        if not SPC[c]: continue
        N = len(P[c]); w = NWV[c]; cut = [N * i // w for i in range(w + 1)]
        for k, i in enumerate(P[c]):
            out[i] = f"PAD{c}{k}:\n    s_cbranch_execz " + (f"RET{c}" if k + 1 in cut else f"PAD{c}{k+1}")
        e = "    s_mov_b64 exec, 0\n"
        for i in range(w): e += f"    s_cmp_eq_u32 s3, {i}\n    s_cbranch_scc1 PAD{c}{cut[i]}\n"
        e += f"RET{c}:\n    s_mov_b64 exec, -1"
        out[out.index(';@WARM ' + c)] = e
        print(c, 'pads', N, file=sys.stderr)
    return '\n'.join(out)

if __name__ == "__main__":
    open(sys.argv[1], "w").write(pads(build()))
```
